```python
import torch

def _softmax(x, axis=-1):
    return torch.softmax(x, dim=axis)
def _gelu(x):
    return torch.nn.functional.gelu(x, approximate="tanh")
def _silu(x):
    return torch.nn.functional.silu(x)
def _sigmoid(x):
    return torch.sigmoid(x)
def _layernorm(x, axis=-1, eps=1e-5):
    m = x.mean(dim=axis, keepdim=True)
    v = x.var(dim=axis, keepdim=True, unbiased=False)
    return (x - m) / torch.sqrt(v + eps)
def _scatter_add(tgt, idx, src, axis=0):
    return tgt.clone().index_add_(axis, idx, src)
def _segment_sum(src, seg, n):
    out = torch.zeros((n,) + src.shape[1:], dtype=src.dtype)
    return out.index_add_(0, seg, src)
def _pad(x, pw):
    flat = tuple(v for pair in reversed(pw) for v in pair)
    return torch.nn.functional.pad(x, flat)

kernel_name = 'concat_heads__ssm_conv_h3__sliding_local_dilated__prompt'

def setup_inputs():

    _w = (lambda a: (lambda t: t.to(torch.bfloat16) if t.is_floating_point() else t)(torch.as_tensor(a)))
    def _A_setup():
        B, S, D = 1, 2048, 576
        ks = 4
        return {
            "q": _w((lambda *s: torch.randn(*s, dtype=torch.bfloat16) * 0.05)(B, S, D)),
            "k": _w((lambda *s: torch.randn(*s, dtype=torch.bfloat16) * 0.8)(B, S, D)),
            "v": _w((lambda *s: torch.randn(*s, dtype=torch.bfloat16) * 0.8)(B, S, D)),
            "shift_k": _w((lambda *s: torch.randn(*s, dtype=torch.bfloat16) * 0.8)(D, ks) * 0.5),
            "ssm_k": _w((lambda *s: torch.randn(*s, dtype=torch.bfloat16) * 1.6)(D, S) * (1.0 / S ** 0.5)),
            "ssm_D": _w((lambda *s: torch.randn(*s, dtype=torch.bfloat16) * 0.8)(D)),
        }
    _A_in = _A_setup()

    def _B_setup():
        B, S, D = 1, 2048, 576
        return {
            "x": _w((lambda *s: torch.randn(*s, dtype=torch.bfloat16) * 0.2)(B, S, D)),
            "wqkv": _w((lambda *s: torch.randn(*s, dtype=torch.bfloat16) * 0.2)(D, 3 * D)),
            "wo": _w((lambda *s: torch.randn(*s, dtype=torch.bfloat16) * 0.05)(D, D)),
        }
    _B_in = _B_setup()

    return {
        "A_q": _A_in["q"],
        "A_k": _A_in["k"],
        "A_v": _A_in["v"],
        "A_shift_k": _A_in["shift_k"],
        "A_ssm_k": _A_in["ssm_k"],
        "A_ssm_D": _A_in["ssm_D"],
        "B_x": _B_in["x"],
        "B_wqkv": _B_in["wqkv"],
        "B_wo": _B_in["wo"],
    }

def reference(A_q, A_k, A_v, A_shift_k, A_ssm_k, A_ssm_D, B_x, B_wqkv, B_wo):
    def _A_ref(q, k, v, shift_k, ssm_k, ssm_D):
        B, S, D = q.shape
        ks = shift_k.shape[-1]
        k_pad = _pad(k, ((0, 0), (ks - 1, 0), (0, 0)))
        k_shift = torch.zeros_like(k)
        for t in range(ks):
            k_shift = k_shift + k_pad[:, t:t + S, :] * shift_k[:, ks - 1 - t][None, None, :]
        kv = k_shift * v
        L = 2 * S
        kv_pad = _pad(kv, ((0, 0), (0, S), (0, 0)))
        kf_pad = _pad(ssm_k, ((0, 0), (0, S)))
        kv_f = (lambda x, axes=(-2,-1): torch.fft.rfft2(x.float(), dim=axes))(kv_pad[:, None, :, :], axes=(1, 2))
        kf_f = (lambda x, axes=(-2,-1): torch.fft.rfft2(x.float(), dim=axes))(kf_pad[:, None, :], axes=(1, 2))
        kf_f = (lambda x, *d: x.permute(*d))(kf_f, 1, 2, 0)
        y_f = kv_f * kf_f[None, :, :, :]
        y = (lambda x, s, axes=(-2,-1): torch.fft.irfft2(x, s=s, dim=axes).to(torch.bfloat16))(y_f, (1, L), axes=(1, 2))[:, 0, :S, :]
        y = y + kv * ssm_D[None, None, :]
        return q * y

    def _B_ref(x, wqkv, wo):
        B, S, D = x.shape
        H = 32; Dh = D // H
        W, dil = 8, 2
        qkv = (lambda x, *d: x.permute(*d))((x @ wqkv).reshape(B, S, 3, H, Dh), 2, 0, 3, 1, 4)
        q, k, v = qkv[0], qkv[1], qkv[2]
        scale = Dh ** -0.5
        pos = torch.arange(S)
        off = torch.arange(W) * dil
        idx = pos[:, None] - off[None, :]
        mask = idx >= 0
        idx_c = torch.where(mask, idx, 0).reshape(-1)
        kg = k[:, :, idx_c, :].reshape(B, H, S, W, Dh)
        vg = v[:, :, idx_c, :].reshape(B, H, S, W, Dh)
        logits = torch.einsum("bhsd,bhswd->bhsw", q, kg) * scale
        logits = torch.where(mask[None, None, :, :], logits, -1e9)
        attn = _softmax(logits, axis=-1)
        o = torch.einsum("bhsw,bhswd->bhsd", attn, vg)
        return (lambda x, *d: x.permute(*d))(o, 0, 2, 1, 3).reshape(B, S, D) @ wo

    a = _A_ref(A_q, A_k, A_v, A_shift_k, A_ssm_k, A_ssm_D)
    b = _B_ref(B_x, B_wqkv, B_wo)
    return torch.concatenate([a, b], axis=-1)
```

```python
import re

class Prog:
    def __init__(self):
        self.lines = []
    def __call__(self, s):
        for ln in s.split('\n'):
            ln = ln.strip()
            if ln:
                self.lines.append(ln)
    def label(self, name):
        self.lines.append(name + ':')
    def comment(self, s):
        self.lines.append('; ' + s)

_reg_re = re.compile(r'^(-|abs\()?([vas])(\d+)\)?$')
_rng_re = re.compile(r'^(-)?([vas])\[(\d+):(\d+)\]$')

def regs_of(op):
    op = op.strip()
    m = _reg_re.match(op)
    if m:
        return {(m.group(2), int(m.group(3)))}
    m = _rng_re.match(op)
    if m:
        return {(m.group(2), i) for i in range(int(m.group(3)), int(m.group(4)) + 1)}
    if op == 'vcc':
        return {('s', 106), ('s', 107)}
    if op == 'vcc_lo': return {('s', 106)}
    if op == 'vcc_hi': return {('s', 107)}
    if op == 'exec':
        return {('s', 126), ('s', 127)}
    if op == 'exec_lo': return {('s', 126)}
    if op == 'exec_hi': return {('s', 127)}
    if op == 'm0':
        return {('s', 124)}
    return set()

TRANS = ('v_exp_f32', 'v_log_f32', 'v_rcp_f32', 'v_rsq_f32', 'v_sqrt_f32', 'v_sin_f32', 'v_cos_f32', 'v_rcp_iflag_f32')

class Ins:
    def __init__(self, text):
        self.text = text
        t = text.split(';')[0].strip()
        self.is_label = t.endswith(':')
        self.is_dir = t.startswith('.') or t == ''
        self.mn = ''
        self.w = set(); self.r = set(); self.srcc = set(); self.srcab = set(); self.data = set(); self.maskr = set()
        self.kind = None
        if self.is_label or self.is_dir:
            return
        parts = t.split(None, 1)
        self.mn = mn = parts[0]
        rest = parts[1] if len(parts) > 1 else ''
        ops = [o.strip() for o in rest.split(',')] if rest else []
        clean = []
        self.mods = ''
        for o in ops:
            sp = o.split()
            clean.append(sp[0] if sp else '')
            if len(sp) > 1:
                self.mods += ' ' + ' '.join(sp[1:])
        ops = clean
        self.ops = ops
        R = [regs_of(o) for o in ops]
        def U(l):
            s = set()
            for x in l: s |= x
            return s
        if mn.startswith('v_mfma'):
            self.kind = 'mfma'
            self.w = R[0]; self.srcab = R[1] | R[2]; self.srcc = R[3]; self.r = self.srcab | self.srcc
            self.passes = 8 if '32x32' in mn else 4
        elif mn.startswith('v_cmp'):
            self.kind = 'valu'; self.w = R[0]; self.r = U(R[1:])
            if mn.startswith('v_cmpx'): self.w |= regs_of('exec')
        elif mn.startswith('v_readfirstlane') or mn.startswith('v_readlane'):
            self.kind = 'valu'; self.w = R[0]; self.r = U(R[1:])
        elif mn.startswith('v_permlane'):
            self.kind = 'valu'; self.w = R[0] | R[1]; self.r = R[0] | R[1]
        elif mn.startswith('v_add_co') or mn.startswith('v_sub_co') or mn.startswith('v_addc_co') or mn.startswith('v_subb_co'):
            self.kind = 'valu'; self.w = R[0] | R[1]; self.r = U(R[2:])
        elif mn.startswith('v_'):
            self.kind = 'valu'; self.w = R[0]; self.r = U(R[1:])
            if mn.startswith('v_fmac') or mn.startswith('v_dot2c') or mn.startswith('v_writelane') or 'dpp' in mn or 'row_' in self.mods or 'quad_perm' in self.mods or 'wave_' in self.mods:
                self.r |= R[0]
            if mn.startswith('v_cndmask') and len(ops) == 3:
                self.r |= regs_of('vcc')
        elif mn.startswith('ds_'):
            self.kind = 'ds'
            if mn.startswith('ds_read') or mn.startswith('ds_bpermute') or mn.startswith('ds_swizzle'):
                self.w = R[0]; self.r = U(R[1:])
            else:
                self.r = U(R)
        elif mn.startswith('buffer_') or mn.startswith('global_'):
            self.kind = 'vmem'
            islds = ' lds' in (' ' + self.mods + ' ') or '_lds_' in mn
            self.islds = islds
            if mn in ('buffer_wbl2', 'buffer_inv'):
                pass
            elif islds:
                self.r = U(R) | regs_of('m0')
            elif '_load' in mn:
                self.w = R[0]; self.r = U(R[1:])
            elif mn.startswith('buffer_store'):
                self.r = U(R); self.data = R[0]
            elif mn.startswith('global_store'):
                self.r = U(R); self.data = R[1]
            elif 'atomic' in mn:
                self.r = U(R)
                if 'sc0' in self.mods: self.w = R[0]
            else:
                raise ValueError(text)
        elif mn.startswith('s_'):
            self.kind = 'salu'
            if mn.startswith('s_cmp') or mn.startswith('s_cbranch') or mn in ('s_branch', 's_nop', 's_waitcnt', 's_barrier', 's_endpgm', 's_sleep', 's_setprio', 's_setpc_b64'):
                self.r = U(R)
            elif mn.startswith('s_load') or mn.startswith('s_memtime') or mn.startswith('s_memrealtime'):
                self.kind = 'smem'; self.w = R[0]; self.r = U(R[1:])
            else:
                self.w = R[0]; self.r = U(R[1:])
                if 'saveexec' in mn: self.w |= regs_of('exec')
        else:
            raise ValueError('unknown instr ' + text)
    def states(self):
        if self.is_label or self.is_dir: return 0
        if self.mn == 's_nop': return int(self.ops[0], 0) + 1
        return 1

def V(s): return {x for x in s if x[0] in 'va'}
def S(s): return {x for x in s if x[0] == 's'}

def required(p, c):
    need = 0
    pk, ck = p.kind, c.kind
    isdot = lambda i: i.mn.startswith('v_dot')
    if pk == 'valu':
        pw = V(p.w); ps = S(p.w)
        if ck == 'mfma' and pw & c.r: need = max(need, 2)
        if ck == 'valu':
            if pw & c.r:
                if c.mn.startswith('v_permlane'): need = max(need, 2)
                if 'dpp' in c.mn or 'row_' in c.mods or 'quad_perm' in c.mods or 'wave_' in c.mods: need = max(need, 2)
                if c.mn.startswith('v_readfirstlane') or c.mn.startswith('v_readlane'): need = max(need, 1)
                if p.mn.split('_e')[0] in TRANS and c.mn.split('_e')[0] not in TRANS: need = max(need, 1)
                if 'sdwa' in p.mn or 'op_sel' in p.mods: need = max(need, 1)
            if isdot(p) and (pw & (c.r | c.w)):
                if c.mn != p.mn: need = max(need, 3)
                else:
                    ab = regs_of(c.ops[1]) | regs_of(c.ops[2])
                    if pw & ab: need = max(need, 3)
            if ps & c.r:
                need = max(need, 4 if (c.mn.startswith('v_readlane') or c.mn.startswith('v_writelane')) else 2)
            if (ps & regs_of('exec')):
                if c.mn.startswith('v_readlane') or c.mn.startswith('v_readfirstlane') or c.mn.startswith('v_permlane'): need = max(need, 4)
                if 'dpp' in c.mn or 'row_' in c.mods: need = max(need, 5)
        if isdot(p) and ck in ('ds', 'vmem', 'mfma') and pw & (c.r | c.w): need = max(need, 3)
        if p.mn.split('_e')[0] in TRANS and ck in ('ds', 'vmem', 'mfma') and pw & c.r: need = max(need, 2)
        if ck == 'vmem' and ps & c.r: need = max(need, 5)
        if ck == 'salu' and ps & c.r: need = max(need, 1)
        if ck == 'mfma' and (ps & regs_of('exec')): need = max(need, 4)
    if pk == 'mfma':
        n = p.passes
        far = {4: 8, 8: 12}[n]; ovl = {4: 6, 8: 10}[n]; war = {4: 3, 8: 7}[n]
        if ck == 'mfma':
            if p.w & c.srcab: need = max(need, far)
            if p.w & c.srcc:
                if not (p.w == c.srcc and p.passes == c.passes): need = max(need, ovl)
            elif p.w & c.w: need = max(need, far)
        elif ck in ('valu', 'ds', 'vmem'):
            if p.w & (c.r | c.w): need = max(need, far)
            if ck == 'valu' and p.srcc & c.w: need = max(need, war)
    if pk == 'salu':
        if (p.w & regs_of('m0')) and ck == 'vmem' and getattr(c, 'islds', False): need = max(need, 1)
    if pk == 'vmem' and p.data and ('x3' in p.mn or 'x4' in p.mn):
        if p.data & c.w: need = max(need, 2 if ck == 'valu' else 1)
    return need

def fix_hazards(lines, verbose=False):
    MAXD = 13
    total = 0
    while True:
        ins = [Ins(l) for l in lines]
        n = len(ins)
        labels = {}
        for i, x in enumerate(ins):
            if x.is_label: labels[x.text.split(';')[0].strip()[:-1]] = i
        preds = [[] for _ in range(n)]
        for i, x in enumerate(ins):
            fall = True
            if x.mn in ('s_branch', 's_call_b64') or x.mn.startswith('s_cbranch'):
                tgt = x.ops[-1]
                if tgt in labels: preds[labels[tgt]].append(i)
                if x.mn == 's_branch': fall = False
            if x.mn in ('s_endpgm', 's_setpc_b64'): fall = False
            if fall and i + 1 < n: preds[i + 1].append(i)
        insert = None
        for i, c in enumerate(ins):
            if c.kind is None: continue
            worst = 0; why = None
            seen = {}
            stack = [(p, 0) for p in preds[i]]
            while stack:
                j, d = stack.pop()
                if j in seen and seen[j] <= d: continue
                seen[j] = d
                p = ins[j]
                if p.kind is not None:
                    req = required(p, c)
                    if req - d > worst:
                        worst = req - d; why = p.text
                nd = d + p.states()
                if nd < MAXD:
                    for q in preds[j]: stack.append((q, nd))
            if worst > 0:
                insert = (i, worst, why); break
        if insert is None:
            break
        i, w, why = insert
        if verbose: print(f'hazard: +{w} before [{ins[i].text}] after [{why}]')
        lines = lines[:i] + [f's_nop {w-1}'] + lines[i:]
        total += 1
    return lines, total
```

```python
import sys, os
sys.path.insert(0, os.path.dirname(os.path.abspath(__file__)))
from asmlib import Prog, fix_hazards

NAME = 'concat_heads__ssm_conv_h3__sliding_local_dilated__prompt'
MODE = os.environ.get('MODE', 'two')
PROF = int(os.environ.get('PROF', '0'))

SZ_A = 2359296
SZ_W = 1990656
SZ_WO = 663552
SZ_OUT = 4718592
WS_XR = 0
WS_O = 0x240000
WS_PROF = 16 << 20
OOB = 0x80000000
NB, NA = 144, 72
NWG = NB + NA
LDS_BYTES = 163840

sW = 3
P_Q, P_K, P_V, P_SH, P_H, P_D, P_X, P_W, P_WO, P_OUT, P_DBG, P_WS = [16 + 2 * i for i in range(12)]

def srd(p, dst, ptr, size, off=0):
    if off:
        p(f's_add_u32 s{dst}, s{ptr}, {off}')
        p(f's_addc_u32 s{dst+1}, s{ptr+1}, 0')
        p(f's_and_b32 s{dst+1}, s{dst+1}, 0xffff')
    else:
        p(f's_mov_b32 s{dst}, s{ptr}')
        p(f's_and_b32 s{dst+1}, s{ptr+1}, 0xffff')
    p(f's_mov_b32 s{dst+2}, {size}')
    p(f's_mov_b32 s{dst+3}, 0x20000')

def vr(a, n):
    return f'v[{a}:{a+n-1}]' if n > 1 else f'v{a}'

def interleave(prim, sec, lead=0):
    out = list(prim[:lead]); prim = prim[lead:]
    n, m = len(prim), len(sec)
    j = 0
    for i, x in enumerate(prim):
        while j < m and j * n <= i * m:
            out.append(sec[j]); j += 1
        out.append(x)
    out += sec[j:]
    return out

def stamp(p, idx, uid):
    if not PROF: return
    p(f's_cmp_lg_u32 s{sW}, 0')
    p(f's_cbranch_scc1 L_st_{uid}')
    p('s_memrealtime s[96:97]')
    p('s_waitcnt lgkmcnt(0)')
    p('v_mov_b32 v254, s96')
    p('s_lshl_b32 s98, s2, 7')
    p(f's_add_u32 s98, s98, {idx*4}')
    p('v_mov_b32 v255, s98')
    p('s_mov_b64 s[100:101], exec')
    p('s_mov_b64 exec, 1')
    p('buffer_store_dword v254, v255, s[92:95], 0 offen')
    p('s_mov_b64 exec, s[100:101]')
    p.label(f'L_st_{uid}')

def prologue(p, k):
    p(f's_cmp_ge_u32 s2, {NWG}')
    p(f's_cbranch_scc1 L_end_{k}')
    p('s_load_dwordx16 s[16:31], s[0:1], 0')
    p('s_load_dwordx8 s[32:39], s[0:1], 64')
    p('v_lshrrev_b32 v2, 6, v0')
    p('v_and_b32 v1, 63, v0')
    p(f'v_readfirstlane_b32 s{sW}, v2')
    p('s_and_b32 s4, s2, 7')
    p('s_lshr_b32 s5, s2, 3')
    p('s_cmp_ge_u32 s5, 18')
    p(f's_cbranch_scc1 L_roleA_{k}')

def prof_srd(p):
    if PROF:
        srd(p, 92, P_WS, 1 << 20, WS_PROF)

RS = 12864
H1 = 4164
XRB = 8288

def a_decode(p):
    p('s_mul_i32 s6, s4, 9')
    p('s_add_u32 s6, s6, s5')
    p('s_sub_u32 s6, s6, 18')

def a1_addr(p):
    p('s_lshr_b32 s7, s6, 3')
    p('s_and_b32 s8, s6, 7')
    p('s_lshl_b32 s8, s8, 8')
    p(f's_lshr_b32 s9, s{sW}, 1')
    p('s_lshl_b32 s9, s9, 6')
    p('s_add_u32 s8, s8, s9')
    p('s_lshl_b32 s7, s7, 6')
    p(f's_and_b32 s9, s{sW}, 1')
    p('s_lshl_b32 s9, s9, 5')
    p('s_add_u32 s7, s7, s9')
    p('v_and_b32 v7, 7, v1')
    p('v_lshrrev_b32 v8, 3, v1')
    p('v_lshlrev_b32 v9, 3, v8')
    p('v_add_u32 v9, s8, v9')
    p('v_lshlrev_b32 v7, 2, v7')
    p('v_add_u32 v7, s7, v7')
    p('v_mul_u32_u24 v2, 1152, v9')
    p('v_lshl_add_u32 v2, v7, 1, v2')
    p('v_add_u32 v4, 4608, v2')
    p('v_subrev_u32 v3, 3456, v2')
    p('v_cmp_eq_u32 vcc, 0, v9')
    p(f'v_mov_b32 v8, {OOB}')
    p('v_cndmask_b32 v3, v3, v8, vcc')
    p('v_lshlrev_b32 v5, 3, v7')
    p('v_lshlrev_b32 v6, 12, v7')
    p('v_sub_u32 v8, 2040, v9')
    p('v_lshl_add_u32 v6, v8, 1, v6')

def a1_loads(p):
    srd(p, 40, P_K, SZ_A)
    srd(p, 44, P_V, SZ_A)
    srd(p, 48, P_SH, 4608)
    K, Vv, Sx = 10, 32, 48
    for i in range(3):
        p(f'buffer_load_dwordx2 {vr(K+2*i,2)}, v3, s[40:43], 0 offen offset:{1152*i}')
    for i in range(8):
        a = 'v2' if i < 4 else 'v4'
        p(f'buffer_load_dwordx2 {vr(K+6+2*i,2)}, {a}, s[40:43], 0 offen offset:{1152*(i&3)}')
    p(f'buffer_load_dwordx4 {vr(Sx,4)}, v5, s[48:51], 0 offen')
    p(f'buffer_load_dwordx4 {vr(Sx+4,4)}, v5, s[48:51], 0 offen offset:16')
    for i in range(8):
        a = 'v2' if i < 4 else 'v4'
        p(f'buffer_load_dwordx2 {vr(Vv+2*i,2)}, {a}, s[44:47], 0 offen offset:{1152*(i&3)}')
    return 21

def a1_compute(p, later, sc):
    K, Vv, Sx, P, KS, OUT = 10, 32, 48, 56, 96, 128
    srd(p, 52, P_WS, SZ_A, WS_XR)
    p('s_mov_b32 s10, 0x05040100')
    p('s_mov_b32 s11, 0x07060302')
    p('s_movk_i32 s12, 0x1000')
    p('s_movk_i32 s13, 0x2000')
    p('s_movk_i32 s14, 0x3000')
    p(f's_waitcnt vmcnt({8+2+later})')
    for i in range(1, 11):
        for c in range(4):
            p(f'v_perm_b32 v{P+10*c+i-1}, v{K+2*(i-1)+(c>>1)}, v{K+2*i+(c>>1)}, s{10+(c&1)}')
    p(f's_waitcnt vmcnt({8+later})')
    for j in range(8):
        for c in range(4):
            p(f'v_dot2_f32_bf16 v{KS+8*c+j}, v{P+10*c+j}, v{Sx+2*c+1}, 0')
    for j in range(8):
        for c in range(4):
            p(f'v_dot2_f32_bf16 v{KS+8*c+j}, v{P+10*c+j+2}, v{Sx+2*c}, v{KS+8*c+j}')
    p(f's_waitcnt vmcnt({later})')
    for c in range(4):
        for j in range(8):
            if c & 1: p(f'v_and_b32 v{P+8*c+j}, 0xffff0000, v{Vv+2*j+(c>>1)}')
            else: p(f'v_lshlrev_b32 v{P+8*c+j}, 16, v{Vv+2*j+(c>>1)}')
    for c in range(4):
        for j in range(8):
            p(f'v_mul_f32 v{KS+8*c+j}, v{KS+8*c+j}, v{P+8*c+j}')
        for q in range(4):
            p(f'v_cvt_pk_bf16_f32 v{OUT+4*c+q}, v{KS+8*c+7-2*q}, v{KS+8*c+6-2*q}')
        so = '0' if c == 0 else f's{11+c}'
        p(f'buffer_store_dwordx4 {vr(OUT+4*c,4)}, v6, s[52:55], {so} offen{sc}')

HD, HP, HT = 144, 160, 164
QR, XS = 180, 196
vHa, vXa, vEa, vZw, vZr, vQo, vOo, vLb = 212, 216, 217, 218, 219, 220, 221, 222

def a2_hloads(p):
    srd(p, 56, P_H, SZ_A)
    p('s_lshl_b32 s15, s6, 3')
    p(f's_add_u32 s15, s15, s{sW}')
    p('s_lshl_b32 s60, s15, 12')
    p('v_lshlrev_b32 v223, 4, v1')
    p('v_add_u32 v224, s60, v223')
    p('v_subrev_u32 v225, 4, v224')
    p('v_cmp_eq_u32 vcc, 0, v1')
    p(f'v_mov_b32 v226, {OOB}')
    p('v_cndmask_b32 v226, v225, v226, vcc')
    for i in range(4):
        p(f'buffer_load_dwordx4 {vr(HD+4*i,4)}, v224, s[56:59], 0 offen offset:{1024*i}')
    p(f'buffer_load_dword v{HP}, v226, s[56:59], 0 offen')
    for i in range(1, 4):
        p(f'buffer_load_dword v{HP+i}, v225, s[56:59], 0 offen offset:{1024*i}')
    p('s_lshr_b32 s61, s15, 1')
    p('s_lshl_b32 s61, s61, 2')
    p(f's_load_dword s62, s[{P_D}:{P_D+1}], s61')
    return 8

def a2_hstage(p, later):
    p(f's_mul_i32 s63, s{sW}, {RS}')
    p(f'v_add_u32 v{vLb}, s63, v223')
    p('v_mov_b32 v228, 0')
    p('v_mov_b32 v229, 0')
    p('v_lshlrev_b32 v227, 3, v1')
    p('v_add_u32 v227, s63, v227')
    p('s_mov_b32 exec_hi, 0x0fffffff')
    p(f'ds_write_b64 v227, v[228:229] offset:{XRB+4096}')
    p('s_mov_b64 exec, 15')
    p('ds_write_b64 v227, v[228:229]')
    p(f'ds_write_b64 v227, v[228:229] offset:{H1-4}')
    p('s_mov_b64 exec, -1')
    p(f's_waitcnt vmcnt({later})')
    for i in range(4):
        p(f'v_alignbit_b32 v{HT+4*i}, v{HD+4*i}, v{HP+i}, 16')
        for d in range(1, 4):
            p(f'v_alignbit_b32 v{HT+4*i+d}, v{HD+4*i+d}, v{HD+4*i+d-1}, 16')
        p(f'ds_write_b128 v{vLb}, {vr(HD+4*i,4)} offset:{32+1024*i}')
        p(f'ds_write_b128 v{vLb}, {vr(HT+4*i,4)} offset:{H1+28+1024*i}')
    p('v_and_b32 v228, 15, v1')
    p('v_lshrrev_b32 v229, 4, v1')
    p('v_and_b32 v230, 1, v1')
    p(f'v_mov_b32 v231, {H1}')
    p('v_cmp_eq_u32 vcc, 1, v230')
    p('v_cndmask_b32 v231, v231, 2, vcc')
    p('v_lshl_add_u32 v231, v228, 1, v231')
    p('v_lshl_add_u32 v231, v229, 4, v231')
    p(f'v_add_u32 v{vHa}, s63, v231')
    for i in range(1, 4):
        p(f'v_add_u32 v{vHa+i}, {1024*i}, v{vHa}')
    p('v_lshlrev_b32 v230, 5, v228')
    p(f'v_sub_u32 v231, {XRB+480}, v230')
    p('v_lshl_add_u32 v231, v229, 4, v231')
    p(f'v_add_u32 v{vXa}, s63, v231')
    p(f'v_sub_u32 v231, {XRB+504}, v230')
    p('v_lshlrev_b32 v232, 3, v229')
    p('v_sub_u32 v231, v231, v232')
    p(f'v_add_u32 v{vEa}, s63, v231')
    p('v_add_u32 v231, v230, v232')
    p(f'v_add_u32 v{vZw}, s63, v231')
    p('v_bfe_u32 v231, v1, 2, 2')
    p(f'v_mul_u32_u24 v231, {RS}, v231')
    p('v_lshl_add_u32 v231, v229, 5, v231')
    p('v_and_b32 v232, 3, v1')
    p('v_lshl_add_u32 v231, v232, 3, v231')
    p(f's_lshl_b32 s64, s{sW}, 9')
    p(f'v_add_u32 v{vZr}, s64, v231')
    p(f's_lshl_b32 s64, s{sW}, 8')
    p('v_add_u32 v231, s64, v1')
    p('s_lshl_b32 s65, s6, 4')
    p(f'v_mul_u32_u24 v{vQo}, 1152, v231')
    p(f'v_add_u32 v{vQo}, s65, v{vQo}')
    p(f'v_mul_u32_u24 v{vOo}, 2304, v231')
    p(f'v_add_u32 v{vOo}, s65, v{vOo}')

def a2_qloads(p):
    srd(p, 40, P_Q, SZ_A)
    for j in range(4):
        p(f's_mov_b32 s64, {64*1152*j}')
        p(f'buffer_load_dwordx4 {vr(QR+4*j,4)}, v{vQo}, s[40:43], s64 offen')
    return 4

def a2_main(p, k, sc, qlater):
    srd(p, 52, P_WS, SZ_A, WS_XR)
    for i in range(4):
        p(f'buffer_load_dwordx4 {vr(XS+4*i,4)}, v224, s[52:55], 0 offen offset:{1024*i}{sc}')
    if qlater:
        a2_qloads(p)
    FA = [10, 74]; FB = [42, 106]; ACC = 138
    def a_reads(st, b):
        r = []
        for a in range(8):
            o = 128 * (a & 1) + 16 * b
            r.append(f'ds_read2_b32 {vr(FA[st]+4*a,2)}, v{vHa+(a>>1)} offset0:{o} offset1:{o+1}')
            r.append(f'ds_read2_b32 {vr(FA[st]+4*a+2,2)}, v{vHa+(a>>1)} offset0:{o+2} offset1:{o+3}')
        return r
    def b_reads(st, b):
        return [f'ds_read_b128 {vr(FB[st]+4*e,4)}, v{vXa} offset:{64*(56-8*e+b)}' for e in range(8)]
    def reads(st, b):
        A, B = a_reads(st, b), b_reads(st, b)
        out = []
        for i in range(8):
            out += [B[i], A[2*i], A[2*i+1]]
        return out
    def mfmas(st):
        out = []
        for s_ in range(8):
            for a in range(8):
                for e in range(8):
                    if a + e <= 7 and max(a, e) == s_:
                        n = a + e
                        out.append(f'v_mfma_f32_16x16x32_bf16 {vr(ACC+4*n,4)}, {vr(FA[st]+4*a,4)}, {vr(FB[st]+4*e,4)}, {vr(ACC+4*n,4)}')
        return out
    for i in range(32):
        p(f'v_mov_b32 v{ACC+i}, 0')
    p('s_waitcnt lgkmcnt(0)')
    for x in a_reads(0, 0): p(x)
    for i in range(4):
        p(f's_waitcnt vmcnt({3-i+(4 if qlater else 0)})')
        p(f'ds_write_b128 v{vLb}, {vr(XS+4*i,4)} offset:{XRB+1024*i}')
    p('s_waitcnt lgkmcnt(0)')
    for x in b_reads(0, 0): p(x)
    p('s_mov_b32 s64, 0')
    p.label(f'L_a2loop_{k}')
    p('s_waitcnt lgkmcnt(0)')
    for x in interleave(mfmas(0), reads(1, 1), lead=1): p(x)
    p('s_waitcnt lgkmcnt(0)')
    for x in interleave(mfmas(1), reads(0, 2), lead=1): p(x)
    for i in range(4):
        p(f'v_add_u32 v{vHa+i}, 128, v{vHa+i}')
    p(f'v_add_u32 v{vXa}, 128, v{vXa}')
    p('s_add_u32 s64, s64, 1')
    p('s_cmp_lt_u32 s64, 4')
    p(f's_cbranch_scc1 L_a2loop_{k}')
    KV = 10
    p('s_waitcnt lgkmcnt(0)')
    for n in range(8):
        p(f'ds_read_b64 {vr(KV+2*n,2)}, v{vEa} offset:{512*(7-n)}')
    p('s_and_b32 s61, s15, 1')
    p('s_lshl_b32 s61, s61, 4')
    p('s_lshr_b32 s62, s62, s61')
    p('s_lshl_b32 s62, s62, 16')
    T = 42
    for n in range(8):
        p(f's_waitcnt lgkmcnt({7-n})' if n < 8 else '')
        d0, d1 = KV + 2*n, KV + 2*n + 1
        t = T + 4*n
        p(f'v_and_b32 v{t}, 0xffff0000, v{d1}')
        p(f'v_lshlrev_b32 v{t+1}, 16, v{d1}')
        p(f'v_and_b32 v{t+2}, 0xffff0000, v{d0}')
        p(f'v_lshlrev_b32 v{t+3}, 16, v{d0}')
        for rr in range(4):
            p(f'v_fmac_f32 v{ACC+4*n+rr}, s62, v{t+rr}')
        p(f'v_cvt_pk_bf16_f32 v{t}, v{ACC+4*n}, v{ACC+4*n+1}')
        p(f'v_cvt_pk_bf16_f32 v{t+1}, v{ACC+4*n+2}, v{ACC+4*n+3}')
    for n in range(8):
        p(f'ds_write_b64 v{vZw}, {vr(T+4*n,2)} offset:{512*n}')
    srd(p, 44, P_OUT, SZ_OUT)
    p('s_waitcnt lgkmcnt(0)')
    p('s_barrier')
    Z = 74
    for j in range(4):
        p(f'ds_read_b64_tr_b16 {vr(Z+4*j,2)}, v{vZr} offset:{128*j}')
        p(f'ds_read_b64_tr_b16 {vr(Z+4*j+2,2)}, v{vZr} offset:{4*RS+128*j}')
    p('s_waitcnt vmcnt(0)')
    U = 106
    for j in range(4):
        p(f's_waitcnt lgkmcnt({6-2*j})')
        for d in range(4):
            z, q = Z + 4*j + d, QR + 4*j + d
            p(f'v_lshlrev_b32 v{U}, 16, v{z}')
            p(f'v_lshlrev_b32 v{U+1}, 16, v{q}')
            p(f'v_and_b32 v{U+2}, 0xffff0000, v{z}')
            p(f'v_and_b32 v{U+3}, 0xffff0000, v{q}')
            p(f'v_mul_f32 v{U}, v{U}, v{U+1}')
            p(f'v_mul_f32 v{U+2}, v{U+2}, v{U+3}')
            p(f'v_cvt_pk_bf16_f32 v{z}, v{U}, v{U+2}')
            U = 106 + (U - 106 + 4) % 16
        p(f's_mov_b32 s64, {64*2304*j}')
        p(f'buffer_store_dwordx4 {vr(Z+4*j,4)}, v{vOo}, s[44:47], s64 offen')

STG = 45056
WOFF = 16384
KQB, VTB, VP, OB, WOB = 0, 49152, 10512, 70176, 90112
ACCB = 64
SET = [(128, 144), (160, 176)]
vDx, vDw = 2, 4
vXb0, vXb1, vWb = 8, 9, 10
vXa0, vXa1, vWa = 11, 12, 13
vKQ = 14
vVT = 22
vBias, vBias0 = 23, 27
vOst = 31
vOg = 32
vTmp = 33

def b_decode(p):
    p('s_and_b32 s6, s4, 1')
    p('s_mul_i32 s6, s6, 9')
    p('s_lshr_b32 s8, s5, 1')
    p('s_add_u32 s6, s6, s8')
    p('s_lshr_b32 s7, s4, 1')
    p('s_lshl_b32 s7, s7, 1')
    p('s_and_b32 s8, s5, 1')
    p('s_add_u32 s7, s7, s8')
    p('s_mul_i32 s8, s6, 114')
    p('s_cmp_ge_u32 s5, 9')
    p('s_cselect_b32 s9, 1, 0')
    p('s_lshl_b32 s66, s4, 1')
    p('s_add_u32 s66, s66, s9')
    p('s_mul_i32 s9, s9, 9')
    p('s_sub_u32 s67, s5, s9')

def b1_dma_addr(p):
    t = vTmp
    p(f's_and_b32 s9, s{sW}, 3')
    p('s_lshl_b32 s9, s9, 5')
    p(f's_lshr_b32 s10, s{sW}, 2')
    p('s_add_u32 s9, s9, s10')
    p('s_add_u32 s9, s9, s8')
    p(f'v_lshrrev_b32 v{t}, 3, v1')
    p(f'v_lshl_add_u32 v{t+1}, v{t}, 1, s9')
    p(f'v_mul_u32_u24 v{t+1}, 1152, v{t+1}')
    p(f'v_lshrrev_b32 v{t+2}, 4, v1')
    p(f'v_and_b32 v{t+3}, 7, v1')
    p(f'v_xor_b32 v{t+2}, v{t+2}, v{t+3}')
    p(f'v_lshl_add_u32 v{vDx}, v{t+2}, 4, v{t+1}')
    p(f'v_xor_b32 v{t+2}, 4, v{t+2}')
    p(f'v_add_u32 v{t+1}, {16*1152}, v{t+1}')
    p(f'v_lshl_add_u32 v{vDx+1}, v{t+2}, 4, v{t+1}')
    p(f's_mul_i32 s9, s{sW}, 3')
    p(f's_lshl_b32 s10, s{sW}, 2')
    p('s_sub_u32 s10, s10, 4')
    p(f's_cmp_lt_u32 s{sW}, 4')
    p('s_cselect_b32 s11, s9, s10')
    p('s_lshl_b32 s9, s11, 6')
    p('s_mul_i32 s10, s7, 144')
    for n in range(4):
        P_, sg, pc, se, ka = t, t+1, t+2, t+3, t+4
        p(f'v_add_u32 v{P_}, s9, v1')
        if n: p(f'v_add_u32 v{P_}, {64*n}, v{P_}')
        p(f'v_mul_u32_u24 v{sg}, 2428, v{P_}')
        p(f'v_lshrrev_b32 v{sg}, 16, v{sg}')
        p(f'v_mul_u32_u24 v{pc}, 27, v{sg}')
        p(f'v_sub_u32 v{pc}, v{P_}, v{pc}')
        p(f'v_mul_u32_u24 v{se}, 57, v{pc}')
        p(f'v_lshrrev_b32 v{se}, 9, v{se}')
        p(f'v_and_b32 v{ka}, 0xf8, v{sg}')
        p(f'v_and_b32 v{t+5}, 1, v{sg}')
        p(f'v_lshl_add_u32 v{ka}, v{t+5}, 2, v{ka}')
        p(f'v_bfe_u32 v{t+5}, v{sg}, 1, 2')
        p(f'v_add_u32 v{ka}, v{ka}, v{t+5}')
        p(f'v_mul_u32_u24 v{ka}, 3456, v{ka}')
        p(f'v_lshl_add_u32 v{ka}, v{pc}, 4, v{ka}')
        p(f'v_cmp_eq_u32 vcc, 0, v{se}')
        p(f'v_mov_b32 v{t+5}, 2016')
        p(f'v_mov_b32 v{t+6}, 1152')
        p(f'v_cndmask_b32 v{t+5}, v{t+5}, v{t+6}, vcc')
        p(f'v_cmp_eq_u32 vcc, 1, v{se}')
        p(f'v_mov_b32 v{t+6}, -144')
        p(f'v_cndmask_b32 v{t+5}, v{t+5}, v{t+6}, vcc')
        p(f'v_add3_u32 v{vDw+n}, v{ka}, v{t+5}, s10')
        if n == 3:
            p(f'v_cmp_le_u32 vcc, 1728, v{P_}')
            p(f'v_mov_b32 v{t+5}, {OOB}')
            p(f'v_cndmask_b32 v{vDw+n}, v{vDw+n}, v{t+5}, vcc')
    p(f's_lshl_b32 s12, s{sW}, 11')
    p('s_lshl_b32 s13, s11, 10')
    p(f's_add_u32 s13, s13, {WOFF}')

def b1_dma(nW, sStage, sXo, sWo):
    it = []
    for i in range(2):
        it.append(f's_add_u32 m0, s68, {1024*i}')
        it.append(f'buffer_load_dwordx4 v{vDx+i}, s[40:43], s{sXo} offen lds')
    for n in range(nW):
        it.append(f's_add_u32 m0, s69, {1024*n}')
        it.append(f'buffer_load_dwordx4 v{vDw+n}, s[44:47], s{sWo} offen lds')
    return it

def b1_consts(p):
    t = vTmp
    c, g = t, t + 1
    p(f'v_and_b32 v{c}, 15, v1')
    p(f'v_lshrrev_b32 v{g}, 4, v1')
    p(f's_and_b32 s14, s{sW}, 1')
    p(f's_lshr_b32 s15, s{sW}, 1')
    p(f'v_lshrrev_b32 v{t+2}, 1, v{c}')
    p(f'v_xor_b32 v{t+2}, v{t+2}, v{g}')
    p(f'v_lshlrev_b32 v{t+2}, 4, v{t+2}')
    p(f'v_lshl_add_u32 v{t+2}, v{c}, 7, v{t+2}')
    p('s_lshl_b32 s9, s14, 13')
    p(f'v_add_u32 v{vXb0}, s9, v{t+2}')
    p(f'v_xor_b32 v{vXb1}, 64, v{vXb0}')
    p(f'v_bfe_u32 v{t+2}, v1, 2, 2')
    p(f'v_lshlrev_b32 v{t+2}, 1, v{t+2}')
    p(f'v_lshl_add_u32 v{t+2}, v{g}, 3, v{t+2}')
    p(f'v_mul_u32_u24 v{t+2}, 432, v{t+2}')
    p(f'v_and_b32 v{t+3}, 3, v1')
    p(f'v_lshl_add_u32 v{t+2}, v{t+3}, 3, v{t+2}')
    p('s_lshl_b32 s9, s15, 2')
    p('s_mul_i32 s10, s15, 3')
    p('s_add_u32 s10, s10, 2')
    p('s_cmp_lt_u32 s15, 2')
    p('s_cselect_b32 s70, s9, s10')
    p('s_lshl_b32 s9, s70, 5')
    p(f's_add_u32 s9, s9, {WOFF}')
    p(f'v_add_u32 v{vWb}, s9, v{t+2}')
    p('s_mul_i32 s9, s14, 3072')
    p(f'v_mul_u32_u24 v{t+2}, 48, v{c}')
    p(f'v_add_u32 v{t+2}, s9, v{t+2}')
    p('s_lshl_b32 s10, s70, 4')
    p(f'v_lshl_add_u32 v{t+3}, v{g}, 2, s10')
    for j in range(4):
        for h in range(2):
            p(f'v_add_u32 v{t+4}, {16*j+2*h}, v{t+3}')
            p(f'v_mul_u32_u24 v{t+5}, 57, v{t+4}')
            p(f'v_lshrrev_b32 v{t+5}, 10, v{t+5}')
            p(f'v_mul_u32_u24 v{t+5}, 6108, v{t+5}')
            p(f'v_lshl_add_u32 v{t+4}, v{t+4}, 1, v{t+2}')
            p(f'v_add_u32 v{vKQ+2*j+h}, v{t+4}, v{t+5}')
    p(f's_mul_i32 s9, s14, {VP}')
    p('s_mul_i32 s10, s70, 2304')
    p('s_add_u32 s9, s9, s10')
    p(f's_add_u32 s9, s9, {VTB - 9*2304}')
    p(f'v_mul_u32_u24 v{t+2}, 144, v{c}')
    p(f'v_lshl_add_u32 v{t+2}, v{g}, 3, v{t+2}')
    p(f'v_add_u32 v{vVT}, s9, v{t+2}')
    p(f'v_lshlrev_b32 v{t+2}, 2, v{g}')
    p(f'v_sub_u32 v{t+2}, v{c}, v{t+2}')
    p(f'v_cmp_ge_i32 s[72:73], -6, v{t+2}')
    p(f'v_mov_b32 v{t+5}, 0xf149f2ca')
    for rr in range(4):
        p(f'v_subrev_u32 v{t+3}, {rr}, v{t+2}')
        p(f'v_and_b32 v{t+4}, 8, v{t+3}')
        p(f'v_cmp_eq_u32 vcc, 0, v{t+4}')
        p(f'v_cndmask_b32 v{vBias+rr}, v{t+5}, 0, vcc')
        p(f'v_cmp_ge_u32 vcc, 7, v{t+3}')
        p(f'v_cndmask_b32 v{vBias0+rr}, v{t+5}, 0, vcc')
    p(f'v_and_b32 v{t+2}, 127, v0')
    p(f'v_and_b32 v{t+3}, 1, v0')
    p(f'v_mul_u32_u24 v{t+3}, 9216, v{t+3}')
    p(f'v_lshrrev_b32 v{t+4}, 1, v{t+2}')
    p(f'v_mul_u32_u24 v{t+4}, 144, v{t+4}')
    p('s_lshl_b32 s9, s15, 4')
    p(f's_add_u32 s9, s9, {OB}')
    p(f'v_add3_u32 v{vOg}, v{t+3}, v{t+4}, s9')
    p(f'v_add_u32 v{t+3}, s8, v{t+2}')
    p(f'v_lshrrev_b32 v{t+4}, 4, v{t+3}')
    p(f'v_mul_u32_u24 v{t+4}, 18432, v{t+4}')
    p(f'v_and_b32 v{t+3}, 15, v{t+3}')
    p(f'v_lshl_add_u32 v{vOst}, v{t+3}, 4, v{t+4}')
    p('s_cmp_eq_u32 s6, 0')
    p('s_cselect_b32 s9, 0, 14')
    p(f'v_cmp_gt_u32 vcc, s9, v{t+2}')
    p(f'v_mov_b32 v{t+3}, {OOB}')
    p(f'v_cndmask_b32 v{vOst}, v{vOst}, v{t+3}, vcc')
    for i in range(64):
        p(f'v_mov_b32 v{ACCB+i}, 0')

def wo_dma_items():
    it = []
    for i in range(9):
        it.append(f's_add_u32 m0, s74, {1024*i}')
        it.append(f'buffer_load_dwordx4 v{34+ (i&1)}, s[48:51], s75 offen lds\ns_add_u32 s75, s75, 9216')
    return it

def wo_dma_addr(p):
    t = 36
    p(f'v_lshrrev_b32 v{t}, 3, v1')
    p(f'v_mul_u32_u24 v{t}, 1152, v{t}')
    p(f'v_bfe_u32 v{t+1}, v1, 4, 1')
    p(f'v_lshlrev_b32 v{t+1}, 1, v{t+1}')
    p(f'v_and_b32 v{t+2}, 7, v1')
    p(f'v_xor_b32 v{t+1}, v{t+1}, v{t+2}')
    p(f's_and_b32 s9, s{sW}, 1')
    p('s_lshl_b32 s9, s9, 2')
    p(f'v_xor_b32 v{t+1}, s9, v{t+1}')
    p('s_lshl_b32 s9, s67, 7')
    p(f'v_add_u32 v{t}, s9, v{t}')
    p(f'v_lshl_add_u32 v34, v{t+1}, 4, v{t}')
    p('v_xor_b32 v35, 64, v34')
    p(f's_mul_i32 s74, s{sW}, 9216')
    p(f's_mul_i32 s75, s{sW}, {9*9216}')
    p(f's_add_u32 s74, s74, {WOB}')
    srd(p, 48, P_WO, SZ_WO)

def b1_variant(p, k, var, with_wo):
    types = [['kq']*4, ['kq', 'v', 'v'], ['v']*3][var]
    nT = len(types); nW = 3 if var == 0 else 4; nD = 2 + nW
    def reads(st, ks, xa):
        X, W = SET[st]
        r = [f'ds_read_b128 {vr(X+4*t,4)}, v{xa} offset:{2048*t}' for t in range(4)]
        for j in range(nT):
            for hf in range(2):
                r.append(f'ds_read_b64_tr_b16 {vr(W+4*j+2*hf,2)}, v{vWa} offset:{432*(32*ks+hf)+32*j}')
        return r
    def mfmas(st):
        X, W = SET[st]
        out = []
        for j in range(nT):
            for t in range(4):
                a = vr(ACCB+16*j+4*t, 4)
                if types[j] == 'kq': out.append(f'v_mfma_f32_16x16x32_bf16 {a}, {vr(W+4*j,4)}, {vr(X+4*t,4)}, {a}')
                else: out.append(f'v_mfma_f32_16x16x32_bf16 {a}, {vr(X+4*t,4)}, {vr(W+4*j,4)}, {a}')
        return out
    L = f'{k}_{var}'
    p('s_mov_b32 s68, s12')
    p('s_mov_b32 s69, s13')
    p('s_mov_b32 s76, 0')
    p('s_mov_b32 s77, 0')
    for c in range(3):
        for x in b1_dma(nW, 0, 76, 77): p(x)
        p('s_add_u32 s76, s76, 128')
        p('s_add_u32 s77, s77, 221184')
        if c < 2:
            p(f's_add_u32 s68, s68, {STG}')
            p(f's_add_u32 s69, s69, {STG}')
    b1_consts(p)
    if with_wo: wo_dma_addr(p)
    p(f'v_mov_b32 v{vXa1}, v{vXb1}')
    p(f'v_mov_b32 v{vWa}, v{vWb}')
    p(f's_waitcnt vmcnt({2*nD})')
    p('s_barrier')
    stamp(p, 1, f'b1a_{L}')
    for x in reads(0, 0, vXb0): p(x)
    p('s_mov_b32 s78, 0')
    p('s_mov_b32 s79, 0')
    p.label(f'L_b1loop_{L}')
    p('s_waitcnt lgkmcnt(0)')
    for x in interleave(mfmas(0), reads(1, 1, vXa1), lead=1): p(x)
    p(f's_add_u32 s80, s79, {STG}')
    p(f's_cmp_eq_u32 s80, {3*STG}')
    p('s_cselect_b32 s80, 0, s80')
    p('s_add_u32 s68, s12, s79')
    p('s_add_u32 s69, s13, s79')
    p(f'v_add_u32 v{vXa0}, s80, v{vXb0}')
    p(f'v_add_u32 v{vXa1}, s80, v{vXb1}')
    p('s_cmp_eq_u32 s78, 8')
    p('s_waitcnt lgkmcnt(0)')
    p(f'v_add_u32 v{vWa}, s80, v{vWb}')
    p(f's_cbranch_scc1 L_b1tail_{L}')
    p('s_mov_b32 s79, s80')
    p('s_cmp_ge_u32 s78, 6')
    p(f's_cbranch_scc1 L_b1nodma_{L}')
    p(f's_waitcnt vmcnt({nD})')
    p('s_barrier')
    sec = interleave(reads(0, 0, vXa0), b1_dma(nW, 0, 76, 77))
    for x in interleave(mfmas(1), sec, lead=1): p(x)
    p('s_add_u32 s76, s76, 128')
    p('s_add_u32 s77, s77, 221184')
    p('s_add_u32 s78, s78, 1')
    p(f's_branch L_b1loop_{L}')
    p.label(f'L_b1nodma_{L}')
    p('s_cmp_eq_u32 s78, 6')
    p(f's_cbranch_scc1 L_b1nd2_{L}')
    p('s_waitcnt vmcnt(0)')
    p.label(f'L_b1nd2_{L}')
    p(f's_waitcnt vmcnt({nD})')
    p('s_barrier')
    for x in interleave(mfmas(1), reads(0, 0, vXa0), lead=1): p(x)
    p('s_add_u32 s78, s78, 1')
    p(f's_branch L_b1loop_{L}')
    p.label(f'L_b1tail_{L}')
    p('s_barrier')
    sec = wo_dma_items() if with_wo else []
    for x in interleave(mfmas(1), sec, lead=1): p(x)
    stamp(p, 2, f'b1b_{L}')
    Z = SET[0][0]
    p(f'v_mov_b32 v{Z}, 0')
    p(f'v_mov_b32 v{Z+1}, 0')
    p(f'v_mul_u32_u24 v{Z+2}, 48, v0')
    p(f'ds_write_b32 v{Z+2}, v{Z} offset:36')
    p(f'ds_write_b64 v{Z+2}, {vr(Z,2)} offset:40')
    p(f'ds_write_b32 v{Z+2}, v{Z} offset:{512*48+36}')
    p(f'ds_write_b64 v{Z+2}, {vr(Z,2)} offset:{512*48+40}')
    p(f'v_lshrrev_b32 v{Z+3}, 5, v1')
    p(f'v_mul_u32_u24 v{Z+3}, {VP}, v{Z+3}')
    p(f'v_and_b32 v{Z+4}, 31, v1')
    p(f'v_lshl_add_u32 v{Z+3}, v{Z+4}, 2, v{Z+3}')
    p(f'v_mov_b32 v{Z+4}, 0x3f803f80')
    p(f'ds_write_b32 v{Z+3}, v{Z+4} offset:{VTB+72*144}')
    T = Z + 8
    u = 0
    for j in range(nT):
        if var == 2 and j == 2:
            p('s_mov_b32 exec_lo, 0x00ff00ff')
            p('s_mov_b32 exec_hi, 0x00ff00ff')
        for t in range(4):
            a = ACCB + 16*j + 4*t
            d = T + 2*(u % 8); u += 1
            p(f'v_cvt_pk_bf16_f32 v{d}, v{a}, v{a+1}')
            p(f'v_cvt_pk_bf16_f32 v{d+1}, v{a+2}, v{a+3}')
            if types[j] == 'kq':
                p(f'ds_write_b32 v{vKQ+2*j}, v{d} offset:{768*t}')
                p(f'ds_write_b32 v{vKQ+2*j+1}, v{d+1} offset:{768*t}')
            else:
                p(f'ds_write_b64 v{vVT}, {vr(d,2)} offset:{2304*j+32*t}')
    p('s_mov_b64 exec, -1')
    p(f's_branch L_attn_{k}')

def attention(p, k, sc):
    KF, QF, V0, V1 = 64, 80, 96, 106
    S1, S0 = 116, 132
    t_ = vTmp
    p.label(f'L_attn_{k}')
    for i in range(32): p(f'v_mov_b32 v{KF+i}, 0')
    for i in range(2):
        p(f'v_mov_b32 v{V0+i}, 0')
        p(f'v_mov_b32 v{V1+i}, 0')
    c, g = 36, 37
    p(f'v_and_b32 v{c}, 15, v1')
    p(f'v_lshrrev_b32 v{g}, 4, v1')
    p('s_mul_i32 s9, s15, 6144')
    p('s_mul_i32 s10, s14, 3072')
    p('s_add_u32 s9, s9, s10')
    p(f'v_mul_u32_u24 v38, 48, v{c}')
    p(f'v_lshl_add_u32 v38, v{g}, 4, v38')
    p('v_add_u32 v38, s9, v38')
    p(f's_mul_i32 s9, s14, {VP}')
    p('s_mul_i32 s10, s15, 2592')
    p(f's_add_u32 s9, s9, {VTB}')
    p('s_add_u32 s10, s10, s9')
    p(f'v_mul_u32_u24 v39, 144, v{c}')
    p(f'v_lshl_add_u32 v39, v{g}, 3, v39')
    p('v_add_u32 v39, s10, v39')
    p(f'v_add_u32 v40, {16*144}, v39')
    p(f's_add_u32 s9, s9, {72*144}')
    p(f'v_lshl_add_u32 v41, v{g}, 3, s9')
    p(f'v_cmp_gt_u32 vcc, 2, v{c}')
    p('v_cndmask_b32 v40, v41, v40, vcc')
    p('s_mul_i32 s9, s14, 9216')
    p('s_mul_i32 s10, s15, 36')
    p('s_add_u32 s9, s9, s10')
    p(f's_add_u32 s9, s9, {OB}')
    p(f'v_mul_u32_u24 v41, 144, v{c}')
    p(f'v_lshl_add_u32 v41, v{g}, 3, v41')
    p('v_add_u32 v41, s9, v41')
    p('s_mov_b32 s81, 0x3eae1a93')
    p('s_waitcnt lgkmcnt(0)')
    p('s_barrier')
    p('s_mov_b32 exec_hi, 0xffff')
    for t in range(4):
        p(f'ds_read_b128 {vr(KF+4*t,4)}, v38 offset:{768*t}')
        p(f'ds_read_b128 {vr(QF+4*t,4)}, v38 offset:{24576+768*t}')
    p('s_mov_b32 exec_hi, -1')
    for t in range(4):
        p(f'ds_read_b64 {vr(V0+2+2*t,2)}, v39 offset:{32*t}')
        p(f'ds_read_b64 {vr(V1+2+2*t,2)}, v40 offset:{32*t}')
    for t in range(4):
        p(f's_waitcnt lgkmcnt({14-2*t})')
        p(f'v_mfma_f32_16x16x32_bf16 {vr(S1+4*t,4)}, {vr(KF+4*t,4)}, {vr(QF+4*t,4)}, 0')
        if t: p(f'v_mfma_f32_16x16x32_bf16 {vr(S0+4*t,4)}, {vr(KF+4*t-4,4)}, {vr(QF+4*t,4)}, 0')
    M, M2, PF = 148, 152, 156
    for t in range(4):
        for rr in range(4):
            if t: p(f'v_cndmask_b32 v{S1+4*t+rr}, v{S1+4*t+rr}, v{S0+4*t+rr}, s[72:73]')
        for rr in range(4):
            p(f'v_fma_f32 v{S1+4*t+rr}, v{S1+4*t+rr}, s81, v{(vBias if t else vBias0)+rr}')
        p(f'v_max3_f32 v{M+t}, v{S1+4*t}, v{S1+4*t+1}, v{S1+4*t+2}')
        p(f'v_max_f32 v{M+t}, v{M+t}, v{S1+4*t+3}')
        p(f'v_mov_b32 v{M2+t}, v{M+t}')
    for t in range(4): p(f'v_permlane32_swap_b32 v{M+t}, v{M2+t}')
    for t in range(4): p(f'v_max_f32 v{M+t}, v{M+t}, v{M2+t}')
    for t in range(4): p(f'v_mov_b32 v{M2+t}, v{M+t}')
    for t in range(4): p(f'v_permlane16_swap_b32 v{M+t}, v{M2+t}')
    for t in range(4): p(f'v_max_f32 v{M+t}, v{M+t}, v{M2+t}')
    for t in range(4):
        for rr in range(4): p(f'v_sub_f32 v{S1+4*t+rr}, v{S1+4*t+rr}, v{M+t}')
    for t in range(4):
        for rr in range(4): p(f'v_exp_f32 v{S1+4*t+rr}, v{S1+4*t+rr}')
    p('s_waitcnt lgkmcnt(0)')
    O0, O1 = 64, 80
    for t in range(4):
        p(f'v_cvt_pk_bf16_f32 v{S0+2*(t&1)}, v{S1+4*t}, v{S1+4*t+1}')
        p(f'v_cvt_pk_bf16_f32 v{S0+2*(t&1)+1}, v{S1+4*t+2}, v{S1+4*t+3}')
        for i in range(2):
            p(f'v_cndmask_b32 v{PF+4*t+i}, 0, v{S0+2*(t&1)+i}, s[72:73]')
            p(f'v_cndmask_b32 v{PF+4*t+2+i}, v{S0+2*(t&1)+i}, 0, s[72:73]')
    for t in range(4):
        p(f'v_mfma_f32_16x16x32_bf16 {vr(O1+4*t,4)}, {vr(V1+2*t,4)}, {vr(PF+4*t,4)}, 0')
        p(f'v_mfma_f32_16x16x32_bf16 {vr(O0+4*t,4)}, {vr(V0+2*t,4)}, {vr(PF+4*t,4)}, 0')
    srd(p, 52, P_WS, SZ_A, WS_O)
    for t in range(4): p(f'v_rcp_f32 v{M+t}, v{O1+4*t+2}')
    for t in range(4):
        for rr in range(4): p(f'v_mul_f32 v{O0+4*t+rr}, v{O0+4*t+rr}, v{M+t}')
        for rr in range(2): p(f'v_mul_f32 v{O1+4*t+rr}, v{O1+4*t+rr}, v{M+t}')
        p(f'v_cvt_pk_bf16_f32 v{PF+4*t}, v{O0+4*t}, v{O0+4*t+1}')
        p(f'v_cvt_pk_bf16_f32 v{PF+4*t+1}, v{O0+4*t+2}, v{O0+4*t+3}')
        p(f'v_cvt_pk_bf16_f32 v{PF+4*t+2}, v{O1+4*t}, v{O1+4*t+1}')
    for t in range(4):
        p(f'ds_write_b32 v41, v{PF+4*t} offset:{2304*t}')
        p(f'ds_write_b32 v41, v{PF+4*t+1} offset:{2304*t+4}')
    p('s_mov_b64 exec, 0xffff')
    for t in range(4):
        p(f'ds_write_b32 v41, v{PF+4*t+2} offset:{2304*t+32}')
    p('s_mov_b64 exec, -1')
    p('s_mul_i32 s9, s7, 9')
    p('s_add_u32 s9, s9, s15')
    p('s_lshl_b32 s9, s9, 8')
    p('s_add_u32 s10, s9, 1024')
    p('s_add_u32 s11, s9, 2048')
    p('s_waitcnt lgkmcnt(0)')
    p('s_barrier')
    G = 64
    for r in range(3):
        p(f'ds_read_b128 {vr(G+4*r,4)}, v{vOg} offset:{64*r}')
    p('s_waitcnt lgkmcnt(2)')
    p(f'buffer_store_dwordx4 {vr(G,4)}, v{vOst}, s[52:55], s9 offen{sc}')
    p('s_waitcnt lgkmcnt(1)')
    p(f'buffer_store_dwordx4 {vr(G+4,4)}, v{vOst}, s[52:55], s10 offen{sc}')
    p(f's_cmp_ge_u32 s{sW}, 2')
    p(f's_cbranch_scc1 L_ost_{k}')
    p('s_waitcnt lgkmcnt(0)')
    p(f'buffer_store_dwordx4 {vr(G+8,4)}, v{vOst}, s[52:55], s11 offen{sc}')
    p.label(f'L_ost_{k}')

def b2_addr(p):
    t = 50
    p(f'v_lshrrev_b32 v{t}, 4, v1')
    p(f'v_bfe_u32 v{t+1}, v1, 2, 2')
    p(f'v_lshl_add_u32 v{t+2}, v{t}, 3, v{t+1}')
    p(f'v_lshlrev_b32 v{t+2}, 7, v{t+2}')
    p(f'v_and_b32 v{t+3}, 3, v1')
    p(f'v_lshl_add_u32 v{t+2}, v{t+3}, 3, v{t+2}')
    p(f'v_and_b32 v{t+3}, 1, v{t}')
    p(f'v_lshlrev_b32 v{t+3}, 1, v{t+3}')
    p(f'v_lshrrev_b32 v{t+1}, 1, v{t+1}')
    p(f'v_or_b32 v{t+3}, v{t+3}, v{t+1}')
    p(f'v_lshl_add_u32 v{t+2}, v{t+3}, 5, v{t+2}')
    p(f's_lshr_b32 s82, s{sW}, 2')
    p(f's_mul_i32 s9, s82, {9*4096}')
    p(f's_add_u32 s9, s9, {WOB}')
    p(f'v_add_u32 v42, s9, v{t+2}')
    for m in range(1, 4): p(f'v_xor_b32 v{42+m}, {32*m}, v42')
    p('v_lshlrev_b32 v46, 4, v1')
    p('v_add_u32 v47, 4096, v46')
    p('v_add_u32 v48, 8192, v46')
    p(f's_and_b32 s9, s{sW}, 3')
    p('s_lshl_b32 s9, s9, 1')
    p('s_lshl_b32 s10, s66, 3')
    p('s_add_u32 s9, s9, s10')
    p('s_add_u32 s85, s9, s82')
    p('s_xor_b32 s10, s85, 1')
    p('s_mul_i32 s83, s85, 18432')
    p('s_mul_i32 s84, s10, 18432')
    p('s_mul_i32 s9, s82, 9216')
    p('s_add_u32 s83, s83, s9')
    p('s_add_u32 s84, s84, s9')
    p(f'v_and_b32 v{t+1}, 15, v1')
    p('s_lshl_b32 s9, s85, 4')
    p(f'v_add_u32 v{t+1}, s9, v{t+1}')
    p(f'v_mul_u32_u24 v{t+1}, 2304, v{t+1}')
    p(f'v_and_b32 v{t+2}, 1, v{t}')
    p(f'v_lshl_add_u32 v{t+1}, v{t+2}, 5, v{t+1}')
    p(f'v_lshrrev_b32 v{t+2}, 1, v{t}')
    p(f'v_lshl_add_u32 v{t+1}, v{t+2}, 4, v{t+1}')
    p('s_lshl_b32 s9, s67, 7')
    p('s_add_u32 s9, s9, 1152')
    p(f'v_add_u32 v49, s9, v{t+1}')
    p(f's_lshl_b32 s9, s{sW}, 12')
    p('v_add_u32 v54, s9, v46')
    p('v_xor_b32 v55, 0x4000, v54')
    srd(p, 56, P_OUT, SZ_OUT)

def b2_main(p, k, sc):
    OF, WF, AC = 64, [136, 152], 168
    for ks in range(9):
        for nt in range(2):
            p(f'buffer_load_dwordx4 {vr(OF+8*ks+4*nt,4)}, v{46+ks//4}, s[52:55], s{83+nt} offen offset:{1024*(ks%4)}{sc}')
    def wreads(st, ks):
        r = []
        for m in range(4):
            for hf in range(2):
                r.append(f'ds_read_b64_tr_b16 {vr(WF[st]+4*m+2*hf,2)}, v{42+m} offset:{4096*ks+512*hf}')
        return r
    for x in wreads(0, 0): p(x)
    for ks in range(9):
        st = ks & 1
        p(f's_waitcnt vmcnt({16-2*ks}) lgkmcnt(0)')
        mf = []
        for m in range(4):
            for nt in range(2):
                a = vr(AC+8*m+4*nt, 4)
                mf.append(f'v_mfma_f32_16x16x32_bf16 {a}, {vr(WF[st]+4*m,4)}, {vr(OF+8*ks+4*nt,4)}, {a if ks else 0}')
        for x in interleave(mf, wreads(1-st, ks+1) if ks < 8 else [], lead=1): p(x)
    for m in range(4):
        p(f'ds_write_b128 v54, {vr(AC+8*m+4,4)} offset:{1024*m}')
    p('s_waitcnt lgkmcnt(0)')
    p('s_barrier')
    R = 64
    for m in range(4):
        p(f'ds_read_b128 {vr(R+4*m,4)}, v55 offset:{1024*m}')
    D = 80
    for m in range(4):
        p(f's_waitcnt lgkmcnt({3-m})')
        for rr in range(4): p(f'v_add_f32 v{R+4*m+rr}, v{R+4*m+rr}, v{AC+8*m+rr}')
        p(f'v_cvt_pk_bf16_f32 v{D+2*m}, v{R+4*m}, v{R+4*m+1}')
        p(f'v_cvt_pk_bf16_f32 v{D+2*m+1}, v{R+4*m+2}, v{R+4*m+3}')
    for mp in range(2):
        p(f'v_permlane16_swap_b32 v{D+4*mp}, v{D+4*mp+2}')
        p(f'v_permlane16_swap_b32 v{D+4*mp+1}, v{D+4*mp+3}')
    for mp in range(2):
        p(f'buffer_store_dwordx4 {vr(D+4*mp,4)}, v49, s[56:59], 0 offen offset:{64*mp}')

def b1_all(p, k, with_wo, sc):
    b1_dma_addr(p)
    p('s_waitcnt lgkmcnt(0)')
    prof_srd(p)
    stamp(p, 0, f'b0_{k}')
    srd(p, 40, P_X, SZ_A)
    srd(p, 44, P_W, SZ_W)
    p(f's_cmp_ge_u32 s{sW}, 6')
    p(f's_cbranch_scc1 L_var2_{k}')
    p(f's_cmp_ge_u32 s{sW}, 4')
    p(f's_cbranch_scc1 L_var1_{k}')
    b1_variant(p, k, 0, with_wo)
    p.label(f'L_var1_{k}')
    b1_variant(p, k, 1, with_wo)
    p.label(f'L_var2_{k}')
    b1_variant(p, k, 2, with_wo)
    attention(p, k, sc)

def kernel_two_1(p):
    k = 'k1'
    prologue(p, k)
    b_decode(p)
    b1_all(p, k, False, '')
    stamp(p, 3, 'k1b')
    p('s_endpgm')
    p.label(f'L_roleA_{k}')
    a_decode(p)
    a1_addr(p)
    p('s_waitcnt lgkmcnt(0)')
    prof_srd(p)
    stamp(p, 0, 'k1a0')
    a1_loads(p)
    a1_compute(p, 0, '')
    stamp(p, 3, 'k1a')
    p.label(f'L_end_{k}')
    p('s_endpgm')

def kernel_two_2(p):
    k = 'k2'
    prologue(p, k)
    b_decode(p)
    p('s_waitcnt lgkmcnt(0)')
    prof_srd(p)
    stamp(p, 4, 'k2b0')
    wo_dma_addr(p)
    for x in wo_dma_items(): p(x)
    b2_addr(p)
    srd(p, 52, P_WS, SZ_A, WS_O)
    p('s_waitcnt vmcnt(0)')
    p('s_barrier')
    b2_main(p, k, '')
    stamp(p, 7, 'k2b')
    p('s_endpgm')
    p.label(f'L_roleA_{k}')
    a_decode(p)
    p('s_waitcnt lgkmcnt(0)')
    prof_srd(p)
    stamp(p, 4, 'k2a0')
    a2_hloads(p)
    a2_hstage(p, 0)
    a2_main(p, k, '', True)
    stamp(p, 7, 'k2a')
    p.label(f'L_end_{k}')
    p('s_endpgm')

HEAD = open(os.path.join(os.path.dirname(os.path.abspath(__file__)), 'head.txt')).read()

def emit_kernel(name, fn):
    p = Prog()
    fn(p)
    lines, n = fix_hazards(p.lines, verbose=bool(os.environ.get('HZ')))
    sys.stderr.write(f'{name}: {len(lines)} lines, {n} nops inserted\n')
    body = '\n'.join(('' if l.endswith(':') else '    ') + l for l in lines)
    return f'''.text
.globl {name}
.p2align 8
.type {name},@function
{name}:
{body}
.section .rodata,"a"
.p2align 6
.amdhsa_kernel {name}
  .amdhsa_next_free_vgpr 256
  .amdhsa_next_free_sgpr 102
  .amdhsa_accum_offset 256
  .amdhsa_group_segment_fixed_size 0
  .amdhsa_kernarg_size 96
  .amdhsa_user_sgpr_count 2
  .amdhsa_user_sgpr_kernarg_segment_ptr 1
  .amdhsa_system_sgpr_workgroup_id_x 1
.end_amdhsa_kernel
'''

def main():
    out = HEAD
    if MODE == 'two':
        out += f'; @launch kernel=stage1_kernel grid=({NWG},1,1) block=(512,1,1) lds={LDS_BYTES}\n'
        out += f'; @launch kernel=stage2_kernel grid=({NWG},1,1) block=(512,1,1) lds={LDS_BYTES}\n'
        out += '.amdgcn_target "amdgcn-amd-amdhsa--gfx950"\n'
        out += emit_kernel('stage1_kernel', kernel_two_1)
        out += emit_kernel('stage2_kernel', kernel_two_2)
    sys.stdout.write(out)

if __name__ == '__main__':
    main()
```

```python
import sys, os
sys.path.insert(0, os.path.dirname(os.path.abspath(__file__)))
from asmlib import Prog, fix_hazards

NAME = 'concat_heads__ssm_conv_h3__sliding_local_dilated__prompt'
MODE = os.environ.get('MODE', 'two')
PROF = int(os.environ.get('PROF', '0'))

FR = float(os.environ.get('FR', '0.7'))
FR2 = float(os.environ.get('FR2', '0.9'))
B2LEAD = int(os.environ.get('B2LEAD', '4'))
NT = os.environ.get('NT', 'a')
nt = lambda c: ' nt' if c in NT else ''
PFB = int(os.environ.get('PFB', '4'))
PWA = int(os.environ.get('PWA', '1'))
SZ_A = 2359296
SZ_W = 1990656
SZ_WO = 663552
SZ_OUT = 4718592
WS_XR = 0
WS_O = 0x240000
WS_FLAG = 0x480000
FLS = int(os.environ.get('FLS', '128'))
SLEEP = int(os.environ.get('SLEEP', '1'))
WS_PROF = 16 << 20
OOB = 0x80000000
NB, NA = 144, 72
NWG = NB + NA
LDS_BYTES = 163840

sW = 3
P_Q, P_K, P_V, P_SH, P_H, P_D, P_X, P_W, P_WO, P_OUT, P_DBG, P_WS = [16 + 2 * i for i in range(12)]

def srd(p, dst, ptr, size, off=0):
    if off:
        p(f's_add_u32 s{dst}, s{ptr}, {off}')
        p(f's_addc_u32 s{dst+1}, s{ptr+1}, 0')
        p(f's_and_b32 s{dst+1}, s{dst+1}, 0xffff')
    else:
        p(f's_mov_b32 s{dst}, s{ptr}')
        p(f's_and_b32 s{dst+1}, s{ptr+1}, 0xffff')
    p(f's_mov_b32 s{dst+2}, {size}')
    p(f's_mov_b32 s{dst+3}, 0x20000')

def vr(a, n):
    return f'v[{a}:{a+n-1}]' if n > 1 else f'v{a}'

def interleave(prim, sec, lead=0, frac=1.0):
    out = list(prim[:lead]); prim = prim[lead:]
    n, m = max(1, int(len(prim) * frac)), len(sec)
    j = 0
    for i, x in enumerate(prim):
        while j < m and j * n <= i * m:
            out.append(sec[j]); j += 1
        out.append(x)
    out += sec[j:]
    return out

def glue_scc(lines):
    out = []; i = 0
    while i < len(lines):
        if lines[i].startswith('s_cmp'):
            assert lines[i+1].startswith('s_cselect') or lines[i+1].startswith('s_cbranch'), lines[i:i+2]
            out.append(lines[i] + '\n' + lines[i+1]); i += 2
        else:
            assert not lines[i].startswith(('s_cselect', 's_addc', 's_subb')), lines[i]
            out.append(lines[i]); i += 1
    return out

def stamp(p, idx, uid=None):
    if not PROF: return
    p('s_memtime s[96:97]')
    p('s_waitcnt lgkmcnt(0)')
    p(f'v_writelane_b32 v253, s96, {idx}')

def stamp_begin(p):
    if not PROF: return
    p('v_mov_b32 v253, 0')
    p('s_memrealtime s[96:97]')
    p('s_waitcnt lgkmcnt(0)')
    p('v_writelane_b32 v253, s96, 62')
    stamp(p, 0)

def stamp_end(p, idx, dbg=None):
    if not PROF: return
    stamp(p, idx)
    p('s_memrealtime s[96:97]')
    p('s_waitcnt lgkmcnt(0)')
    p('v_writelane_b32 v253, s96, 63')
    if PROF == 3:
        if dbg:
            wg, base, lst = dbg
            uid = f'dbg{wg}'
            p(f's_cmp_lg_u32 s2, {wg}')
            p(f's_cbranch_scc1 L_{uid}')
            p(f's_cmp_lg_u32 s{sW}, 4')
            p(f's_cbranch_scc1 L_{uid}')
            p('v_readlane_b32 s98, v253, 0')
            p('v_readlane_b32 s99, v253, 62')
            p('v_mov_b32 v252, 0')
            for i, st in enumerate(lst):
                p(f'v_readlane_b32 s97, v253, {st}')
                p('s_nop 3')
                p(f's_sub_u32 s97, s97, {"s99" if st == 63 else "s98"}')
                p(f'v_writelane_b32 v252, s97, {i}')
            srd(p, 92, P_DBG, 256)
            p('v_lshlrev_b32 v254, 2, v1')
            p(f's_mov_b64 exec, {(1 << len(lst)) - 1}')
            p(f'buffer_store_dword v252, v254, s[92:95], 0 offen offset:{4*base}')
            p.label(f'L_{uid}')
        return
    p('s_lshl_b32 s98, s2, 3')
    p(f's_add_u32 s98, s98, s{sW}')
    p('s_lshl_b32 s98, s98, 8')
    p('v_lshl_add_u32 v254, v1, 2, s98')
    p('buffer_store_dword v253, v254, s[92:95], 0 offen')

def prologue(p, k):
    p(f's_cmp_ge_u32 s2, {NWG}')
    p(f's_cbranch_scc1 L_end_{k}')
    p('s_load_dwordx16 s[16:31], s[0:1], 0')
    p('s_load_dwordx8 s[32:39], s[0:1], 64')
    p('v_lshrrev_b32 v2, 6, v0')
    p('v_and_b32 v1, 63, v0')
    p(f'v_readfirstlane_b32 s{sW}, v2')
    p('s_and_b32 s4, s2, 7')
    p('s_lshr_b32 s5, s2, 3')
    p('s_cmp_ge_u32 s5, 18')
    p(f's_cbranch_scc1 L_roleA_{k}')

def prof_srd(p):
    if PROF:
        srd(p, 92, P_WS, 1 << 20, WS_PROF)

HS = 8384
H1 = 4164
XB = 8 * HS
XS_ = 4576
KB = XB
BS = 1088
VB = KB + 33 * BS
assert VB + 32 * BS <= LDS_BYTES

def a_decode(p):
    p('s_mul_i32 s6, s4, 9')
    p('s_add_u32 s6, s6, s5')
    p('s_sub_u32 s6, s6, 18')

def a1_addr(p):
    p('s_lshr_b32 s7, s6, 3')
    p('s_and_b32 s8, s6, 7')
    p('v_and_b32 v7, 7, v1')
    p('v_lshrrev_b32 v8, 3, v1')
    p('v_mul_u32_u24 v2, 1152, v8')
    p('v_lshl_add_u32 v2, v7, 4, v2')
    p('s_lshl_b32 s9, s7, 7')
    p('v_add_u32 v2, s9, v2')
    p(f's_mul_i32 s10, s8, {256*1152}')
    p(f's_mul_i32 s11, s{sW}, {8*1152}')
    p('s_add_u32 s11, s11, s10')
    p(f's_mul_i32 s12, s{sW}, {BS}')
    p(f's_add_u32 s12, s12, {KB+BS}')
    p(f's_sub_u32 s13, s10, {8*1152}')
    p('s_cmp_eq_u32 s8, 0')
    p(f's_cselect_b32 s13, {OOB}, s13')

def a1_loads(p, k):
    srd(p, 40, P_K, SZ_A)
    srd(p, 44, P_V, SZ_A)
    for n in range(4):
        p(f's_add_u32 m0, s12, {8*BS*n}')
        p(f's_add_u32 s14, s11, {64*1152*n}')
        p(f'buffer_load_dwordx4 v2, s[40:43], s14 offen{nt("a")} lds')
        p(f's_add_u32 m0, s12, {8*BS*n+VB-KB-BS}')
        p('s_nop 0')
        p(f'buffer_load_dwordx4 v2, s[44:47], s14 offen{nt("a")} lds')
    p(f's_cmp_lg_u32 s{sW}, 7')
    p(f's_cbranch_scc1 L_nohalo_{k}')
    p(f's_mov_b32 m0, {KB}')
    p('s_nop 0')
    p('buffer_load_dwordx4 v2, s[40:43], s13 offen lds')
    p.label(f'L_nohalo_{k}')
    p('s_lshl_b32 s8, s8, 8')
    p(f's_lshr_b32 s9, s{sW}, 1')
    p(f's_mul_i32 s10, s9, {8*BS}')
    p('s_lshl_b32 s9, s9, 6')
    p('s_add_u32 s8, s8, s9')
    p('s_lshl_b32 s7, s7, 6')
    p(f's_and_b32 s9, s{sW}, 1')
    p('s_lshl_b32 s11, s9, 6')
    p('s_add_u32 s10, s10, s11')
    p(f's_add_u32 s10, s10, {KB}')
    p('s_lshl_b32 s9, s9, 5')
    p('s_add_u32 s7, s7, s9')
    p(f'v_mul_u32_u24 v3, {BS}, v8')
    p('v_lshl_add_u32 v3, v7, 3, v3')
    p('v_add_u32 v3, s10, v3')
    p('v_lshlrev_b32 v9, 3, v8')
    p('v_add_u32 v9, s8, v9')
    p('v_lshlrev_b32 v7, 2, v7')
    p('v_add_u32 v7, s7, v7')
    p('v_lshlrev_b32 v5, 3, v7')
    srd(p, 48, P_SH, 4608)
    p('buffer_load_dwordx4 v[48:51], v5, s[48:51], 0 offen')
    p('buffer_load_dwordx4 v[52:55], v5, s[48:51], 0 offen offset:16')
    p('v_lshlrev_b32 v6, 12, v7')
    p('v_sub_u32 v8, 2040, v9')
    p('v_lshl_add_u32 v6, v8, 1, v6')

def nonce_load(p):
    srd(p, 48, P_DBG, 256)
    p('v_mov_b32 v241, 0')
    p('buffer_load_dwordx2 v[242:243], v241, s[48:51], 0 offen sc1')

def a1_compute(p, sc):
    K, Vv, Sx, P, KS, OUT = 10, 32, 48, 56, 96, 128
    srd(p, 52, P_WS, SZ_A, WS_XR)
    p('s_mov_b32 s10, 0x05040100')
    p('s_mov_b32 s11, 0x07060302')
    p('s_movk_i32 s12, 0x1000')
    p('s_movk_i32 s13, 0x2000')
    p('s_movk_i32 s14, 0x3000')
    a2_addr(p)
    p('s_waitcnt vmcnt(0)')
    p('s_barrier')
    stamp(p, 1)
    for i in range(11):
        p(f'ds_read_b64 {vr(K+2*i,2)}, v3 offset:{(5+i)*128 if i < 3 else BS+128*(i-3)}')
    for j in range(4):
        p(f'ds_read_b64 {vr(Vv+2*j,2)}, v3 offset:{VB-KB+128*j}')
    p('s_add_u32 m0, s63, 32')
    p('s_mov_b64 exec, 15')
    p('ds_write_b64 v227, v[228:229]')
    p(f'ds_write_b64 v227, v[228:229] offset:{H1-4}')
    p('s_mov_b64 exec, -1')
    for i in range(4):
        p(f'buffer_load_dwordx4 v223, s[56:59], s60 offen offset:{1024*i}{nt("a")} lds')
    nonce_load(p)
    for i in range(1, 11):
        if i in (1, 4, 7): p(f's_waitcnt lgkmcnt({max(0, 17-1-(i+2 if i < 7 else 10))})')
        for c in range(4):
            p(f'v_perm_b32 v{P+10*c+i-1}, v{K+2*(i-1)+(c>>1)}, v{K+2*i+(c>>1)}, s{10+(c&1)}')
    for j in range(4, 8):
        p(f'ds_read_b64 {vr(Vv+2*j,2)}, v3 offset:{VB-KB+128*j}')
    for j in range(8):
        for c in range(4):
            p(f'v_dot2_f32_bf16 v{KS+8*c+j}, v{P+10*c+j}, v{Sx+2*c+1}, 0')
    for j in range(8):
        for c in range(4):
            p(f'v_dot2_f32_bf16 v{KS+8*c+j}, v{P+10*c+j+2}, v{Sx+2*c}, v{KS+8*c+j}')
    p('s_waitcnt lgkmcnt(0)')
    for c in range(4):
        for j in range(8):
            if c & 1: p(f'v_and_b32 v{P+8*c+j}, 0xffff0000, v{Vv+2*j+(c>>1)}')
            else: p(f'v_lshlrev_b32 v{P+8*c+j}, 16, v{Vv+2*j+(c>>1)}')
        for j in range(0, 8, 2):
            p(f'v_pk_mul_f32 {vr(KS+8*c+j,2)}, {vr(KS+8*c+j,2)}, {vr(P+8*c+j,2)}')
        for q in range(4):
            p(f'v_cvt_pk_bf16_f32 v{OUT+4*c+q}, v{KS+8*c+7-2*q}, v{KS+8*c+6-2*q}')
        so = '0' if c == 0 else f's{11+c}'
        p(f'buffer_store_dwordx4 {vr(OUT+4*c,4)}, v6, s[52:55], {so} offen{sc}')

HD, HP, HT = 144, 160, 164
QR, XS = 180, 196
vHa, vXa, vEa, vZw, vZr, vQo, vOo, vLb, vXw = 212, 216, 217, 218, 219, 220, 221, 222, 226

def a2_addr(p):
    srd(p, 56, P_H, SZ_A)
    p('s_lshl_b32 s15, s6, 3')
    p(f's_add_u32 s15, s15, s{sW}')
    p('s_lshl_b32 s60, s15, 12')
    p('v_lshlrev_b32 v223, 4, v1')
    p('v_add_u32 v224, s60, v223')
    p('s_lshr_b32 s61, s15, 1')
    p('s_lshl_b32 s61, s61, 2')
    p(f's_load_dword s62, s[{P_D}:{P_D+1}], s61')
    p(f's_mul_i32 s63, s{sW}, {HS}')
    p(f's_mul_i32 s67, s{sW}, {XS_}')
    p(f's_add_u32 s67, s67, {XB}')
    p(f'v_add_u32 v{vLb}, s63, v223')
    p(f'v_add_u32 v{vXw}, s67, v223')
    p('v_lshlrev_b32 v227, 3, v1')
    p('v_add_u32 v225, s67, v227')
    p('v_add_u32 v227, s63, v227')
    p('v_and_b32 v228, 15, v1')
    p('v_lshrrev_b32 v229, 4, v1')
    p('v_and_b32 v230, 1, v1')
    p('v_cmp_eq_u32 vcc, 1, v230')
    p(f'v_mov_b32 v231, {H1}')
    p('v_lshlrev_b32 v230, 5, v228')
    p('v_cndmask_b32 v231, v231, 2, vcc')
    p('v_lshl_add_u32 v231, v228, 1, v231')
    p('v_lshl_add_u32 v231, v229, 4, v231')
    p(f'v_add_u32 v{vHa}, s63, v231')
    for i in range(1, 4):
        p(f'v_add_u32 v{vHa+i}, {1024*i}, v{vHa}')
    p('v_sub_u32 v231, 480, v230')
    p('v_lshl_add_u32 v231, v229, 4, v231')
    p(f'v_add_u32 v{vXa}, s67, v231')
    p('v_sub_u32 v231, 504, v230')
    p('v_lshlrev_b32 v232, 3, v229')
    p('v_sub_u32 v231, v231, v232')
    p(f'v_add_u32 v{vEa}, s67, v231')
    p('v_add_u32 v231, v230, v232')
    p(f'v_add_u32 v{vZw}, s63, v231')
    p('v_bfe_u32 v231, v1, 2, 2')
    p(f'v_mul_u32_u24 v231, {HS}, v231')
    p('v_lshl_add_u32 v231, v229, 5, v231')
    p('v_and_b32 v232, 3, v1')
    p('v_lshl_add_u32 v231, v232, 3, v231')
    p(f's_lshl_b32 s64, s{sW}, 9')
    p(f'v_add_u32 v{vZr}, s64, v231')
    p(f's_lshl_b32 s64, s{sW}, 8')
    p('v_add_u32 v231, s64, v1')
    p('s_lshl_b32 s65, s6, 4')
    p(f'v_mul_u32_u24 v{vQo}, 1152, v231')
    p(f'v_add_u32 v{vQo}, s65, v{vQo}')
    p(f'v_mul_u32_u24 v{vOo}, 2304, v231')
    p(f'v_add_u32 v{vOo}, s65, v{vOo}')
    p('s_add_u32 s68, s6, 144')
    p('s_and_b32 s9, s68, 0xf8')
    p(f's_mul_i32 s68, s68, {FLS}')
    p(f's_mul_i32 s9, s9, {FLS}')
    p(f'v_mul_u32_u24 v233, {FLS}, v1')
    p('v_add_u32 v233, s9, v233')
    p('s_mov_b32 s66, 0xff')
    p('v_mov_b32 v228, 0')
    p('v_mov_b32 v229, 0')

def a2_hstage(p):
    p('s_waitcnt vmcnt(5)')
    for i in range(4):
        p(f'ds_read_b128 {vr(HD+4*i,4)}, v{vLb} offset:{32+1024*i}')
        p(f'ds_read_b32 v{HP+i}, v{vLb} offset:{28+1024*i}')
    for i in range(4):
        p(f's_waitcnt lgkmcnt({6-2*i if i < 3 else 0})' if i == 0 else f's_waitcnt lgkmcnt({6-2*i+i})')
        p(f'v_alignbit_b32 v{HT+4*i}, v{HD+4*i}, v{HP+i}, 16')
        for d in range(1, 4):
            p(f'v_alignbit_b32 v{HT+4*i+d}, v{HD+4*i+d}, v{HD+4*i+d-1}, 16')
        p(f'ds_write_b128 v{vLb}, {vr(HT+4*i,4)} offset:{H1+28+1024*i}')

def a2_qloads(p):
    srd(p, 40, P_Q, SZ_A)
    for j in range(4):
        p(f's_mov_b32 s65, {64*1152*j}')
        p(f'buffer_load_dwordx4 {vr(QR+4*j,4)}, v{vQo}, s[40:43], s65 offen')
    return 4

def a2_main(p, k, sc, qlater):
    srd(p, 52, P_WS, SZ_A, WS_XR)
    for i in range(4):
        p(f'buffer_load_dwordx4 {vr(XS+4*i,4)}, v224, s[52:55], 0 offen offset:{1024*i}{sc}')
    p('s_mov_b32 exec_hi, 0x0fffffff')
    p('ds_write_b64 v225, v[228:229] offset:4096')
    p('s_mov_b32 exec_hi, -1')
    FA = [10, 74]; FB = [42, 106]; ACC = 138
    def a_reads(st, b):
        r = []
        for a in range(8):
            o = 128 * (a & 1) + 16 * b
            r.append(f'ds_read2_b32 {vr(FA[st]+4*a,2)}, v{vHa+(a>>1)} offset0:{o} offset1:{o+1}')
            r.append(f'ds_read2_b32 {vr(FA[st]+4*a+2,2)}, v{vHa+(a>>1)} offset0:{o+2} offset1:{o+3}')
        return r
    def b_reads(st, b):
        return [f'ds_read_b128 {vr(FB[st]+4*e,4)}, v{vXa} offset:{64*(56-8*e+b)}' for e in range(8)]
    def reads(st, b):
        A, B = a_reads(st, b), b_reads(st, b)
        out = []
        for i in range(8):
            out += [B[i], A[2*i], A[2*i+1]]
        return out
    def mfmas(st):
        out = []
        for s_ in range(8):
            for a in range(8):
                for e in range(8):
                    if a + e <= 7 and max(a, e) == s_:
                        n = a + e
                        out.append(f'v_mfma_f32_16x16x32_bf16 {vr(ACC+4*n,4)}, {vr(FA[st]+4*a,4)}, {vr(FB[st]+4*e,4)}, {vr(ACC+4*n,4)}')
        return out
    for i in range(32):
        p(f'v_mov_b32 v{ACC+i}, 0')
    p('s_waitcnt lgkmcnt(0)')
    for x in a_reads(0, 0): p(x)
    for i in range(4):
        p(f's_waitcnt vmcnt({3-i})')
        p(f'ds_write_b128 v{vXw}, {vr(XS+4*i,4)} offset:{1024*i}')
    p('s_waitcnt lgkmcnt(0)')
    stamp(p, 13)
    for x in b_reads(0, 0): p(x)
    p('s_mov_b32 s64, 0')
    p.label(f'L_a2loop_{k}')
    p('s_waitcnt lgkmcnt(0)')
    for x in interleave(mfmas(0), reads(1, 1), lead=1, frac=FR): p(x)
    p('s_waitcnt lgkmcnt(0)')
    for x in interleave(mfmas(1), reads(0, 2), lead=1, frac=FR): p(x)
    p('s_cmp_lg_u32 s64, 0')
    p(f's_cbranch_scc1 L_a2nq_{k}')
    a2_qloads(p)
    p.label(f'L_a2nq_{k}')
    for i in range(4):
        p(f'v_add_u32 v{vHa+i}, 128, v{vHa+i}')
    p(f'v_add_u32 v{vXa}, 128, v{vXa}')
    p('s_add_u32 s64, s64, 1')
    p('s_cmp_lt_u32 s64, 4')
    p(f's_cbranch_scc1 L_a2loop_{k}')
    KV = 10
    p('s_waitcnt lgkmcnt(0)')
    stamp(p, 14)
    for n in range(8):
        p(f'ds_read_b64 {vr(KV+2*n,2)}, v{vEa} offset:{512*(7-n)}')
    p('s_and_b32 s61, s15, 1')
    p('s_lshl_b32 s61, s61, 4')
    p('s_lshr_b32 s62, s62, s61')
    p('s_lshl_b32 s62, s62, 16')
    T = 42
    for n in range(8):
        p(f's_waitcnt lgkmcnt({7-n})' if n < 8 else '')
        d0, d1 = KV + 2*n, KV + 2*n + 1
        t = T + 4*n
        p(f'v_and_b32 v{t}, 0xffff0000, v{d1}')
        p(f'v_lshlrev_b32 v{t+1}, 16, v{d1}')
        p(f'v_and_b32 v{t+2}, 0xffff0000, v{d0}')
        p(f'v_lshlrev_b32 v{t+3}, 16, v{d0}')
        for rr in range(4):
            p(f'v_fmac_f32 v{ACC+4*n+rr}, s62, v{t+rr}')
        p(f'v_cvt_pk_bf16_f32 v{t}, v{ACC+4*n}, v{ACC+4*n+1}')
        p(f'v_cvt_pk_bf16_f32 v{t+1}, v{ACC+4*n+2}, v{ACC+4*n+3}')
    for n in range(8):
        p(f'ds_write_b64 v{vZw}, {vr(T+4*n,2)} offset:{512*n}')
    srd(p, 44, P_OUT, SZ_OUT)
    p('s_waitcnt lgkmcnt(0)')
    stamp(p, 15)
    p('s_barrier')
    stamp(p, 16)
    Z = 74
    for j in range(4):
        p(f'ds_read_b64_tr_b16 {vr(Z+4*j,2)}, v{vZr} offset:{128*j}')
        p(f'ds_read_b64_tr_b16 {vr(Z+4*j+2,2)}, v{vZr} offset:{4*HS+128*j}')
    p('s_waitcnt vmcnt(0)')
    stamp(p, 17)
    U = 106
    for j in range(4):
        p(f's_waitcnt lgkmcnt({6-2*j})')
        for d in range(4):
            z, q = Z + 4*j + d, QR + 4*j + d
            p(f'v_lshlrev_b32 v{U}, 16, v{z}')
            p(f'v_lshlrev_b32 v{U+1}, 16, v{q}')
            p(f'v_and_b32 v{U+2}, 0xffff0000, v{z}')
            p(f'v_and_b32 v{U+3}, 0xffff0000, v{q}')
            p(f'v_mul_f32 v{U}, v{U}, v{U+1}')
            p(f'v_mul_f32 v{U+2}, v{U+2}, v{U+3}')
            p(f'v_cvt_pk_bf16_f32 v{z}, v{U}, v{U+2}')
            U = 106 + (U - 106 + 4) % 16
        p(f's_mov_b32 s64, {64*2304*j}')
        p(f'buffer_store_dwordx4 {vr(Z+4*j,4)}, v{vOo}, s[44:47], s64 offen')

WPS = 1056
WOFF = 16384
STG = WOFF + 32 * WPS
WOB = 0
KQS = 304
KQB = 73728
VTB = KQB + 128 * KQS
VP = 73 * 144
OB = VTB + 2 * VP
SCR = OB + 18432
RED = KQB
assert SCR + 1024 <= LDS_BYTES and 3 * STG <= SCR
ACCB = 64
SET = [(128, 144), (160, 176)]
vD = [2, 3, 4, 4, 4, 4]
vXb0, vXb1, vWb = 8, 9, 10
vXa0, vXa1, vWa = 11, 12, 13
vKQ, vVT, vWo = 14, 15, 16
vQm = 17
vBias, vBias0 = 24, 28
vOst, vOg = 23, 32
vTmp = 33
vKf, vV0, vV1, vOw = 5, 6, 7, 21
vOw4 = [21, 22, 56, 57]
sB = [84, 85, 86, 87, 88, 89]
sO = [74, 75, 76, 77, 78, 79]
sDst, sStage, sNext, sChunk = 80, 81, 82, 83
SRDx, SRDw = 40, 44

def b_decode(p):
    p('s_and_b32 s6, s4, 1')
    p('s_mul_i32 s6, s6, 9')
    p('s_lshr_b32 s8, s5, 1')
    p('s_add_u32 s6, s6, s8')
    p('s_and_b32 s7, s4, 6')
    p('s_and_b32 s8, s5, 1')
    p('s_add_u32 s7, s7, s8')
    p('s_mul_i32 s8, s6, 114')

def b1_dma_addr(p):
    t = vTmp
    p(f's_and_b32 s9, s{sW}, 3')
    p('s_lshl_b32 s9, s9, 5')
    p(f's_lshr_b32 s10, s{sW}, 2')
    p('s_add_u32 s9, s9, s10')
    p('s_add_u32 s9, s9, s8')
    p(f'v_lshrrev_b32 v{t}, 3, v1')
    p(f'v_lshl_add_u32 v{t+1}, v{t}, 1, s9')
    p(f'v_mul_u32_u24 v{t+1}, 1152, v{t+1}')
    p(f'v_lshrrev_b32 v{t+2}, 4, v1')
    p(f'v_and_b32 v{t+3}, 7, v1')
    p(f'v_xor_b32 v{t+2}, v{t+2}, v{t+3}')
    p(f'v_lshl_add_u32 v2, v{t+2}, 4, v{t+1}')
    p(f'v_xor_b32 v3, 64, v2')
    p(f'v_add_u32 v3, {16*1152}, v3')
    p('v_cmp_le_u32 vcc, 27, v1')
    p(f'v_subrev_u32 v{t}, 27, v1')
    p(f'v_mov_b32 v{t+1}, {4*3456}')
    p(f'v_cndmask_b32 v{t}, v1, v{t}, vcc')
    p(f'v_cndmask_b32 v{t+1}, 0, v{t+1}, vcc')
    p(f'v_lshl_add_u32 v{t+1}, v{t}, 4, v{t+1}')
    p(f'v_cmp_gt_u32 vcc, 9, v{t}')
    p(f'v_cmp_le_u32 s[10:11], 18, v{t}')
    p(f'v_mov_b32 v{t+2}, -144')
    p(f'v_mov_b32 v{t+3}, 1152')
    p(f'v_cndmask_b32 v{t+2}, v{t+2}, v{t+3}, vcc')
    p(f'v_mov_b32 v{t+3}, 2016')
    p('v_cmp_le_u32 vcc, 54, v1')
    p(f'v_cndmask_b32 v{t+2}, v{t+2}, v{t+3}, s[10:11]')
    p('s_mul_i32 s10, s7, 144')
    p(f'v_mov_b32 v{t+3}, {OOB}')
    p(f'v_add3_u32 v4, v{t+1}, v{t+2}, s10')
    p(f'v_cndmask_b32 v4, v4, v{t+3}, vcc')
    p(f's_lshl_b32 s{sB[0]}, s{sW}, 11')
    p(f's_add_u32 s{sB[1]}, s{sB[0]}, 1024')
    p(f's_mul_i32 s{sB[2]}, s{sW}, {4*WPS}')
    p(f's_add_u32 s{sB[2]}, s{sB[2]}, {WOFF}')
    for n in range(1, 4): p(f's_add_u32 s{sB[2+n]}, s{sB[2]}, {WPS*n}')
    p(f's_mov_b32 s{sO[0]}, 0')
    p(f's_mov_b32 s{sO[1]}, 0')
    p(f's_mul_i32 s{sO[2]}, s{sW}, {8*3456}')
    for n in range(1, 4): p(f's_add_u32 s{sO[2+n]}, s{sO[2]}, {3456*n}')
    p(f's_mov_b32 s{sDst}, 0')

def dma_slot(i):
    srd_ = SRDx if i < 2 else SRDw
    return [f's_add_u32 m0, s{sB[i]}, s{sDst}', f'buffer_load_dwordx4 v{vD[i]}, s[{srd_}:{srd_+3}], s{sO[i]} offen lds']

def dma_advance(lo=0, hi=6):
    return [f's_add_u32 s{sO[i]}, s{sO[i]}, {128 if i < 2 else 221184}' for i in range(lo, hi)]

def b1_consts():
    p = Prog()
    t = vTmp
    c, g = t, t + 1
    p(f'v_and_b32 v{c}, 15, v1')
    p(f'v_lshrrev_b32 v{g}, 4, v1')
    p(f's_and_b32 s14, s{sW}, 1')
    p(f's_lshr_b32 s15, s{sW}, 1')
    p(f'v_lshrrev_b32 v{t+2}, 1, v{c}')
    p(f'v_xor_b32 v{t+2}, v{t+2}, v{g}')
    p(f'v_lshlrev_b32 v{t+2}, 4, v{t+2}')
    p(f'v_lshl_add_u32 v{t+2}, v{c}, 7, v{t+2}')
    p('s_lshl_b32 s9, s14, 13')
    p(f'v_add_u32 v{vXb0}, s9, v{t+2}')
    p(f'v_xor_b32 v{vXb1}, 64, v{vXb0}')
    p(f'v_lshrrev_b32 v{t+2}, 2, v1')
    p(f'v_mul_u32_u24 v{t+2}, {WPS}, v{t+2}')
    p(f'v_and_b32 v{t+3}, 3, v1')
    p(f'v_lshl_add_u32 v{t+2}, v{t+3}, 3, v{t+2}')
    p('s_lshl_b32 s9, s15, 2')
    p('s_mul_i32 s10, s15, 3')
    p('s_add_u32 s10, s10, 2')
    p('s_cmp_lt_u32 s15, 2')
    p('s_cselect_b32 s70, s9, s10')
    p('s_lshl_b32 s9, s70, 5')
    p(f's_add_u32 s10, s9, {WOFF}')
    p(f'v_add_u32 v{vWb}, s10, v{t+2}')
    p(f'v_mov_b32 v{vXa1}, v{vXb1}')
    p(f'v_mov_b32 v{vWa}, v{vWb}')
    for i in range(64):
        p(f'v_mov_b32 v{ACCB+i}, 0')
    p(f's_mul_i32 s10, s14, {64*KQS}')
    p(f's_add_u32 s10, s10, {KQB}')
    p('s_add_u32 s9, s9, s10')
    p(f'v_mul_u32_u24 v{t+2}, {KQS}, v{c}')
    p(f'v_lshl_add_u32 v{t+3}, v{g}, 3, v{t+2}')
    p(f'v_add_u32 v{vKQ}, s9, v{t+3}')
    p('s_lshl_b32 s9, s15, 5')
    p('s_add_u32 s9, s9, s10')
    p(f'v_lshl_add_u32 v{t+3}, v{g}, 4, v{t+2}')
    p(f'v_add_u32 v{vKf}, s9, v{t+3}')
    p(f'v_mul_u32_u24 v{t+2}, 144, v{c}')
    p(f'v_lshl_add_u32 v{t+2}, v{g}, 3, v{t+2}')
    p(f's_mul_i32 s9, s14, {VP}')
    p(f's_add_u32 s9, s9, {VTB}')
    p('s_mul_i32 s10, s70, 2304')
    p('s_add_u32 s10, s10, s9')
    p(f's_sub_u32 s10, s10, {9*2304}')
    p(f'v_add_u32 v{vVT}, s10, v{t+2}')
    p('s_mul_i32 s10, s15, 2592')
    p('s_add_u32 s10, s10, s9')
    p(f'v_add_u32 v{vV0}, s10, v{t+2}')
    p(f'v_cmp_gt_u32 vcc, 2, v{c}')
    p(f's_add_u32 s9, s9, {72*144}')
    p(f'v_add_u32 v{vV1}, {16*144}, v{vV0}')
    p(f'v_lshl_add_u32 v{t+3}, v{g}, 3, s9')
    p(f'v_cndmask_b32 v{vV1}, v{t+3}, v{vV1}, vcc')
    p('s_mul_i32 s9, s14, 9216')
    p('s_mul_i32 s10, s15, 36')
    p('s_add_u32 s9, s9, s10')
    p(f's_add_u32 s9, s9, {OB}')
    p(f'v_add_u32 v{vOw4[0]}, s9, v{t+2}')
    for i in range(1, 4): p(f'v_add_u32 v{vOw4[i]}, {2304*i}, v{vOw4[0]}')
    p(f'v_lshlrev_b32 v{t+2}, 2, v{g}')
    p(f'v_subrev_u32 v{t+3}, s15, v{t+2}')
    for i in range(4):
        p(f'v_add_u32 v{t+4+i}, {i}, v{t+3}')
    for i in range(4):
        p(f'v_cmp_gt_u32 s[{10+2*(i&1)}:{11+2*(i&1)}], 9, v{t+4+i}')
        if i & 1:
            p('s_nop 0')
            p(f'v_cndmask_b32 v{vQm+i-1}, 0, -1, s[10:11]')
            p(f'v_cndmask_b32 v{vQm+i}, 0, -1, s[12:13]')
    p(f'v_sub_u32 v{t+2}, v{c}, v{t+2}')
    p(f'v_cmp_ge_i32 s[72:73], -6, v{t+2}')
    p(f'v_mov_b32 v{t+5}, 0xf149f2ca')
    for rr in range(4):
        p(f'v_subrev_u32 v{t+3}, {rr}, v{t+2}')
        p(f'v_and_b32 v{t+4}, 8, v{t+3}')
        p(f'v_cmp_ge_u32 s[10:11], 7, v{t+3}')
        p(f'v_cmp_eq_u32 vcc, 0, v{t+4}')
        p('s_nop 0')
        p(f'v_cndmask_b32 v{vBias0+rr}, v{t+5}, 0, s[10:11]')
        p(f'v_cndmask_b32 v{vBias+rr}, v{t+5}, 0, vcc')
    p(f'v_and_b32 v{t+2}, 127, v0')
    p(f'v_and_b32 v{t+3}, 1, v0')
    p(f'v_mul_u32_u24 v{t+3}, 9216, v{t+3}')
    p(f'v_lshrrev_b32 v{t+4}, 1, v{t+2}')
    p(f'v_mul_u32_u24 v{t+4}, 144, v{t+4}')
    p('s_lshl_b32 s9, s15, 4')
    p(f's_add_u32 s9, s9, {OB}')
    p(f'v_add3_u32 v{vOg}, v{t+3}, v{t+4}, s9')
    p('s_cmp_eq_u32 s6, 0')
    p('s_cselect_b32 s9, 0, 14')
    p(f'v_cmp_gt_u32 vcc, s9, v{t+2}')
    p(f'v_add_u32 v{t+3}, s8, v{t+2}')
    p(f'v_lshrrev_b32 v{t+4}, 4, v{t+3}')
    p(f'v_mul_u32_u24 v{t+4}, 18432, v{t+4}')
    p(f'v_and_b32 v{t+3}, 15, v{t+3}')
    p(f'v_lshl_add_u32 v{vOst}, v{t+3}, 4, v{t+4}')
    p(f'v_mov_b32 v{t+3}, {OOB}')
    p(f'v_cndmask_b32 v{vOst}, v{vOst}, v{t+3}, vcc')
    p('s_cmp_ge_u32 s5, 9')
    p('s_cselect_b32 s9, 1, 0')
    p('s_lshl_b32 s66, s4, 1')
    p('s_add_u32 s66, s66, s9')
    p('s_mul_i32 s9, s9, 9')
    p('s_sub_u32 s67, s5, s9')
    p(f'v_lshrrev_b32 v{t}, 3, v1')
    p(f'v_mul_u32_u24 v{t}, 1152, v{t}')
    p(f'v_bfe_u32 v{t+1}, v1, 4, 1')
    p(f'v_lshlrev_b32 v{t+1}, 1, v{t+1}')
    p(f'v_and_b32 v{t+2}, 7, v1')
    p(f'v_xor_b32 v{t+1}, v{t+1}, v{t+2}')
    p('s_lshl_b32 s9, s14, 2')
    p(f'v_xor_b32 v{t+1}, s9, v{t+1}')
    p('s_lshl_b32 s9, s67, 7')
    p(f'v_add_u32 v{t}, s9, v{t}')
    p(f'v_lshl_add_u32 v{vWo}, v{t+1}, 4, v{t}')
    b2_addr(p)
    return glue_scc(p.lines)

def b1_variant(p, k, var):
    types = [['kq']*4, ['kq', 'v', 'v'], ['v']*3][var]
    nT = len(types)
    def reads(st, ks, xa):
        X, W = SET[st]
        r = [f'ds_read_b128 {vr(X+4*t,4)}, v{xa} offset:{2048*t}' for t in range(4)]
        for j in range(nT):
            for hf in range(2):
                r.append(f'ds_read_b64_tr_b16 {vr(W+4*j+2*hf,2)}, v{vWa} offset:{16*WPS*ks+432*hf+32*j}')
        return r
    def mfmas(st):
        X, W = SET[st]
        out = []
        for j in range(nT):
            for t in range(4):
                a = vr(ACCB+16*j+4*t, 4)
                if types[j] == 'kq': out.append(f'v_mfma_f32_16x16x32_bf16 {a}, {vr(W+4*j,4)}, {vr(X+4*t,4)}, {a}')
                else: out.append(f'v_mfma_f32_16x16x32_bf16 {a}, {vr(X+4*t,4)}, {vr(W+4*j,4)}, {a}')
        return out
    L = f'{k}_{var}'
    X_ = os.environ.get('X', '')
    global dma_slot
    ds0 = dma_slot
    if 'd' in X_: dma_slot = lambda i: []
    if 'r' in X_: reads = lambda st, ks, xa: []
    if 'm' in X_: mfmas = lambda st: ['s_nop 0'] * 4
    for x in reads(0, 0, vXb0): p(x)
    for x in dma_slot(0) + dma_slot(1) + dma_slot(2): p(x)
    if PFB and var < 2:
        p(f's_cmp_lt_u32 s{sW}, {PFB-1}')
        p(f's_cbranch_scc1 L_b1loop_{L}')
        for x in pf_loads(246, 247, 60, 61, 248): p(x)
    p.label(f'L_b1loop_{L}')
    p('s_waitcnt lgkmcnt(0)')
    sec = interleave(reads(1, 1, vXa1), dma_slot(3) + dma_slot(4) + dma_slot(5))
    mf = mfmas(0)
    nh = len(mf) - 4
    for x in interleave(mf[:nh], sec, lead=1, frac=FR2): p(x)
    p(f's_cmp_ge_u32 s{sChunk}, 6')
    p(f's_cbranch_scc1 L_b1sp_{L}')
    upd = [f's_mov_b32 s{sDst}, s{sStage}'] + dma_advance()
    for x in interleave(mf[nh:nh+2], upd): p(x)
    p.label(f'L_b1mid_{L}')
    upd = [f'v_add_u32 v{vXa0}, s{sNext}, v{vXb0}', f'v_add_u32 v{vXa1}, s{sNext}, v{vXb1}', f's_mov_b32 s{sStage}, s{sNext}', f's_add_u32 s{sChunk}, s{sChunk}, 1']
    for x in interleave(mf[nh+2:], upd): p(x)
    p('s_waitcnt vmcnt(6) lgkmcnt(0)')
    p('s_barrier')
    if PROF == 2:
        p('s_memtime s[96:97]')
        p(f's_add_u32 m0, s{sChunk}, 39')
        p('s_waitcnt lgkmcnt(0)')
        p('v_writelane_b32 v253, s96, m0')
    mf = mfmas(1)
    p(mf[0])
    p(f'v_add_u32 v{vWa}, s{sNext}, v{vWb}')
    sec = interleave(reads(0, 0, vXa0), dma_slot(0) + dma_slot(1) + dma_slot(2))
    sec.append(f's_add_u32 s{sNext}, s{sStage}, {STG}\ns_cmp_eq_u32 s{sNext}, {3*STG}\ns_cselect_b32 s{sNext}, 0, s{sNext}')
    for x in interleave(mf[1:-1], sec, lead=1, frac=FR): p(x)
    p(f's_cmp_lt_u32 s{sChunk}, 9')
    p(mf[-1])
    p(f's_cbranch_scc1 L_b1loop_{L}')
    dma_slot = ds0
    stamp(p, 2, f'b1b_{L}')
    Z = SET[0][0]
    p('s_waitcnt lgkmcnt(0)')
    if var == 0:
        p(f'v_lshrrev_b32 v{Z}, 5, v1')
        p(f'v_mul_u32_u24 v{Z}, {VP}, v{Z}')
        p(f'v_and_b32 v{Z+1}, 31, v1')
        p(f'v_lshl_add_u32 v{Z}, v{Z+1}, 2, v{Z}')
        p(f'v_add_u32 v{Z}, {VTB+72*144}, v{Z}')
        p(f'v_mov_b32 v{Z+1}, 0x3f803f80')
        p(f'ds_write_b32 v{Z}, v{Z+1}')
    T = Z + 8
    u = 0
    for j in range(nT):
        if var == 2 and j == 2:
            p('s_mov_b32 exec_lo, 0x00ff00ff')
            p('s_mov_b32 exec_hi, 0x00ff00ff')
        for t in range(4):
            a = ACCB + 16*j + 4*t
            d = T + 2*(u % 8); u += 1
            p(f'v_cvt_pk_bf16_f32 v{d}, v{a}, v{a+1}')
            p(f'v_cvt_pk_bf16_f32 v{d+1}, v{a+2}, v{a+3}')
            if types[j] == 'kq':
                p(f'ds_write_b64 v{vKQ}, {vr(d,2)} offset:{16*KQS*t+32*j}')
            else:
                p(f'ds_write_b64 v{vVT}, {vr(d,2)} offset:{2304*j+32*t}')
    if var == 2: p('s_mov_b64 exec, -1')
    p(f's_branch L_attn_{k}')
    p.label(f'L_b1sp_{L}')
    for x in mfmas(0)[nh:nh+2]: p(x)
    p(f's_cmp_eq_u32 s{sChunk}, 7')
    p(f's_cbranch_scc1 L_b1sp7_{L}')
    p(f's_cmp_eq_u32 s{sChunk}, 8')
    p(f's_cbranch_scc1 L_b1sp8_{L}')
    for r in (SRDx, SRDw):
        p(f's_mov_b32 s{r}, s{P_WO}')
        p(f's_and_b32 s{r+1}, s{P_WO+1}, 0xffff')
        p(f's_mov_b32 s{r+2}, {SZ_WO}')
    for v in (2, 3, 4): p(f'v_mov_b32 v{v}, v{vWo}')
    nonce_load(p)
    p(f's_mov_b32 s{sDst}, {WOB}')
    p(f's_lshl_b32 s{sB[0]}, s{sW}, 10')
    p(f's_mul_i32 s{sO[0]}, s{sW}, 9216')
    for i in range(1, 6):
        p(f's_add_u32 s{sB[i]}, s{sB[0]}, {8192*i}')
        p(f's_add_u32 s{sO[i]}, s{sO[0]}, {73728*i}')
    p(f's_branch L_b1mid_{L}')
    p.label(f'L_b1sp7_{L}')
    for i in range(3):
        p(f's_add_u32 s{sB[i]}, s{sB[i]}, {8192*6}')
        p(f's_add_u32 s{sO[i]}, s{sO[i]}, {73728*6}')
        p(f's_mov_b32 s{sB[3+i]}, {SCR-WOB}')
        p(f's_mov_b32 s{sO[3+i]}, {OOB}')
    p(f's_branch L_b1mid_{L}')
    p.label(f'L_b1sp8_{L}')
    for i in range(3):
        p(f's_mov_b32 s{sB[i]}, {SCR-WOB}')
        p(f's_mov_b32 s{sO[i]}, {OOB}')
    p(f's_branch L_b1mid_{L}')

def attention(p, k, sc):
    KF, QF, V0, V1 = 64, 80, 96, 106
    S1, S0 = 116, 132
    p.label(f'L_attn_{k}')
    for i in range(2):
        p(f'v_mov_b32 v{V0+i}, 0')
        p(f'v_mov_b32 v{V1+i}, 0')
    p('s_mov_b32 s90, 0x3eae1a93')
    p('s_mov_b32 s91, 0x3eae1a93')
    srd(p, 52, P_WS, SZ_A, WS_O)
    p('s_mul_i32 s9, s7, 9')
    p('s_add_u32 s9, s9, s15')
    p('s_lshl_b32 s9, s9, 8')
    p('s_add_u32 s10, s9, 1024')
    p('s_add_u32 s11, s9, 2048')
    p('s_waitcnt lgkmcnt(0)')
    stamp(p, 3)
    p('s_barrier')
    stamp(p, 4)
    for t in range(4):
        p(f'ds_read_b128 {vr(QF+4*t,4)}, v{vKf} offset:{144+16*KQS*t}')
        p(f'ds_read_b128 {vr(KF+4*t,4)}, v{vKf} offset:{16*KQS*t}')
    for t in range(4):
        p(f'ds_read_b64 {vr(V0+2+2*t,2)}, v{vV0} offset:{32*t}')
        p(f'ds_read_b64 {vr(V1+2+2*t,2)}, v{vV1} offset:{32*t}')
    for t in range(4):
        p(f's_waitcnt lgkmcnt({15-2*t})')
        for i in range(4): p(f'v_and_b32 v{QF+4*t+i}, v{QF+4*t+i}, v{vQm+i}')
    for t in range(4):
        if t == 0: p('s_waitcnt lgkmcnt(8)')
        p(f'v_mfma_f32_16x16x32_bf16 {vr(S1+4*t,4)}, {vr(KF+4*t,4)}, {vr(QF+4*t,4)}, 0')
        if t: p(f'v_mfma_f32_16x16x32_bf16 {vr(S0+4*t,4)}, {vr(KF+4*t-4,4)}, {vr(QF+4*t,4)}, 0')
    stamp(p, 5)
    PF = 156
    M = lambda t: 148 + 2 * t
    M2 = lambda t: 149 + 2 * t
    BC = 'op_sel:[0,0] op_sel_hi:[1,0]'
    for t in range(4):
        for rr in range(4):
            if t: p(f'v_cndmask_b32 v{S1+4*t+rr}, v{S1+4*t+rr}, v{S0+4*t+rr}, s[72:73]')
        for rr in (0, 2):
            p(f'v_pk_fma_f32 {vr(S1+4*t+rr,2)}, {vr(S1+4*t+rr,2)}, s[90:91], {vr((vBias if t else vBias0)+rr,2)}')
        p(f'v_max3_f32 v{M(t)}, v{S1+4*t}, v{S1+4*t+1}, v{S1+4*t+2}')
        p(f'v_max_f32 v{M(t)}, v{M(t)}, v{S1+4*t+3}')
        p(f'v_mov_b32 v{M2(t)}, v{M(t)}')
    for t in range(4): p(f'v_permlane32_swap_b32 v{M(t)}, v{M2(t)}')
    for t in range(4): p(f'v_max_f32 v{M(t)}, v{M(t)}, v{M2(t)}')
    for t in range(4): p(f'v_mov_b32 v{M2(t)}, v{M(t)}')
    for t in range(4): p(f'v_permlane16_swap_b32 v{M(t)}, v{M2(t)}')
    for t in range(4): p(f'v_max_f32 v{M(t)}, v{M(t)}, v{M2(t)}')
    for t in range(4):
        for rr in (0, 2): p(f'v_pk_add_f32 {vr(S1+4*t+rr,2)}, {vr(S1+4*t+rr,2)}, {vr(M(t),2)} {BC} neg_lo:[0,1] neg_hi:[0,1]')
    p('s_waitcnt lgkmcnt(0)')
    stamp(p, 6)
    O0, O1 = 64, 80
    def pv(t):
        p(f'v_mfma_f32_16x16x32_bf16 {vr(O1+4*t,4)}, {vr(V1+2*t,4)}, {vr(PF+4*t,4)}, 0')
        p(f'v_mfma_f32_16x16x32_bf16 {vr(O0+4*t,4)}, {vr(V0+2*t,4)}, {vr(PF+4*t,4)}, 0')
    for rr in range(4): p(f'v_exp_f32 v{S1+rr}, v{S1+rr}')
    for t in range(4):
        if t < 3:
            for rr in range(4): p(f'v_exp_f32 v{S1+4*t+4+rr}, v{S1+4*t+4+rr}')
        p(f'v_cvt_pk_bf16_f32 v{S0+2*(t&1)}, v{S1+4*t}, v{S1+4*t+1}')
        p(f'v_cvt_pk_bf16_f32 v{S0+2*(t&1)+1}, v{S1+4*t+2}, v{S1+4*t+3}')
        if t: pv(t - 1)
        for i in range(2):
            p(f'v_cndmask_b32 v{PF+4*t+i}, 0, v{S0+2*(t&1)+i}, s[72:73]')
            p(f'v_cndmask_b32 v{PF+4*t+2+i}, v{S0+2*(t&1)+i}, 0, s[72:73]')
    PO = 116
    def fin(u):
        for rr in (0, 2): p(f'v_pk_mul_f32 {vr(O0+4*u+rr,2)}, {vr(O0+4*u+rr,2)}, {vr(M(u),2)} {BC}')
        p(f'v_pk_mul_f32 {vr(O1+4*u,2)}, {vr(O1+4*u,2)}, {vr(M(u),2)} {BC}')
        p(f'v_cvt_pk_bf16_f32 v{PO+4*u}, v{O0+4*u}, v{O0+4*u+1}')
        p(f'v_cvt_pk_bf16_f32 v{PO+4*u+1}, v{O0+4*u+2}, v{O0+4*u+3}')
        p(f'v_cvt_pk_bf16_f32 v{PO+4*u+2}, v{O1+4*u}, v{O1+4*u+1}')
        p(f'ds_write2_b32 v{vOw4[u]}, v{PO+4*u}, v{PO+4*u+1} offset0:0 offset1:1')
    p(f'v_rcp_f32 v{M(0)}, v{O1+2}')
    pv(3)
    p(f'v_rcp_f32 v{M(1)}, v{O1+6}')
    fin(0)
    p(f'v_rcp_f32 v{M(2)}, v{O1+10}')
    fin(1)
    p(f'v_rcp_f32 v{M(3)}, v{O1+14}')
    fin(2)
    fin(3)
    p('s_mov_b64 exec, 0xffff')
    for t in range(4):
        p(f'ds_write_b32 v{vOw4[0]}, v{PO+4*t+2} offset:{2304*t+32}')
    p('s_mov_b64 exec, -1')
    p('s_waitcnt lgkmcnt(0)')
    stamp(p, 7)
    p('s_barrier')
    G = 64
    for r in range(3):
        p(f'ds_read_b128 {vr(G+4*r,4)}, v{vOg} offset:{64*r}')
    p('s_waitcnt lgkmcnt(2)')
    p(f'buffer_store_dwordx4 {vr(G,4)}, v{vOst}, s[52:55], s9 offen{sc}')
    p('s_waitcnt lgkmcnt(1)')
    p(f'buffer_store_dwordx4 {vr(G+4,4)}, v{vOst}, s[52:55], s10 offen{sc}')
    p(f's_cmp_ge_u32 s{sW}, 2')
    p(f's_cbranch_scc1 L_ost_{k}')
    p('s_waitcnt lgkmcnt(0)')
    p(f'buffer_store_dwordx4 {vr(G+8,4)}, v{vOst}, s[52:55], s11 offen{sc}')
    p.label(f'L_ost_{k}')

def b2_addr(p):
    t = 58
    p(f'v_lshrrev_b32 v{t}, 4, v1')
    p(f'v_bfe_u32 v{t+1}, v1, 2, 2')
    p(f'v_lshl_add_u32 v{t+2}, v{t}, 3, v{t+1}')
    p(f'v_lshlrev_b32 v{t+2}, 7, v{t+2}')
    p(f'v_and_b32 v{t+3}, 3, v1')
    p(f'v_lshl_add_u32 v{t+2}, v{t+3}, 3, v{t+2}')
    p(f'v_and_b32 v{t+3}, 1, v{t}')
    p(f'v_lshlrev_b32 v{t+3}, 1, v{t+3}')
    p(f'v_lshrrev_b32 v{t+1}, 1, v{t+1}')
    p(f'v_or_b32 v{t+3}, v{t+3}, v{t+1}')
    p(f'v_lshl_add_u32 v{t+2}, v{t+3}, 5, v{t+2}')
    p(f's_lshr_b32 s68, s{sW}, 2')
    p(f's_mul_i32 s9, s68, {9*4096}')
    p(f's_add_u32 s9, s9, {WOB}')
    p(f'v_add_u32 v42, s9, v{t+2}')
    for m in range(1, 4): p(f'v_xor_b32 v{42+m}, {32*m}, v42')
    p('v_lshlrev_b32 v46, 4, v1')
    p('v_add_u32 v47, 4096, v46')
    p('v_add_u32 v48, 8192, v46')
    p(f's_and_b32 s9, s{sW}, 3')
    p('s_lshl_b32 s9, s9, 1')
    p('s_lshl_b32 s10, s66, 3')
    p('s_add_u32 s9, s9, s10')
    p('s_add_u32 s69, s9, s68')
    p('s_xor_b32 s10, s69, 1')
    p('s_mul_i32 s64, s69, 18432')
    p('s_mul_i32 s65, s10, 18432')
    p('s_mul_i32 s9, s68, 9216')
    p('s_add_u32 s64, s64, s9')
    p('s_add_u32 s65, s65, s9')
    p(f'v_and_b32 v{t+1}, 15, v1')
    p('s_lshl_b32 s9, s69, 4')
    p(f'v_add_u32 v{t+1}, s9, v{t+1}')
    p(f'v_mul_u32_u24 v{t+1}, 2304, v{t+1}')
    p(f'v_and_b32 v{t+2}, 1, v{t}')
    p(f'v_lshl_add_u32 v{t+1}, v{t+2}, 5, v{t+1}')
    p(f'v_lshrrev_b32 v{t+2}, 1, v{t}')
    p(f'v_lshl_add_u32 v{t+1}, v{t+2}, 4, v{t+1}')
    p('s_lshl_b32 s9, s67, 7')
    p('s_add_u32 s9, s9, 1152')
    p(f'v_add_u32 v49, s9, v{t+1}')
    p(f's_lshl_b32 s9, s{sW}, 12')
    p('v_add_u32 v54, s9, v46')
    p('v_xor_b32 v55, 0x4000, v54')
    p(f'v_add_u32 v54, {RED}, v54')
    p(f'v_add_u32 v55, {RED}, v55')
    p('s_and_b32 s9, s69, 0xfe')
    p('s_lshl_b32 s9, s9, 4')
    p('s_add_u32 s10, s9, 17')
    p('s_mul_i32 s10, s10, 575')
    p('s_lshr_b32 s10, s10, 16')
    p('s_max_u32 s9, s9, 14')
    p('s_sub_u32 s9, s9, 14')
    p('s_mul_i32 s9, s9, 575')
    p('s_lshr_b32 s9, s9, 16')
    p('v_cmp_gt_u32 vcc, 4, v1')
    p('v_mov_b32 v50, s10')
    p('v_mov_b32 v51, s9')
    p('v_cndmask_b32 v50, v50, v51, vcc')
    p('v_and_b32 v51, 3, v1')
    p('v_lshl_add_u32 v50, v50, 3, v51')
    p('s_lshl_b32 s9, s68, 2')
    p('v_add_u32 v50, s9, v50')
    p(f'v_mul_u32_u24 v50, {FLS}, v50')

def wreads(WF, st, ks):
    r = []
    for m in range(4):
        for hf in range(2):
            r.append(f'ds_read_b64_tr_b16 {vr(WF[st]+4*m+2*hf,2)}, v{42+m} offset:{4096*ks+512*hf}')
    return r
B2WF = [136, 152]

def b2_main(p, k, sc):
    OF, WF, AC = 64, B2WF, 168
    def oload(ks):
        return [f'buffer_load_dwordx4 {vr(OF+8*ks+4*nt,4)}, v{46+ks//4}, s[52:55], s{64+nt} offen offset:{1024*(ks%4)}{sc}' for nt in range(2)]
    LEAD = B2LEAD
    for ks in range(LEAD):
        for x in oload(ks): p(x)
    srd(p, 56, P_OUT, SZ_OUT)
    for ks in range(9):
        st = ks & 1
        issued = min(9, LEAD + ks)
        p(f's_waitcnt vmcnt({2*(issued-ks-1)}) lgkmcnt(0)')
        if ks == 0: stamp(p, 13)
        mf = []
        for m in range(4):
            for nt in range(2):
                a = vr(AC+8*m+4*nt, 4)
                mf.append(f'v_mfma_f32_16x16x32_bf16 {a}, {vr(WF[st]+4*m,4)}, {vr(OF+8*ks+4*nt,4)}, {a if ks else 0}')
        sec = (oload(ks+LEAD) if ks + LEAD < 9 else []) + (wreads(WF, 1-st, ks+1) if ks < 8 else [])
        for x in interleave(mf, sec, lead=1, frac=FR): p(x)
    stamp(p, 14)
    for m in range(4):
        p(f'ds_write_b128 v54, {vr(AC+8*m+4,4)} offset:{1024*m}')
    p('s_waitcnt lgkmcnt(0)')
    p('s_barrier')
    stamp(p, 15)
    R = 64
    for m in range(4):
        p(f'ds_read_b128 {vr(R+4*m,4)}, v55 offset:{1024*m}')
    D = 80
    for m in range(4):
        p(f's_waitcnt lgkmcnt({3-m})')
        for rr in range(4): p(f'v_add_f32 v{R+4*m+rr}, v{R+4*m+rr}, v{AC+8*m+rr}')
        p(f'v_cvt_pk_bf16_f32 v{D+2*m}, v{R+4*m}, v{R+4*m+1}')
        p(f'v_cvt_pk_bf16_f32 v{D+2*m+1}, v{R+4*m+2}, v{R+4*m+3}')
    for mp in range(2):
        p(f'v_permlane16_swap_b32 v{D+4*mp}, v{D+4*mp+2}')
        p(f'v_permlane16_swap_b32 v{D+4*mp+1}, v{D+4*mp+3}')
    for mp in range(2):
        p(f'buffer_store_dwordx4 {vr(D+4*mp,4)}, v49, s[56:59], 0 offen offset:{64*mp}')

def signal_and_wait(p, k, who, sFlagOff, vPoll, sMask, perwave):
    p('s_waitcnt vmcnt(0)')
    stamp(p, 9)
    p('s_barrier')
    stamp(p, 10)
    if not perwave:
        p(f's_cmp_lg_u32 s{sW}, 0')
        p(f's_cbranch_scc1 L_w{who}_{k}')
    p('s_mov_b32 s11, 0')
    p.label(f'L_t{who}_{k}')
    p('v_cmp_eq_u32 vcc, 0, v242')
    p(f's_cbranch_vccz L_u{who}_{k}')
    nonce_load(p)
    p('s_waitcnt vmcnt(0)')
    p('s_add_u32 s11, s11, 1')
    p(f's_cmp_lt_u32 s11, {SPIN_MAX}')
    p(f's_cbranch_scc1 L_t{who}_{k}')
    p.label(f'L_u{who}_{k}')
    srd(p, 48, P_WS, 216*FLS, WS_FLAG)
    p(f'v_mov_b32 v241, s{sFlagOff}')
    p('s_mov_b64 exec, 1')
    if perwave:
        p(f's_cmp_lg_u32 s{sW}, 0')
        p(f's_cbranch_scc1 L_s{who}_{k}')
    p('buffer_store_dwordx2 v[242:243], v241, s[48:51], 0 offen sc1')
    stamp(p, 11)
    p.label(f'L_s{who}_{k}')
    p(f's_mov_b32 exec_lo, {sMask}')
    p.label(f'L_p{who}_{k}')
    p(f'buffer_load_dwordx2 v[244:245], v{vPoll}, s[48:51], 0 offen sc1')
    p('s_waitcnt vmcnt(0)')
    p('v_cmp_ne_u64 vcc, v[244:245], v[242:243]')
    p(f's_cbranch_vccz L_d{who}_{k}')
    if SLEEP: p(f's_sleep {SLEEP}')
    p('s_add_u32 s11, s11, 1')
    p(f's_cmp_lt_u32 s11, {SPIN_MAX}')
    p(f's_cbranch_scc1 L_p{who}_{k}')
    p.label(f'L_d{who}_{k}')
    p('s_mov_b64 exec, -1')
    p.label(f'L_w{who}_{k}')
    if not perwave: p('s_barrier')
    stamp(p, 12)

def pf_addr(p, vi, vx, vw, t):
    p(f'v_mul_u32_u24 v{t}, 10382, v{vi}')
    p(f'v_lshrrev_b32 v{t}, 24, v{t}')
    p(f'v_mul_u32_u24 v{t+1}, 1616, v{t}')
    p(f'v_sub_u32 v{t+1}, v{vi}, v{t+1}')
    p(f'v_cmp_gt_u32 vcc, 1040, v{t+1}')
    p(f'v_mul_u32_u24 v{vx}, 1152, v{t+1}')
    p(f'v_lshl_add_u32 v{vx}, v{t}, 7, v{vx}')
    p(f'v_subrev_u32 v{t+1}, 1040, v{t+1}')
    p(f'v_and_b32 v{t+1}, 0x3ff, v{t+1}')
    p(f'v_mul_u32_u24 v{t+2}, 7282, v{t+1}')
    p(f'v_lshrrev_b32 v{t+2}, 16, v{t+2}')
    p(f'v_mul_u32_u24 v{t+3}, 9, v{t+2}')
    p(f'v_sub_u32 v{t+1}, v{t+1}, v{t+3}')
    p(f'v_lshl_add_u32 v{t+2}, v{t}, 6, v{t+2}')
    p(f'v_mul_u32_u24 v{t+2}, 3456, v{t+2}')
    p(f'v_mul_u32_u24 v{t+3}, 171, v{t+1}')
    p(f'v_lshrrev_b32 v{t+3}, 9, v{t+3}')
    p(f'v_mul_u32_u24 v{t+3}, 768, v{t+3}')
    p(f'v_lshl_add_u32 v{t+3}, v{t+1}, 7, v{t+3}')
    p(f'v_add_u32 v{vw}, v{t+2}, v{t+3}')
    p(f'v_mov_b32 v{t}, {OOB}')
    p(f'v_cndmask_b32 v{vx}, v{t}, v{vx}, vcc')
    p(f'v_cndmask_b32 v{vw}, v{vw}, v{t}, vcc')

def pf_bases(p, sx, sw):
    p(f's_lshr_b32 s{sw}, s4, 1')
    p(f's_mul_i32 s{sw}, s{sw}, 288')
    p(f's_and_b32 s{sw}, s{sw}, 0xffffff80')
    p(f's_and_b32 s{sx}, s4, 1')
    p(f's_mul_i32 s{sx}, s{sx}, {1026*1152}')

def pf_loads(vx, vw, sx, sw, d):
    return [f'buffer_load_dword v{d}, v{vx}, s[40:43], s{sx} offen{nt("p")}', f'buffer_load_dword v{d+1}, v{vw}, s[44:47], s{sw} offen{nt("p")}']

def role_b(p, k):
    if os.environ.get('NOB'):
        p('s_endpgm'); return
    b_decode(p)
    b1_dma_addr(p)
    if PFB:
        p(f's_mul_i32 s9, s{sW}, 23')
        p('s_add_u32 s9, s9, s5')
        p('s_lshl_b32 s9, s9, 6')
        p(f's_cmp_ge_u32 s{sW}, 6')
        p('s_cselect_b32 s9, 15616, s9')
        p('v_add_u32 v60, s9, v1')
        pf_addr(p, 60, 246, 247, vTmp)
        pf_bases(p, 60, 61)
    p('s_waitcnt lgkmcnt(0)')
    prof_srd(p)
    stamp_begin(p)
    srd(p, SRDx, P_X, SZ_A)
    srd(p, SRDw, P_W, SZ_W)
    c0 = []; c1 = []
    for i in range(6): c0 += dma_slot(i)
    c0.append('\n'.join(dma_advance() + [f's_add_u32 s{sDst}, s{sDst}, {STG}']))
    if PFB:
        p(f's_cmp_ge_u32 s{sW}, {PFB-1}')
        p(f's_cbranch_scc1 L_pf1_{k}')
        for x in pf_loads(246, 247, 60, 61, 248): p(x)
        p.label(f'L_pf1_{k}')
    for x in c0: p(x)
    for x in interleave(b1_consts() + ['PF2'], c0, frac=0.5):
        if x != 'PF2': p(x)
    p(f's_mov_b32 s{sChunk}, 0')
    p(f's_mov_b32 s{sStage}, 0')
    p(f's_mov_b32 s{sNext}, {STG}')
    p('s_waitcnt vmcnt(6)')
    p('s_barrier')
    stamp(p, 1, f'b1a_{k}')
    p(f's_cmp_ge_u32 s{sW}, 6')
    p(f's_cbranch_scc1 L_var2_{k}')
    p(f's_cmp_ge_u32 s{sW}, 4')
    p(f's_cbranch_scc1 L_var1_{k}')
    b1_variant(p, k, 0)
    p.label(f'L_var1_{k}')
    b1_variant(p, k, 1)
    p.label(f'L_var2_{k}')
    b1_variant(p, k, 2)
    attention(p, k, ' sc1')
    p('s_lshl_b32 s13, s6, 3')
    p('s_add_u32 s13, s13, s7')
    p(f's_mul_i32 s13, s13, {FLS}')
    stamp(p, 8)
    signal_and_wait(p, k, 'b', 13, 50, 0xff, True)
    for x in wreads(B2WF, 0, 0): p(x)
    b2_main(p, k, ' sc1')
    stamp_end(p, 30, (0, 2, [1, 2, 8, 9, 12, 14, 30, 63]))
    p('s_endpgm')

def role_a(p, k):
    if os.environ.get('NOA'):
        p('s_endpgm'); return
    a_decode(p)
    a1_addr(p)
    p('s_waitcnt lgkmcnt(0)')
    prof_srd(p)
    stamp_begin(p)
    a1_loads(p, k)
    a1_compute(p, ' sc1')
    stamp(p, 2)
    a2_hstage(p)
    stamp(p, 3)
    signal_and_wait(p, k, 'a', 68, 233, 0xff, PWA)
    a2_main(p, k, ' sc1', True)
    stamp_end(p, 30, (144, 10, [1, 9, 12, 14, 30, 63]))
    p('s_endpgm')

def role_c(p, k):
    p('s_sub_u32 s6, s5, 27')
    p('s_lshl_b32 s6, s6, 3')
    p(f's_add_u32 s6, s6, s{sW}')
    p('s_lshl_b32 s7, s6, 6')
    p('v_add_u32 v2, s7, v1')
    p('s_getpc_b64 s[8:9]')
    p.label(f'L_pc_{k}')
    p(f's_sub_u32 s8, s8, L_pc_{k}-{NAME}_kernel')
    p('s_subb_u32 s9, s9, 0')
    p('v_lshlrev_b32 v3, 7, v2')
    p(f'v_cmp_gt_u32 vcc, L_end_{k}-{NAME}_kernel, v3')
    p('v_mov_b32 v5, s9')
    p('v_add_co_u32 v4, s[10:11], s8, v3')
    p('v_addc_co_u32 v5, s[10:11], 0, v5, s[10:11]')
    p('s_and_saveexec_b64 s[12:13], vcc')
    p(f's_cbranch_execz L_nc_{k}')
    p('global_load_dword v10, v[4:5], off')
    p.label(f'L_nc_{k}')
    p('s_mov_b64 exec, s[12:13]')
    p('s_waitcnt lgkmcnt(0)')
    prof_srd(p)
    stamp_begin(p)
    p('s_cmp_lg_u32 s2, 216')
    p(f's_cbranch_scc1 L_nl_{k}')
    p(f's_cmp_lg_u32 s{sW}, 0')
    p(f's_cbranch_scc1 L_nl_{k}')
    p('s_memrealtime s[60:61]')
    srd(p, 56, P_DBG, 256)
    p('s_waitcnt lgkmcnt(0)')
    p('s_or_b32 s60, s60, 1')
    p('v_mov_b32 v30, s60')
    p('v_mov_b32 v31, s61')
    p('v_mov_b32 v32, 0')
    p('s_mov_b64 exec, 1')
    p('buffer_store_dwordx2 v[30:31], v32, s[56:59], 0 offen sc1')
    p('s_mov_b64 exec, -1')
    p.label(f'L_nl_{k}')
    if os.environ.get('NOC'):
        p('s_endpgm'); return
    srd(p, 40, P_X, SZ_A)
    srd(p, 44, P_W, SZ_W)
    srd(p, 48, P_WO, SZ_WO)
    srd(p, 52, P_Q, SZ_A)
    d = 21
    pf_bases(p, 60, 61)
    p(f's_mul_i32 s9, s{sW}, 23')
    p('s_add_u32 s9, s9, s5')
    p('s_sub_u32 s9, s9, 9')
    p('s_lshl_b32 s9, s9, 6')
    p(f's_cmp_ge_u32 s{sW}, 6')
    p('s_cselect_b32 s9, 15616, s9')
    p('v_add_u32 v6, s9, v1')
    pf_addr(p, 6, 7, 8, 11)
    for x in pf_loads(7, 8, 60, 61, d): p(x)
    d += 2
    p(f's_mul_i32 s9, s{sW}, 5')
    p('s_add_u32 s9, s9, s5')
    p('s_sub_u32 s9, s9, 27')
    p('s_lshl_b32 s9, s9, 6')
    for it in range(3):
        p(f'v_add_u32 v6, s9, v1')
        p(f'v_add_u32 v6, {138*64+2560*it}, v6')
        pf_addr(p, 6, 7, 8, 11)
        p(f's_waitcnt vmcnt({0 if it == 0 else 2})')
        for x in pf_loads(7, 8, 60, 61, d): p(x)
        d += 2
    stamp(p, 1)
    p('s_waitcnt vmcnt(0)')
    stamp(p, 2)
    p('s_mul_i32 s14, s4, 144')
    p('s_and_b32 s14, s14, 0xffffff80')
    for it in range(2):
        p(f'v_add_u32 v6, {2560*it}, v2')
        p('v_lshrrev_b32 v7, 1, v6')
        p('v_mul_u32_u24 v7, 1152, v7')
        p('v_and_b32 v8, 1, v6')
        p('v_lshl_add_u32 v7, v8, 7, v7')
        p(f'buffer_load_dword v{d}, v7, s[52:55], s14 offen{nt("q")}'); d += 1
    for it in range(3):
        p(f'v_add_u32 v6, {2560*it}, v2')
        p('v_lshlrev_b32 v6, 7, v6')
        p(f'buffer_load_dword v{d}, v6, s[48:51], 0 offen{nt("o")}'); d += 1
    stamp(p, 3)
    p('s_waitcnt vmcnt(0)')
    stamp_end(p, 30)

def kernel_mega(p):
    k = 'm'
    p(f's_cmp_ge_u32 s2, {GRID}')
    p(f's_cbranch_scc1 L_end_{k}')
    p('s_load_dwordx16 s[16:31], s[0:1], 0')
    p('s_load_dwordx8 s[32:39], s[0:1], 64')
    p('v_lshrrev_b32 v2, 6, v0')
    p('v_and_b32 v1, 63, v0')
    p(f'v_readfirstlane_b32 s{sW}, v2')
    p('s_and_b32 s4, s2, 7')
    p('s_lshr_b32 s5, s2, 3')
    p('s_cmp_ge_u32 s5, 27')
    p(f's_cbranch_scc1 L_roleC_{k}')
    p('s_cmp_ge_u32 s5, 18')
    p(f's_cbranch_scc1 L_roleA_{k}')
    role_b(p, k)
    p.label(f'L_roleA_{k}')
    role_a(p, k)
    p.label(f'L_roleC_{k}')
    role_c(p, k)
    p.label(f'L_end_{k}')
    p('s_endpgm')

SPIN_MAX = 1 << 16
GRID = int(os.environ.get('GRID', '256'))

HEAD = open(os.path.join(os.path.dirname(os.path.abspath(__file__)), 'head.txt')).read()

def emit_kernel(name, fn):
    p = Prog()
    fn(p)
    lines, n = fix_hazards(p.lines, verbose=bool(os.environ.get('HZ')))
    sys.stderr.write(f'{name}: {len(lines)} lines, {n} nops inserted\n')
    body = '\n'.join(('' if l.endswith(':') else '    ') + l for l in lines)
    return f'''.text
.globl {name}
.p2align 8
.type {name},@function
{name}:
{body}
.section .rodata,"a"
.p2align 6
.amdhsa_kernel {name}
  .amdhsa_next_free_vgpr 256
  .amdhsa_next_free_sgpr 102
  .amdhsa_accum_offset 256
  .amdhsa_group_segment_fixed_size 0
  .amdhsa_kernarg_size 96
  .amdhsa_user_sgpr_count 2
  .amdhsa_user_sgpr_kernarg_segment_ptr 1
  .amdhsa_system_sgpr_workgroup_id_x 1
.end_amdhsa_kernel
'''

def main():
    out = HEAD
    out += f'; @launch grid=({GRID},1,1) block=(512,1,1) lds={LDS_BYTES}\n'
    out += '.amdgcn_target "amdgcn-amd-amdhsa--gfx950"\n'
    out += emit_kernel(NAME + '_kernel', kernel_mega)
    sys.stdout.write(out)

if __name__ == '__main__':
    main()
```

```python
import sys, os
sys.path.insert(0, os.path.dirname(os.path.abspath(__file__)))
from asmlib import Prog, fix_hazards

NAME = 'concat_heads__ssm_conv_h3__sliding_local_dilated__prompt'
MODE = os.environ.get('MODE', 'two')
PROF = int(os.environ.get('PROF', '0'))

FR = float(os.environ.get('FR', '0.7'))
FR2 = float(os.environ.get('FR2', '0.9'))
B2LEAD = int(os.environ.get('B2LEAD', '4'))
NT = os.environ.get('NT', 'a')
nt = lambda c: ' nt' if c in NT else ''
PFB = int(os.environ.get('PFB', '4'))
PWA = int(os.environ.get('PWA', '1'))
SZ_A = 2359296
SZ_W = 1990656
SZ_WO = 663552
SZ_OUT = 4718592
WS_XR = 0
WS_O = 0x240000
WS_FLAG = 0x480000
FLS = int(os.environ.get('FLS', '128'))
SLEEP = int(os.environ.get('SLEEP', '1'))
WS_PROF = 16 << 20
OOB = 0x80000000
NB, NA = 144, 72
NWG = NB + NA
LDS_BYTES = 163840

sW = 3
P_Q, P_K, P_V, P_SH, P_H, P_D, P_X, P_W, P_WO, P_OUT, P_DBG, P_WS = [16 + 2 * i for i in range(12)]

def srd(p, dst, ptr, size, off=0):
    if off:
        p(f's_add_u32 s{dst}, s{ptr}, {off}')
        p(f's_addc_u32 s{dst+1}, s{ptr+1}, 0')
        p(f's_and_b32 s{dst+1}, s{dst+1}, 0xffff')
    else:
        p(f's_mov_b32 s{dst}, s{ptr}')
        p(f's_and_b32 s{dst+1}, s{ptr+1}, 0xffff')
    p(f's_mov_b32 s{dst+2}, {size}')
    p(f's_mov_b32 s{dst+3}, 0x20000')

def vr(a, n):
    return f'v[{a}:{a+n-1}]' if n > 1 else f'v{a}'

def interleave(prim, sec, lead=0, frac=1.0):
    out = list(prim[:lead]); prim = prim[lead:]
    n, m = max(1, int(len(prim) * frac)), len(sec)
    j = 0
    for i, x in enumerate(prim):
        while j < m and j * n <= i * m:
            out.append(sec[j]); j += 1
        out.append(x)
    out += sec[j:]
    return out

def glue_scc(lines):
    out = []; i = 0
    while i < len(lines):
        if lines[i].startswith('s_cmp'):
            assert lines[i+1].startswith('s_cselect') or lines[i+1].startswith('s_cbranch'), lines[i:i+2]
            out.append(lines[i] + '\n' + lines[i+1]); i += 2
        else:
            assert not lines[i].startswith(('s_cselect', 's_addc', 's_subb')), lines[i]
            out.append(lines[i]); i += 1
    return out

def stamp(p, idx, uid=None):
    if not PROF: return
    p('s_memtime s[96:97]')
    p('s_waitcnt lgkmcnt(0)')
    p(f'v_writelane_b32 v253, s96, {idx}')

def stamp_begin(p):
    if not PROF: return
    p('v_mov_b32 v253, 0')
    p('s_memrealtime s[96:97]')
    p('s_waitcnt lgkmcnt(0)')
    p('v_writelane_b32 v253, s96, 62')
    stamp(p, 0)

def stamp_end(p, idx, dbg=None):
    if not PROF: return
    stamp(p, idx)
    p('s_memrealtime s[96:97]')
    p('s_waitcnt lgkmcnt(0)')
    p('v_writelane_b32 v253, s96, 63')
    if PROF == 3:
        if dbg:
            wg, base, lst = dbg
            uid = f'dbg{wg}'
            p(f's_cmp_lg_u32 s2, {wg}')
            p(f's_cbranch_scc1 L_{uid}')
            p(f's_cmp_lg_u32 s{sW}, 4')
            p(f's_cbranch_scc1 L_{uid}')
            p('v_readlane_b32 s98, v253, 0')
            p('v_readlane_b32 s99, v253, 62')
            p('v_mov_b32 v252, 0')
            for i, st in enumerate(lst):
                p(f'v_readlane_b32 s97, v253, {st}')
                p('s_nop 3')
                p(f's_sub_u32 s97, s97, {"s99" if st == 63 else "s98"}')
                p(f'v_writelane_b32 v252, s97, {i}')
            srd(p, 92, P_DBG, 256)
            p('v_lshlrev_b32 v254, 2, v1')
            p(f's_mov_b64 exec, {(1 << len(lst)) - 1}')
            p(f'buffer_store_dword v252, v254, s[92:95], 0 offen offset:{4*base}')
            p.label(f'L_{uid}')
        return
    p('s_lshl_b32 s98, s2, 3')
    p(f's_add_u32 s98, s98, s{sW}')
    p('s_lshl_b32 s98, s98, 8')
    p('v_lshl_add_u32 v254, v1, 2, s98')
    p('buffer_store_dword v253, v254, s[92:95], 0 offen')

def prologue(p, k):
    p(f's_cmp_ge_u32 s2, {NWG}')
    p(f's_cbranch_scc1 L_end_{k}')
    p('s_load_dwordx16 s[16:31], s[0:1], 0')
    p('s_load_dwordx8 s[32:39], s[0:1], 64')
    p('v_lshrrev_b32 v2, 6, v0')
    p('v_and_b32 v1, 63, v0')
    p(f'v_readfirstlane_b32 s{sW}, v2')
    p('s_and_b32 s4, s2, 7')
    p('s_lshr_b32 s5, s2, 3')
    p('s_cmp_ge_u32 s5, 18')
    p(f's_cbranch_scc1 L_roleA_{k}')

def prof_srd(p):
    if PROF:
        srd(p, 92, P_WS, 1 << 20, WS_PROF)

HS = 8384
H1 = 4164
XB = 8 * HS
XS_ = 4576
KB = XB
BS = 1088
VB = KB + 33 * BS
assert VB + 32 * BS <= LDS_BYTES

def a_decode(p):
    p('s_mul_i32 s6, s4, 9')
    p('s_add_u32 s6, s6, s5')
    p('s_sub_u32 s6, s6, 18')

def a1_addr(p):
    p('s_lshr_b32 s7, s6, 3')
    p('s_and_b32 s8, s6, 7')
    p('v_and_b32 v7, 7, v1')
    p('v_lshrrev_b32 v8, 3, v1')
    p('v_mul_u32_u24 v2, 1152, v8')
    p('v_lshl_add_u32 v2, v7, 4, v2')
    p('s_lshl_b32 s9, s7, 7')
    p('v_add_u32 v2, s9, v2')
    p(f's_mul_i32 s10, s8, {256*1152}')
    p(f's_mul_i32 s11, s{sW}, {8*1152}')
    p('s_add_u32 s11, s11, s10')
    p(f's_mul_i32 s12, s{sW}, {BS}')
    p(f's_add_u32 s12, s12, {KB+BS}')
    p(f's_sub_u32 s13, s10, {8*1152}')
    p('s_cmp_eq_u32 s8, 0')
    p(f's_cselect_b32 s13, {OOB}, s13')

def a1_loads(p, k):
    srd(p, 40, P_K, SZ_A)
    srd(p, 44, P_V, SZ_A)
    for n in range(4):
        p(f's_add_u32 m0, s12, {8*BS*n}')
        p(f's_add_u32 s14, s11, {64*1152*n}')
        p(f'buffer_load_dwordx4 v2, s[40:43], s14 offen{nt("a")} lds')
        p(f's_add_u32 m0, s12, {8*BS*n+VB-KB-BS}')
        p('s_nop 0')
        p(f'buffer_load_dwordx4 v2, s[44:47], s14 offen{nt("a")} lds')
    p(f's_cmp_lg_u32 s{sW}, 7')
    p(f's_cbranch_scc1 L_nohalo_{k}')
    p(f's_mov_b32 m0, {KB}')
    p('s_nop 0')
    p('buffer_load_dwordx4 v2, s[40:43], s13 offen lds')
    p.label(f'L_nohalo_{k}')
    p('s_lshl_b32 s8, s8, 8')
    p(f's_lshr_b32 s9, s{sW}, 1')
    p(f's_mul_i32 s10, s9, {8*BS}')
    p('s_lshl_b32 s9, s9, 6')
    p('s_add_u32 s8, s8, s9')
    p('s_lshl_b32 s7, s7, 6')
    p(f's_and_b32 s9, s{sW}, 1')
    p('s_lshl_b32 s11, s9, 6')
    p('s_add_u32 s10, s10, s11')
    p(f's_add_u32 s10, s10, {KB}')
    p('s_lshl_b32 s9, s9, 5')
    p('s_add_u32 s7, s7, s9')
    p(f'v_mul_u32_u24 v3, {BS}, v8')
    p('v_lshl_add_u32 v3, v7, 3, v3')
    p('v_add_u32 v3, s10, v3')
    p('v_lshlrev_b32 v9, 3, v8')
    p('v_add_u32 v9, s8, v9')
    p('v_lshlrev_b32 v7, 2, v7')
    p('v_add_u32 v7, s7, v7')
    p('v_lshlrev_b32 v5, 3, v7')
    srd(p, 48, P_SH, 4608)
    p('buffer_load_dwordx4 v[48:51], v5, s[48:51], 0 offen')
    p('buffer_load_dwordx4 v[52:55], v5, s[48:51], 0 offen offset:16')
    p('v_lshlrev_b32 v6, 12, v7')
    p('v_sub_u32 v8, 2040, v9')
    p('v_lshl_add_u32 v6, v8, 1, v6')

def nonce_load(p):
    srd(p, 48, P_DBG, 256)
    p('v_mov_b32 v241, 0')
    p('buffer_load_dwordx2 v[242:243], v241, s[48:51], 0 offen sc1')

def a1_compute(p, sc):
    K, Vv, Sx, P, KS, OUT = 10, 32, 48, 56, 96, 128
    srd(p, 52, P_WS, SZ_A, WS_XR)
    p('s_mov_b32 s10, 0x05040100')
    p('s_mov_b32 s11, 0x07060302')
    p('s_movk_i32 s12, 0x1000')
    p('s_movk_i32 s13, 0x2000')
    p('s_movk_i32 s14, 0x3000')
    a2_addr(p)
    p('s_waitcnt vmcnt(0)')
    p('s_barrier')
    stamp(p, 1)
    for i in range(11):
        p(f'ds_read_b64 {vr(K+2*i,2)}, v3 offset:{(5+i)*128 if i < 3 else BS+128*(i-3)}')
    for j in range(4):
        p(f'ds_read_b64 {vr(Vv+2*j,2)}, v3 offset:{VB-KB+128*j}')
    p('s_add_u32 m0, s63, 32')
    p('s_mov_b64 exec, 15')
    p('ds_write_b64 v227, v[228:229]')
    p(f'ds_write_b64 v227, v[228:229] offset:{H1-4}')
    p('s_mov_b64 exec, -1')
    for i in range(4):
        p(f'buffer_load_dwordx4 v223, s[56:59], s60 offen offset:{1024*i}{nt("a")} lds')
    nonce_load(p)
    for i in range(1, 11):
        if i in (1, 4, 7): p(f's_waitcnt lgkmcnt({max(0, 17-1-(i+2 if i < 7 else 10))})')
        for c in range(4):
            p(f'v_perm_b32 v{P+10*c+i-1}, v{K+2*(i-1)+(c>>1)}, v{K+2*i+(c>>1)}, s{10+(c&1)}')
    for j in range(4, 8):
        p(f'ds_read_b64 {vr(Vv+2*j,2)}, v3 offset:{VB-KB+128*j}')
    for j in range(8):
        for c in range(4):
            p(f'v_dot2_f32_bf16 v{KS+8*c+j}, v{P+10*c+j}, v{Sx+2*c+1}, 0')
    for j in range(8):
        for c in range(4):
            p(f'v_dot2_f32_bf16 v{KS+8*c+j}, v{P+10*c+j+2}, v{Sx+2*c}, v{KS+8*c+j}')
    p('s_waitcnt lgkmcnt(0)')
    for c in range(4):
        for j in range(8):
            if c & 1: p(f'v_and_b32 v{P+8*c+j}, 0xffff0000, v{Vv+2*j+(c>>1)}')
            else: p(f'v_lshlrev_b32 v{P+8*c+j}, 16, v{Vv+2*j+(c>>1)}')
        for j in range(0, 8, 2):
            p(f'v_pk_mul_f32 {vr(KS+8*c+j,2)}, {vr(KS+8*c+j,2)}, {vr(P+8*c+j,2)}')
        for q in range(4):
            p(f'v_cvt_pk_bf16_f32 v{OUT+4*c+q}, v{KS+8*c+7-2*q}, v{KS+8*c+6-2*q}')
        so = '0' if c == 0 else f's{11+c}'
        p(f'buffer_store_dwordx4 {vr(OUT+4*c,4)}, v6, s[52:55], {so} offen{sc}')

HD, HP, HT = 144, 160, 164
QR, XS = 180, 196
vHa, vXa, vEa, vZw, vZr, vQo, vOo, vLb, vXw = 212, 216, 217, 218, 219, 220, 221, 222, 226

def a2_addr(p):
    srd(p, 56, P_H, SZ_A)
    p('s_lshl_b32 s15, s6, 3')
    p(f's_add_u32 s15, s15, s{sW}')
    p('s_lshl_b32 s60, s15, 12')
    p('v_lshlrev_b32 v223, 4, v1')
    p('v_add_u32 v224, s60, v223')
    p('s_lshr_b32 s61, s15, 1')
    p('s_lshl_b32 s61, s61, 2')
    p(f's_load_dword s62, s[{P_D}:{P_D+1}], s61')
    p(f's_mul_i32 s63, s{sW}, {HS}')
    p(f's_mul_i32 s67, s{sW}, {XS_}')
    p(f's_add_u32 s67, s67, {XB}')
    p(f'v_add_u32 v{vLb}, s63, v223')
    p(f'v_add_u32 v{vXw}, s67, v223')
    p('v_lshlrev_b32 v227, 3, v1')
    p('v_add_u32 v225, s67, v227')
    p('v_add_u32 v227, s63, v227')
    p('v_and_b32 v228, 15, v1')
    p('v_lshrrev_b32 v229, 4, v1')
    p('v_and_b32 v230, 1, v1')
    p('v_cmp_eq_u32 vcc, 1, v230')
    p(f'v_mov_b32 v231, {H1}')
    p('v_lshlrev_b32 v230, 5, v228')
    p('v_cndmask_b32 v231, v231, 2, vcc')
    p('v_lshl_add_u32 v231, v228, 1, v231')
    p('v_lshl_add_u32 v231, v229, 4, v231')
    p(f'v_add_u32 v{vHa}, s63, v231')
    for i in range(1, 4):
        p(f'v_add_u32 v{vHa+i}, {1024*i}, v{vHa}')
    p('v_sub_u32 v231, 480, v230')
    p('v_lshl_add_u32 v231, v229, 4, v231')
    p(f'v_add_u32 v{vXa}, s67, v231')
    p('v_sub_u32 v231, 504, v230')
    p('v_lshlrev_b32 v232, 3, v229')
    p('v_sub_u32 v231, v231, v232')
    p(f'v_add_u32 v{vEa}, s67, v231')
    p('v_add_u32 v231, v230, v232')
    p(f'v_add_u32 v{vZw}, s63, v231')
    p('v_bfe_u32 v231, v1, 2, 2')
    p(f'v_mul_u32_u24 v231, {HS}, v231')
    p('v_lshl_add_u32 v231, v229, 5, v231')
    p('v_and_b32 v232, 3, v1')
    p('v_lshl_add_u32 v231, v232, 3, v231')
    p(f's_lshl_b32 s64, s{sW}, 9')
    p(f'v_add_u32 v{vZr}, s64, v231')
    p(f's_lshl_b32 s64, s{sW}, 8')
    p('v_add_u32 v231, s64, v1')
    p('s_lshl_b32 s65, s6, 4')
    p(f'v_mul_u32_u24 v{vQo}, 1152, v231')
    p(f'v_add_u32 v{vQo}, s65, v{vQo}')
    p(f'v_mul_u32_u24 v{vOo}, 2304, v231')
    p(f'v_add_u32 v{vOo}, s65, v{vOo}')
    p('s_add_u32 s68, s6, 144')
    p('s_and_b32 s9, s68, 0xf8')
    p(f's_mul_i32 s68, s68, {FLS}')
    p(f's_mul_i32 s9, s9, {FLS}')
    p(f'v_mul_u32_u24 v233, {FLS}, v1')
    p('v_add_u32 v233, s9, v233')
    p('s_mov_b32 s66, 0xff')
    p('v_mov_b32 v228, 0')
    p('v_mov_b32 v229, 0')

def a2_hstage(p):
    p('s_waitcnt vmcnt(5)')
    for i in range(4):
        p(f'ds_read_b128 {vr(HD+4*i,4)}, v{vLb} offset:{32+1024*i}')
        p(f'ds_read_b32 v{HP+i}, v{vLb} offset:{28+1024*i}')
    for i in range(4):
        p(f's_waitcnt lgkmcnt({6-2*i if i < 3 else 0})' if i == 0 else f's_waitcnt lgkmcnt({6-2*i+i})')
        p(f'v_alignbit_b32 v{HT+4*i}, v{HD+4*i}, v{HP+i}, 16')
        for d in range(1, 4):
            p(f'v_alignbit_b32 v{HT+4*i+d}, v{HD+4*i+d}, v{HD+4*i+d-1}, 16')
        p(f'ds_write_b128 v{vLb}, {vr(HT+4*i,4)} offset:{H1+28+1024*i}')

def a2_qloads(p):
    srd(p, 40, P_Q, SZ_A)
    for j in range(4):
        p(f's_mov_b32 s65, {64*1152*j}')
        p(f'buffer_load_dwordx4 {vr(QR+4*j,4)}, v{vQo}, s[40:43], s65 offen')
    return 4

def a2_main(p, k, sc, qlater):
    srd(p, 52, P_WS, SZ_A, WS_XR)
    for i in range(4):
        p(f'buffer_load_dwordx4 {vr(XS+4*i,4)}, v224, s[52:55], 0 offen offset:{1024*i}{sc}')
    p('s_mov_b32 exec_hi, 0x0fffffff')
    p('ds_write_b64 v225, v[228:229] offset:4096')
    p('s_mov_b32 exec_hi, -1')
    FA = [10, 74]; FB = [42, 106]; ACC = 138
    def a_reads(st, b):
        r = []
        for a in range(8):
            o = 128 * (a & 1) + 16 * b
            r.append(f'ds_read2_b32 {vr(FA[st]+4*a,2)}, v{vHa+(a>>1)} offset0:{o} offset1:{o+1}')
            r.append(f'ds_read2_b32 {vr(FA[st]+4*a+2,2)}, v{vHa+(a>>1)} offset0:{o+2} offset1:{o+3}')
        return r
    def b_reads(st, b):
        return [f'ds_read_b128 {vr(FB[st]+4*e,4)}, v{vXa} offset:{64*(56-8*e+b)}' for e in range(8)]
    def reads(st, b):
        A, B = a_reads(st, b), b_reads(st, b)
        out = []
        for i in range(8):
            out += [B[i], A[2*i], A[2*i+1]]
        return out
    def mfmas(st):
        out = []
        for s_ in range(8):
            for a in range(8):
                for e in range(8):
                    if a + e <= 7 and max(a, e) == s_:
                        n = a + e
                        out.append(f'v_mfma_f32_16x16x32_bf16 {vr(ACC+4*n,4)}, {vr(FA[st]+4*a,4)}, {vr(FB[st]+4*e,4)}, {vr(ACC+4*n,4)}')
        return out
    for i in range(32):
        p(f'v_mov_b32 v{ACC+i}, 0')
    p('s_waitcnt lgkmcnt(0)')
    for x in a_reads(0, 0): p(x)
    for i in range(4):
        p(f's_waitcnt vmcnt({3-i})')
        p(f'ds_write_b128 v{vXw}, {vr(XS+4*i,4)} offset:{1024*i}')
    p('s_waitcnt lgkmcnt(0)')
    stamp(p, 13)
    for x in b_reads(0, 0): p(x)
    p('s_mov_b32 s64, 0')
    p.label(f'L_a2loop_{k}')
    p('s_waitcnt lgkmcnt(0)')
    for x in interleave(mfmas(0), reads(1, 1), lead=1, frac=FR): p(x)
    p('s_waitcnt lgkmcnt(0)')
    for x in interleave(mfmas(1), reads(0, 2), lead=1, frac=FR): p(x)
    p('s_cmp_lg_u32 s64, 0')
    p(f's_cbranch_scc1 L_a2nq_{k}')
    a2_qloads(p)
    p.label(f'L_a2nq_{k}')
    for i in range(4):
        p(f'v_add_u32 v{vHa+i}, 128, v{vHa+i}')
    p(f'v_add_u32 v{vXa}, 128, v{vXa}')
    p('s_add_u32 s64, s64, 1')
    p('s_cmp_lt_u32 s64, 4')
    p(f's_cbranch_scc1 L_a2loop_{k}')
    KV = 10
    p('s_waitcnt lgkmcnt(0)')
    stamp(p, 14)
    for n in range(8):
        p(f'ds_read_b64 {vr(KV+2*n,2)}, v{vEa} offset:{512*(7-n)}')
    p('s_and_b32 s61, s15, 1')
    p('s_lshl_b32 s61, s61, 4')
    p('s_lshr_b32 s62, s62, s61')
    p('s_lshl_b32 s62, s62, 16')
    T = 42
    for n in range(8):
        p(f's_waitcnt lgkmcnt({7-n})' if n < 8 else '')
        d0, d1 = KV + 2*n, KV + 2*n + 1
        t = T + 4*n
        p(f'v_and_b32 v{t}, 0xffff0000, v{d1}')
        p(f'v_lshlrev_b32 v{t+1}, 16, v{d1}')
        p(f'v_and_b32 v{t+2}, 0xffff0000, v{d0}')
        p(f'v_lshlrev_b32 v{t+3}, 16, v{d0}')
        for rr in range(4):
            p(f'v_fmac_f32 v{ACC+4*n+rr}, s62, v{t+rr}')
        p(f'v_cvt_pk_bf16_f32 v{t}, v{ACC+4*n}, v{ACC+4*n+1}')
        p(f'v_cvt_pk_bf16_f32 v{t+1}, v{ACC+4*n+2}, v{ACC+4*n+3}')
    for n in range(8):
        p(f'ds_write_b64 v{vZw}, {vr(T+4*n,2)} offset:{512*n}')
    srd(p, 44, P_OUT, SZ_OUT)
    p('s_waitcnt lgkmcnt(0)')
    stamp(p, 15)
    p('s_barrier')
    stamp(p, 16)
    Z = 74
    for j in range(4):
        p(f'ds_read_b64_tr_b16 {vr(Z+4*j,2)}, v{vZr} offset:{128*j}')
        p(f'ds_read_b64_tr_b16 {vr(Z+4*j+2,2)}, v{vZr} offset:{4*HS+128*j}')
    p('s_waitcnt vmcnt(0)')
    stamp(p, 17)
    U = 106
    for j in range(4):
        p(f's_waitcnt lgkmcnt({6-2*j})')
        for d in range(4):
            z, q = Z + 4*j + d, QR + 4*j + d
            p(f'v_lshlrev_b32 v{U}, 16, v{z}')
            p(f'v_lshlrev_b32 v{U+1}, 16, v{q}')
            p(f'v_and_b32 v{U+2}, 0xffff0000, v{z}')
            p(f'v_and_b32 v{U+3}, 0xffff0000, v{q}')
            p(f'v_mul_f32 v{U}, v{U}, v{U+1}')
            p(f'v_mul_f32 v{U+2}, v{U+2}, v{U+3}')
            p(f'v_cvt_pk_bf16_f32 v{z}, v{U}, v{U+2}')
            U = 106 + (U - 106 + 4) % 16
        p(f's_mov_b32 s64, {64*2304*j}')
        p(f'buffer_store_dwordx4 {vr(Z+4*j,4)}, v{vOo}, s[44:47], s64 offen')

WPS = 1056
WOFF = 16384
STG = WOFF + 32 * WPS
WOB = 0
KQS = 304
KQB = 73728
VTB = KQB + 128 * KQS
VP = 73 * 144
OB = VTB + 2 * VP
SCR = OB + 18432
RED = KQB
assert SCR + 1024 <= LDS_BYTES and 3 * STG <= SCR
ACCB = 64
SET = [(128, 144), (160, 176)]
vD = [2, 3, 4, 4, 4, 4]
vXb0, vXb1, vWb = 8, 9, 10
vXa0, vXa1, vWa = 11, 12, 13
vKQ, vVT, vWo = 14, 15, 16
vQm = 17
vBias, vBias0 = 24, 28
vOst, vOg = 23, 32
vTmp = 33
vKf, vV0, vV1, vOw = 5, 6, 7, 21
vOw4 = [21, 22, 56, 57]
sB = [84, 85, 86, 87, 88, 89]
sO = [74, 75, 76, 77, 78, 79]
sDst, sStage, sNext, sChunk = 80, 81, 82, 83
SRDx, SRDw = 40, 44

def b_decode(p):
    p('s_and_b32 s6, s4, 1')
    p('s_mul_i32 s6, s6, 9')
    p('s_lshr_b32 s8, s5, 1')
    p('s_add_u32 s6, s6, s8')
    p('s_and_b32 s7, s4, 6')
    p('s_and_b32 s8, s5, 1')
    p('s_add_u32 s7, s7, s8')
    p('s_mul_i32 s8, s6, 114')

def b1_dma_addr(p):
    t = vTmp
    p(f's_and_b32 s9, s{sW}, 3')
    p('s_lshl_b32 s9, s9, 5')
    p(f's_lshr_b32 s10, s{sW}, 2')
    p('s_add_u32 s9, s9, s10')
    p('s_add_u32 s9, s9, s8')
    p(f'v_lshrrev_b32 v{t}, 3, v1')
    p(f'v_lshl_add_u32 v{t+1}, v{t}, 1, s9')
    p(f'v_mul_u32_u24 v{t+1}, 1152, v{t+1}')
    p(f'v_lshrrev_b32 v{t+2}, 4, v1')
    p(f'v_and_b32 v{t+3}, 7, v1')
    p(f'v_xor_b32 v{t+2}, v{t+2}, v{t+3}')
    p(f'v_lshl_add_u32 v2, v{t+2}, 4, v{t+1}')
    p(f'v_xor_b32 v3, 64, v2')
    p(f'v_add_u32 v3, {16*1152}, v3')
    p('v_cmp_le_u32 vcc, 27, v1')
    p(f'v_subrev_u32 v{t}, 27, v1')
    p(f'v_mov_b32 v{t+1}, {4*3456}')
    p(f'v_cndmask_b32 v{t}, v1, v{t}, vcc')
    p(f'v_cndmask_b32 v{t+1}, 0, v{t+1}, vcc')
    p(f'v_lshl_add_u32 v{t+1}, v{t}, 4, v{t+1}')
    p(f'v_cmp_gt_u32 vcc, 9, v{t}')
    p(f'v_cmp_le_u32 s[10:11], 18, v{t}')
    p(f'v_mov_b32 v{t+2}, -144')
    p(f'v_mov_b32 v{t+3}, 1152')
    p(f'v_cndmask_b32 v{t+2}, v{t+2}, v{t+3}, vcc')
    p(f'v_mov_b32 v{t+3}, 2016')
    p('v_cmp_le_u32 vcc, 54, v1')
    p(f'v_cndmask_b32 v{t+2}, v{t+2}, v{t+3}, s[10:11]')
    p('s_mul_i32 s10, s7, 144')
    p(f'v_mov_b32 v{t+3}, {OOB}')
    p(f'v_add3_u32 v4, v{t+1}, v{t+2}, s10')
    p(f'v_cndmask_b32 v4, v4, v{t+3}, vcc')
    p(f's_lshl_b32 s{sB[0]}, s{sW}, 11')
    p(f's_add_u32 s{sB[1]}, s{sB[0]}, 1024')
    p(f's_mul_i32 s{sB[2]}, s{sW}, {4*WPS}')
    p(f's_add_u32 s{sB[2]}, s{sB[2]}, {WOFF}')
    for n in range(1, 4): p(f's_add_u32 s{sB[2+n]}, s{sB[2]}, {WPS*n}')
    p(f's_mov_b32 s{sO[0]}, 0')
    p(f's_mov_b32 s{sO[1]}, 0')
    p(f's_mul_i32 s{sO[2]}, s{sW}, {8*3456}')
    for n in range(1, 4): p(f's_add_u32 s{sO[2+n]}, s{sO[2]}, {3456*n}')
    p(f's_mov_b32 s{sDst}, 0')

def dma_slot(i):
    srd_ = SRDx if i < 2 else SRDw
    return [f's_add_u32 m0, s{sB[i]}, s{sDst}', f'buffer_load_dwordx4 v{vD[i]}, s[{srd_}:{srd_+3}], s{sO[i]} offen lds']

def dma_advance(lo=0, hi=6):
    return [f's_add_u32 s{sO[i]}, s{sO[i]}, {128 if i < 2 else 221184}' for i in range(lo, hi)]

def b1_consts():
    p = Prog()
    t = vTmp
    c, g = t, t + 1
    p(f'v_and_b32 v{c}, 15, v1')
    p(f'v_lshrrev_b32 v{g}, 4, v1')
    p(f's_and_b32 s14, s{sW}, 1')
    p(f's_lshr_b32 s15, s{sW}, 1')
    p(f'v_lshrrev_b32 v{t+2}, 1, v{c}')
    p(f'v_xor_b32 v{t+2}, v{t+2}, v{g}')
    p(f'v_lshlrev_b32 v{t+2}, 4, v{t+2}')
    p(f'v_lshl_add_u32 v{t+2}, v{c}, 7, v{t+2}')
    p('s_lshl_b32 s9, s14, 13')
    p(f'v_add_u32 v{vXb0}, s9, v{t+2}')
    p(f'v_xor_b32 v{vXb1}, 64, v{vXb0}')
    p(f'v_lshrrev_b32 v{t+2}, 2, v1')
    p(f'v_mul_u32_u24 v{t+2}, {WPS}, v{t+2}')
    p(f'v_and_b32 v{t+3}, 3, v1')
    p(f'v_lshl_add_u32 v{t+2}, v{t+3}, 3, v{t+2}')
    p('s_lshl_b32 s9, s15, 2')
    p('s_mul_i32 s10, s15, 3')
    p('s_add_u32 s10, s10, 2')
    p('s_cmp_lt_u32 s15, 2')
    p('s_cselect_b32 s70, s9, s10')
    p('s_lshl_b32 s9, s70, 5')
    p(f's_add_u32 s10, s9, {WOFF}')
    p(f'v_add_u32 v{vWb}, s10, v{t+2}')
    p(f'v_mov_b32 v{vXa1}, v{vXb1}')
    p(f'v_mov_b32 v{vWa}, v{vWb}')
    for i in range(64):
        p(f'v_mov_b32 v{ACCB+i}, 0')
    p(f's_mul_i32 s10, s14, {64*KQS}')
    p(f's_add_u32 s10, s10, {KQB}')
    p('s_add_u32 s9, s9, s10')
    p(f'v_mul_u32_u24 v{t+2}, {KQS}, v{c}')
    p(f'v_lshl_add_u32 v{t+3}, v{g}, 3, v{t+2}')
    p(f'v_add_u32 v{vKQ}, s9, v{t+3}')
    p('s_lshl_b32 s9, s15, 5')
    p('s_add_u32 s9, s9, s10')
    p(f'v_lshl_add_u32 v{t+3}, v{g}, 4, v{t+2}')
    p(f'v_add_u32 v{vKf}, s9, v{t+3}')
    p(f'v_mul_u32_u24 v{t+2}, 144, v{c}')
    p(f'v_lshl_add_u32 v{t+2}, v{g}, 3, v{t+2}')
    p(f's_mul_i32 s9, s14, {VP}')
    p(f's_add_u32 s9, s9, {VTB}')
    p('s_mul_i32 s10, s70, 2304')
    p('s_add_u32 s10, s10, s9')
    p(f's_sub_u32 s10, s10, {9*2304}')
    p(f'v_add_u32 v{vVT}, s10, v{t+2}')
    p('s_mul_i32 s10, s15, 2592')
    p('s_add_u32 s10, s10, s9')
    p(f'v_add_u32 v{vV0}, s10, v{t+2}')
    p(f'v_cmp_gt_u32 vcc, 2, v{c}')
    p(f's_add_u32 s9, s9, {72*144}')
    p(f'v_add_u32 v{vV1}, {16*144}, v{vV0}')
    p(f'v_lshl_add_u32 v{t+3}, v{g}, 3, s9')
    p(f'v_cndmask_b32 v{vV1}, v{t+3}, v{vV1}, vcc')
    p('s_mul_i32 s9, s14, 9216')
    p('s_mul_i32 s10, s15, 36')
    p('s_add_u32 s9, s9, s10')
    p(f's_add_u32 s9, s9, {OB}')
    p(f'v_add_u32 v{vOw4[0]}, s9, v{t+2}')
    for i in range(1, 4): p(f'v_add_u32 v{vOw4[i]}, {2304*i}, v{vOw4[0]}')
    p(f'v_lshlrev_b32 v{t+2}, 2, v{g}')
    p(f'v_subrev_u32 v{t+3}, s15, v{t+2}')
    for i in range(4):
        p(f'v_add_u32 v{t+4+i}, {i}, v{t+3}')
    for i in range(4):
        p(f'v_cmp_gt_u32 s[{10+2*(i&1)}:{11+2*(i&1)}], 9, v{t+4+i}')
        if i & 1:
            p('s_nop 0')
            p(f'v_cndmask_b32 v{vQm+i-1}, 0, -1, s[10:11]')
            p(f'v_cndmask_b32 v{vQm+i}, 0, -1, s[12:13]')
    p(f'v_sub_u32 v{t+2}, v{c}, v{t+2}')
    p(f'v_cmp_ge_i32 s[72:73], -6, v{t+2}')
    p(f'v_mov_b32 v{t+5}, 0xf149f2ca')
    for rr in range(4):
        p(f'v_subrev_u32 v{t+3}, {rr}, v{t+2}')
        p(f'v_and_b32 v{t+4}, 8, v{t+3}')
        p(f'v_cmp_ge_u32 s[10:11], 7, v{t+3}')
        p(f'v_cmp_eq_u32 vcc, 0, v{t+4}')
        p('s_nop 0')
        p(f'v_cndmask_b32 v{vBias0+rr}, v{t+5}, 0, s[10:11]')
        p(f'v_cndmask_b32 v{vBias+rr}, v{t+5}, 0, vcc')
    p(f'v_and_b32 v{t+2}, 127, v0')
    p(f'v_and_b32 v{t+3}, 1, v0')
    p(f'v_mul_u32_u24 v{t+3}, 9216, v{t+3}')
    p(f'v_lshrrev_b32 v{t+4}, 1, v{t+2}')
    p(f'v_mul_u32_u24 v{t+4}, 144, v{t+4}')
    p('s_lshl_b32 s9, s15, 4')
    p(f's_add_u32 s9, s9, {OB}')
    p(f'v_add3_u32 v{vOg}, v{t+3}, v{t+4}, s9')
    p('s_cmp_eq_u32 s6, 0')
    p('s_cselect_b32 s9, 0, 14')
    p(f'v_cmp_gt_u32 vcc, s9, v{t+2}')
    p(f'v_add_u32 v{t+3}, s8, v{t+2}')
    p(f'v_lshrrev_b32 v{t+4}, 4, v{t+3}')
    p(f'v_mul_u32_u24 v{t+4}, 18432, v{t+4}')
    p(f'v_and_b32 v{t+3}, 15, v{t+3}')
    p(f'v_lshl_add_u32 v{vOst}, v{t+3}, 4, v{t+4}')
    p(f'v_mov_b32 v{t+3}, {OOB}')
    p(f'v_cndmask_b32 v{vOst}, v{vOst}, v{t+3}, vcc')
    p('s_cmp_ge_u32 s5, 9')
    p('s_cselect_b32 s9, 1, 0')
    p('s_lshl_b32 s66, s4, 1')
    p('s_add_u32 s66, s66, s9')
    p('s_mul_i32 s9, s9, 9')
    p('s_sub_u32 s67, s5, s9')
    p(f'v_lshrrev_b32 v{t}, 3, v1')
    p(f'v_mul_u32_u24 v{t}, 1152, v{t}')
    p(f'v_bfe_u32 v{t+1}, v1, 4, 1')
    p(f'v_lshlrev_b32 v{t+1}, 1, v{t+1}')
    p(f'v_and_b32 v{t+2}, 7, v1')
    p(f'v_xor_b32 v{t+1}, v{t+1}, v{t+2}')
    p('s_lshl_b32 s9, s14, 2')
    p(f'v_xor_b32 v{t+1}, s9, v{t+1}')
    p('s_lshl_b32 s9, s67, 7')
    p(f'v_add_u32 v{t}, s9, v{t}')
    p(f'v_lshl_add_u32 v{vWo}, v{t+1}, 4, v{t}')
    b2_addr(p)
    return glue_scc(p.lines)

def b1_variant(p, k, var):
    types = [['kq']*4, ['kq', 'v', 'v'], ['v']*3][var]
    nT = len(types)
    def reads(st, ks, xa):
        X, W = SET[st]
        r = [f'ds_read_b128 {vr(X+4*t,4)}, v{xa} offset:{2048*t}' for t in range(4)]
        for j in range(nT):
            for hf in range(2):
                r.append(f'ds_read_b64_tr_b16 {vr(W+4*j+2*hf,2)}, v{vWa} offset:{16*WPS*ks+432*hf+32*j}')
        return r
    def mfmas(st):
        X, W = SET[st]
        out = []
        for j in range(nT):
            for t in range(4):
                a = vr(ACCB+16*j+4*t, 4)
                if types[j] == 'kq': out.append(f'v_mfma_f32_16x16x32_bf16 {a}, {vr(W+4*j,4)}, {vr(X+4*t,4)}, {a}')
                else: out.append(f'v_mfma_f32_16x16x32_bf16 {a}, {vr(X+4*t,4)}, {vr(W+4*j,4)}, {a}')
        return out
    L = f'{k}_{var}'
    X_ = os.environ.get('X', '')
    global dma_slot
    ds0 = dma_slot
    if 'd' in X_: dma_slot = lambda i: []
    if 'r' in X_: reads = lambda st, ks, xa: []
    if 'm' in X_: mfmas = lambda st: ['s_nop 0'] * 4
    for x in reads(0, 0, vXb0): p(x)
    for x in dma_slot(0) + dma_slot(1) + dma_slot(2): p(x)
    if PFB and var < 2:
        p(f's_cmp_lt_u32 s{sW}, {PFB-1}')
        p(f's_cbranch_scc1 L_b1loop_{L}')
        for x in pf_loads(246, 247, 60, 61, 248): p(x)
    p.label(f'L_b1loop_{L}')
    p('s_waitcnt lgkmcnt(0)')
    sec = interleave(reads(1, 1, vXa1), dma_slot(3) + dma_slot(4) + dma_slot(5))
    mf = mfmas(0)
    nh = len(mf) - 4
    for x in interleave(mf[:nh], sec, lead=1, frac=FR2): p(x)
    p(f's_cmp_ge_u32 s{sChunk}, 6')
    p(f's_cbranch_scc1 L_b1sp_{L}')
    upd = [f's_mov_b32 s{sDst}, s{sStage}'] + dma_advance()
    for x in interleave(mf[nh:nh+2], upd): p(x)
    p.label(f'L_b1mid_{L}')
    upd = [f'v_add_u32 v{vXa0}, s{sNext}, v{vXb0}', f'v_add_u32 v{vXa1}, s{sNext}, v{vXb1}', f's_mov_b32 s{sStage}, s{sNext}', f's_add_u32 s{sChunk}, s{sChunk}, 1']
    for x in interleave(mf[nh+2:], upd): p(x)
    p('s_waitcnt vmcnt(6) lgkmcnt(0)')
    p('s_barrier')
    if PROF == 2:
        p('s_memtime s[96:97]')
        p(f's_add_u32 m0, s{sChunk}, 39')
        p('s_waitcnt lgkmcnt(0)')
        p('v_writelane_b32 v253, s96, m0')
    mf = mfmas(1)
    p(mf[0])
    p(f'v_add_u32 v{vWa}, s{sNext}, v{vWb}')
    sec = interleave(reads(0, 0, vXa0), dma_slot(0) + dma_slot(1) + dma_slot(2))
    sec.append(f's_add_u32 s{sNext}, s{sStage}, {STG}\ns_cmp_eq_u32 s{sNext}, {3*STG}\ns_cselect_b32 s{sNext}, 0, s{sNext}')
    for x in interleave(mf[1:-1], sec, lead=1, frac=FR): p(x)
    p(f's_cmp_lt_u32 s{sChunk}, 9')
    p(mf[-1])
    p(f's_cbranch_scc1 L_b1loop_{L}')
    dma_slot = ds0
    stamp(p, 2, f'b1b_{L}')
    Z = SET[0][0]
    p('s_waitcnt lgkmcnt(0)')
    if var == 0:
        p(f'v_lshrrev_b32 v{Z}, 5, v1')
        p(f'v_mul_u32_u24 v{Z}, {VP}, v{Z}')
        p(f'v_and_b32 v{Z+1}, 31, v1')
        p(f'v_lshl_add_u32 v{Z}, v{Z+1}, 2, v{Z}')
        p(f'v_add_u32 v{Z}, {VTB+72*144}, v{Z}')
        p(f'v_mov_b32 v{Z+1}, 0x3f803f80')
        p(f'ds_write_b32 v{Z}, v{Z+1}')
    T = Z + 8
    u = 0
    for j in range(nT):
        if var == 2 and j == 2:
            p('s_mov_b32 exec_lo, 0x00ff00ff')
            p('s_mov_b32 exec_hi, 0x00ff00ff')
        for t in range(4):
            a = ACCB + 16*j + 4*t
            d = T + 2*(u % 8); u += 1
            p(f'v_cvt_pk_bf16_f32 v{d}, v{a}, v{a+1}')
            p(f'v_cvt_pk_bf16_f32 v{d+1}, v{a+2}, v{a+3}')
            if types[j] == 'kq':
                p(f'ds_write_b64 v{vKQ}, {vr(d,2)} offset:{16*KQS*t+32*j}')
            else:
                p(f'ds_write_b64 v{vVT}, {vr(d,2)} offset:{2304*j+32*t}')
    if var == 2: p('s_mov_b64 exec, -1')
    p(f's_branch L_attn_{k}')
    p.label(f'L_b1sp_{L}')
    for x in mfmas(0)[nh:nh+2]: p(x)
    p(f's_cmp_eq_u32 s{sChunk}, 7')
    p(f's_cbranch_scc1 L_b1sp7_{L}')
    p(f's_cmp_eq_u32 s{sChunk}, 8')
    p(f's_cbranch_scc1 L_b1sp8_{L}')
    for r in (SRDx, SRDw):
        p(f's_mov_b32 s{r}, s{P_WO}')
        p(f's_and_b32 s{r+1}, s{P_WO+1}, 0xffff')
        p(f's_mov_b32 s{r+2}, {SZ_WO}')
    for v in (2, 3, 4): p(f'v_mov_b32 v{v}, v{vWo}')
    nonce_load(p)
    p(f's_mov_b32 s{sDst}, {WOB}')
    p(f's_lshl_b32 s{sB[0]}, s{sW}, 10')
    p(f's_mul_i32 s{sO[0]}, s{sW}, 9216')
    for i in range(1, 6):
        p(f's_add_u32 s{sB[i]}, s{sB[0]}, {8192*i}')
        p(f's_add_u32 s{sO[i]}, s{sO[0]}, {73728*i}')
    p(f's_branch L_b1mid_{L}')
    p.label(f'L_b1sp7_{L}')
    for i in range(3):
        p(f's_add_u32 s{sB[i]}, s{sB[i]}, {8192*6}')
        p(f's_add_u32 s{sO[i]}, s{sO[i]}, {73728*6}')
        p(f's_mov_b32 s{sB[3+i]}, {SCR-WOB}')
        p(f's_mov_b32 s{sO[3+i]}, {OOB}')
    p(f's_branch L_b1mid_{L}')
    p.label(f'L_b1sp8_{L}')
    for i in range(3):
        p(f's_mov_b32 s{sB[i]}, {SCR-WOB}')
        p(f's_mov_b32 s{sO[i]}, {OOB}')
    p(f's_branch L_b1mid_{L}')

def attention(p, k, sc):
    KF, QF, V0, V1 = 64, 80, 96, 106
    S1, S0 = 116, 132
    p.label(f'L_attn_{k}')
    for i in range(2):
        p(f'v_mov_b32 v{V0+i}, 0')
        p(f'v_mov_b32 v{V1+i}, 0')
    p('s_mov_b32 s90, 0x3eae1a93')
    p('s_mov_b32 s91, 0x3eae1a93')
    srd(p, 52, P_WS, SZ_A, WS_O)
    p('s_mul_i32 s9, s7, 9')
    p('s_add_u32 s9, s9, s15')
    p('s_lshl_b32 s9, s9, 8')
    p('s_add_u32 s10, s9, 1024')
    p('s_add_u32 s11, s9, 2048')
    p('s_waitcnt lgkmcnt(0)')
    stamp(p, 3)
    p('s_barrier')
    stamp(p, 4)
    for t in range(4):
        p(f'ds_read_b128 {vr(QF+4*t,4)}, v{vKf} offset:{144+16*KQS*t}')
        p(f'ds_read_b128 {vr(KF+4*t,4)}, v{vKf} offset:{16*KQS*t}')
    for t in range(4):
        p(f'ds_read_b64 {vr(V0+2+2*t,2)}, v{vV0} offset:{32*t}')
        p(f'ds_read_b64 {vr(V1+2+2*t,2)}, v{vV1} offset:{32*t}')
    for t in range(4):
        p(f's_waitcnt lgkmcnt({15-2*t})')
        for i in range(4): p(f'v_and_b32 v{QF+4*t+i}, v{QF+4*t+i}, v{vQm+i}')
    for t in range(4):
        if t == 0: p('s_waitcnt lgkmcnt(8)')
        p(f'v_mfma_f32_16x16x32_bf16 {vr(S1+4*t,4)}, {vr(KF+4*t,4)}, {vr(QF+4*t,4)}, 0')
        if t: p(f'v_mfma_f32_16x16x32_bf16 {vr(S0+4*t,4)}, {vr(KF+4*t-4,4)}, {vr(QF+4*t,4)}, 0')
    stamp(p, 5)
    PF = 156
    M = lambda t: 148 + 2 * t
    M2 = lambda t: 149 + 2 * t
    BC = 'op_sel:[0,0] op_sel_hi:[1,0]'
    for t in range(4):
        for rr in range(4):
            if t: p(f'v_cndmask_b32 v{S1+4*t+rr}, v{S1+4*t+rr}, v{S0+4*t+rr}, s[72:73]')
        for rr in (0, 2):
            p(f'v_pk_fma_f32 {vr(S1+4*t+rr,2)}, {vr(S1+4*t+rr,2)}, s[90:91], {vr((vBias if t else vBias0)+rr,2)}')
        p(f'v_max3_f32 v{M(t)}, v{S1+4*t}, v{S1+4*t+1}, v{S1+4*t+2}')
        p(f'v_max_f32 v{M(t)}, v{M(t)}, v{S1+4*t+3}')
        p(f'v_mov_b32 v{M2(t)}, v{M(t)}')
    for t in range(4): p(f'v_permlane32_swap_b32 v{M(t)}, v{M2(t)}')
    for t in range(4): p(f'v_max_f32 v{M(t)}, v{M(t)}, v{M2(t)}')
    for t in range(4): p(f'v_mov_b32 v{M2(t)}, v{M(t)}')
    for t in range(4): p(f'v_permlane16_swap_b32 v{M(t)}, v{M2(t)}')
    for t in range(4): p(f'v_max_f32 v{M(t)}, v{M(t)}, v{M2(t)}')
    for t in range(4):
        for rr in (0, 2): p(f'v_pk_add_f32 {vr(S1+4*t+rr,2)}, {vr(S1+4*t+rr,2)}, {vr(M(t),2)} {BC} neg_lo:[0,1] neg_hi:[0,1]')
    p('s_waitcnt lgkmcnt(0)')
    stamp(p, 6)
    O0, O1 = 64, 80
    def pv(t):
        p(f'v_mfma_f32_16x16x32_bf16 {vr(O1+4*t,4)}, {vr(V1+2*t,4)}, {vr(PF+4*t,4)}, 0')
        p(f'v_mfma_f32_16x16x32_bf16 {vr(O0+4*t,4)}, {vr(V0+2*t,4)}, {vr(PF+4*t,4)}, 0')
    for rr in range(4): p(f'v_exp_f32 v{S1+rr}, v{S1+rr}')
    for t in range(4):
        if t < 3:
            for rr in range(4): p(f'v_exp_f32 v{S1+4*t+4+rr}, v{S1+4*t+4+rr}')
        p(f'v_cvt_pk_bf16_f32 v{S0+2*(t&1)}, v{S1+4*t}, v{S1+4*t+1}')
        p(f'v_cvt_pk_bf16_f32 v{S0+2*(t&1)+1}, v{S1+4*t+2}, v{S1+4*t+3}')
        if t: pv(t - 1)
        for i in range(2):
            p(f'v_cndmask_b32 v{PF+4*t+i}, 0, v{S0+2*(t&1)+i}, s[72:73]')
            p(f'v_cndmask_b32 v{PF+4*t+2+i}, v{S0+2*(t&1)+i}, 0, s[72:73]')
    PO = 116
    def fin(u):
        for rr in (0, 2): p(f'v_pk_mul_f32 {vr(O0+4*u+rr,2)}, {vr(O0+4*u+rr,2)}, {vr(M(u),2)} {BC}')
        p(f'v_pk_mul_f32 {vr(O1+4*u,2)}, {vr(O1+4*u,2)}, {vr(M(u),2)} {BC}')
        p(f'v_cvt_pk_bf16_f32 v{PO+4*u}, v{O0+4*u}, v{O0+4*u+1}')
        p(f'v_cvt_pk_bf16_f32 v{PO+4*u+1}, v{O0+4*u+2}, v{O0+4*u+3}')
        p(f'v_cvt_pk_bf16_f32 v{PO+4*u+2}, v{O1+4*u}, v{O1+4*u+1}')
        p(f'ds_write2_b32 v{vOw4[u]}, v{PO+4*u}, v{PO+4*u+1} offset0:0 offset1:1')
    p(f'v_rcp_f32 v{M(0)}, v{O1+2}')
    pv(3)
    p(f'v_rcp_f32 v{M(1)}, v{O1+6}')
    fin(0)
    p(f'v_rcp_f32 v{M(2)}, v{O1+10}')
    fin(1)
    p(f'v_rcp_f32 v{M(3)}, v{O1+14}')
    fin(2)
    fin(3)
    p('s_mov_b64 exec, 0xffff')
    for t in range(4):
        p(f'ds_write_b32 v{vOw4[0]}, v{PO+4*t+2} offset:{2304*t+32}')
    p('s_mov_b64 exec, -1')
    p('s_waitcnt lgkmcnt(0)')
    stamp(p, 7)
    p('s_barrier')
    G = 64
    for r in range(3):
        p(f'ds_read_b128 {vr(G+4*r,4)}, v{vOg} offset:{64*r}')
    p('s_waitcnt lgkmcnt(2)')
    p(f'buffer_store_dwordx4 {vr(G,4)}, v{vOst}, s[52:55], s9 offen{sc}')
    p('s_waitcnt lgkmcnt(1)')
    p(f'buffer_store_dwordx4 {vr(G+4,4)}, v{vOst}, s[52:55], s10 offen{sc}')
    p(f's_cmp_ge_u32 s{sW}, 2')
    p(f's_cbranch_scc1 L_ost_{k}')
    p('s_waitcnt lgkmcnt(0)')
    p(f'buffer_store_dwordx4 {vr(G+8,4)}, v{vOst}, s[52:55], s11 offen{sc}')
    p.label(f'L_ost_{k}')

def b2_addr(p):
    t = 58
    p(f'v_lshrrev_b32 v{t}, 4, v1')
    p(f'v_bfe_u32 v{t+1}, v1, 2, 2')
    p(f'v_lshl_add_u32 v{t+2}, v{t}, 3, v{t+1}')
    p(f'v_lshlrev_b32 v{t+2}, 7, v{t+2}')
    p(f'v_and_b32 v{t+3}, 3, v1')
    p(f'v_lshl_add_u32 v{t+2}, v{t+3}, 3, v{t+2}')
    p(f'v_and_b32 v{t+3}, 1, v{t}')
    p(f'v_lshlrev_b32 v{t+3}, 1, v{t+3}')
    p(f'v_lshrrev_b32 v{t+1}, 1, v{t+1}')
    p(f'v_or_b32 v{t+3}, v{t+3}, v{t+1}')
    p(f'v_lshl_add_u32 v{t+2}, v{t+3}, 5, v{t+2}')
    p(f's_lshr_b32 s68, s{sW}, 2')
    p(f's_mul_i32 s9, s68, {9*4096}')
    p(f's_add_u32 s9, s9, {WOB}')
    p(f'v_add_u32 v42, s9, v{t+2}')
    for m in range(1, 4): p(f'v_xor_b32 v{42+m}, {32*m}, v42')
    p('v_lshlrev_b32 v46, 4, v1')
    p('v_add_u32 v47, 4096, v46')
    p('v_add_u32 v48, 8192, v46')
    p(f's_and_b32 s9, s{sW}, 3')
    p('s_lshl_b32 s9, s9, 1')
    p('s_lshl_b32 s10, s66, 3')
    p('s_add_u32 s9, s9, s10')
    p('s_add_u32 s69, s9, s68')
    p('s_xor_b32 s10, s69, 1')
    p('s_mul_i32 s64, s69, 18432')
    p('s_mul_i32 s65, s10, 18432')
    p('s_mul_i32 s9, s68, 9216')
    p('s_add_u32 s64, s64, s9')
    p('s_add_u32 s65, s65, s9')
    p(f'v_and_b32 v{t+1}, 15, v1')
    p('s_lshl_b32 s9, s69, 4')
    p(f'v_add_u32 v{t+1}, s9, v{t+1}')
    p(f'v_mul_u32_u24 v{t+1}, 2304, v{t+1}')
    p(f'v_and_b32 v{t+2}, 1, v{t}')
    p(f'v_lshl_add_u32 v{t+1}, v{t+2}, 5, v{t+1}')
    p(f'v_lshrrev_b32 v{t+2}, 1, v{t}')
    p(f'v_lshl_add_u32 v{t+1}, v{t+2}, 4, v{t+1}')
    p('s_lshl_b32 s9, s67, 7')
    p('s_add_u32 s9, s9, 1152')
    p(f'v_add_u32 v49, s9, v{t+1}')
    p(f's_lshl_b32 s9, s{sW}, 12')
    p('v_add_u32 v54, s9, v46')
    p('v_xor_b32 v55, 0x4000, v54')
    p(f'v_add_u32 v54, {RED}, v54')
    p(f'v_add_u32 v55, {RED}, v55')
    p('s_and_b32 s9, s69, 0xfe')
    p('s_lshl_b32 s9, s9, 4')
    p('s_add_u32 s10, s9, 17')
    p('s_mul_i32 s10, s10, 575')
    p('s_lshr_b32 s10, s10, 16')
    p('s_max_u32 s9, s9, 14')
    p('s_sub_u32 s9, s9, 14')
    p('s_mul_i32 s9, s9, 575')
    p('s_lshr_b32 s9, s9, 16')
    p('v_cmp_gt_u32 vcc, 4, v1')
    p('v_mov_b32 v50, s10')
    p('v_mov_b32 v51, s9')
    p('v_cndmask_b32 v50, v50, v51, vcc')
    p('v_and_b32 v51, 3, v1')
    p('v_lshl_add_u32 v50, v50, 3, v51')
    p('s_lshl_b32 s9, s68, 2')
    p('v_add_u32 v50, s9, v50')
    p(f'v_mul_u32_u24 v50, {FLS}, v50')

def wreads(WF, st, ks):
    r = []
    for m in range(4):
        for hf in range(2):
            r.append(f'ds_read_b64_tr_b16 {vr(WF[st]+4*m+2*hf,2)}, v{42+m} offset:{4096*ks+512*hf}')
    return r
B2WF = [136, 152]

def b2_main(p, k, sc):
    OF, WF, AC = 64, B2WF, 168
    def oload(ks):
        return [f'buffer_load_dwordx4 {vr(OF+8*ks+4*nt,4)}, v{46+ks//4}, s[52:55], s{64+nt} offen offset:{1024*(ks%4)}{sc}' for nt in range(2)]
    LEAD = B2LEAD
    for ks in range(LEAD):
        for x in oload(ks): p(x)
    srd(p, 56, P_OUT, SZ_OUT)
    for ks in range(9):
        st = ks & 1
        issued = min(9, LEAD + ks)
        p(f's_waitcnt vmcnt({2*(issued-ks-1)}) lgkmcnt(0)')
        if ks == 0: stamp(p, 13)
        mf = []
        for m in range(4):
            for nt in range(2):
                a = vr(AC+8*m+4*nt, 4)
                mf.append(f'v_mfma_f32_16x16x32_bf16 {a}, {vr(WF[st]+4*m,4)}, {vr(OF+8*ks+4*nt,4)}, {a if ks else 0}')
        sec = (oload(ks+LEAD) if ks + LEAD < 9 else []) + (wreads(WF, 1-st, ks+1) if ks < 8 else [])
        for x in interleave(mf, sec, lead=1, frac=FR): p(x)
    stamp(p, 14)
    for m in range(4):
        p(f'ds_write_b128 v54, {vr(AC+8*m+4,4)} offset:{1024*m}')
    p('s_waitcnt lgkmcnt(0)')
    p('s_barrier')
    stamp(p, 15)
    R = 64
    for m in range(4):
        p(f'ds_read_b128 {vr(R+4*m,4)}, v55 offset:{1024*m}')
    D = 80
    for m in range(4):
        p(f's_waitcnt lgkmcnt({3-m})')
        for rr in range(4): p(f'v_add_f32 v{R+4*m+rr}, v{R+4*m+rr}, v{AC+8*m+rr}')
        p(f'v_cvt_pk_bf16_f32 v{D+2*m}, v{R+4*m}, v{R+4*m+1}')
        p(f'v_cvt_pk_bf16_f32 v{D+2*m+1}, v{R+4*m+2}, v{R+4*m+3}')
    for mp in range(2):
        p(f'v_permlane16_swap_b32 v{D+4*mp}, v{D+4*mp+2}')
        p(f'v_permlane16_swap_b32 v{D+4*mp+1}, v{D+4*mp+3}')
    for mp in range(2):
        p(f'buffer_store_dwordx4 {vr(D+4*mp,4)}, v49, s[56:59], 0 offen offset:{64*mp}')

def signal_and_wait(p, k, who, sFlagOff, vPoll, sMask, perwave):
    p('s_waitcnt vmcnt(0)')
    stamp(p, 9)
    p('s_barrier')
    stamp(p, 10)
    if not perwave:
        p(f's_cmp_lg_u32 s{sW}, 0')
        p(f's_cbranch_scc1 L_w{who}_{k}')
    p('s_mov_b32 s11, 0')
    p.label(f'L_t{who}_{k}')
    p('v_cmp_eq_u32 vcc, 0, v242')
    p(f's_cbranch_vccz L_u{who}_{k}')
    nonce_load(p)
    p('s_waitcnt vmcnt(0)')
    p('s_add_u32 s11, s11, 1')
    p(f's_cmp_lt_u32 s11, {SPIN_MAX}')
    p(f's_cbranch_scc1 L_t{who}_{k}')
    p.label(f'L_u{who}_{k}')
    srd(p, 48, P_WS, 216*FLS, WS_FLAG)
    p(f'v_mov_b32 v241, s{sFlagOff}')
    p('s_mov_b64 exec, 1')
    if perwave:
        p(f's_cmp_lg_u32 s{sW}, 0')
        p(f's_cbranch_scc1 L_s{who}_{k}')
    p('buffer_store_dwordx2 v[242:243], v241, s[48:51], 0 offen sc1')
    stamp(p, 11)
    p.label(f'L_s{who}_{k}')
    p(f's_mov_b32 exec_lo, {sMask}')
    p.label(f'L_p{who}_{k}')
    p(f'buffer_load_dwordx2 v[244:245], v{vPoll}, s[48:51], 0 offen sc1')
    p('s_waitcnt vmcnt(0)')
    p('v_cmp_ne_u64 vcc, v[244:245], v[242:243]')
    p(f's_cbranch_vccz L_d{who}_{k}')
    if SLEEP: p(f's_sleep {SLEEP}')
    p('s_add_u32 s11, s11, 1')
    p(f's_cmp_lt_u32 s11, {SPIN_MAX}')
    p(f's_cbranch_scc1 L_p{who}_{k}')
    p.label(f'L_d{who}_{k}')
    p('s_mov_b64 exec, -1')
    p.label(f'L_w{who}_{k}')
    if not perwave: p('s_barrier')
    stamp(p, 12)

def pf_addr(p, vi, vx, vw, t):
    p(f'v_mul_u32_u24 v{t}, 10382, v{vi}')
    p(f'v_lshrrev_b32 v{t}, 24, v{t}')
    p(f'v_mul_u32_u24 v{t+1}, 1616, v{t}')
    p(f'v_sub_u32 v{t+1}, v{vi}, v{t+1}')
    p(f'v_cmp_gt_u32 vcc, 1040, v{t+1}')
    p(f'v_mul_u32_u24 v{vx}, 1152, v{t+1}')
    p(f'v_lshl_add_u32 v{vx}, v{t}, 7, v{vx}')
    p(f'v_subrev_u32 v{t+1}, 1040, v{t+1}')
    p(f'v_and_b32 v{t+1}, 0x3ff, v{t+1}')
    p(f'v_mul_u32_u24 v{t+2}, 7282, v{t+1}')
    p(f'v_lshrrev_b32 v{t+2}, 16, v{t+2}')
    p(f'v_mul_u32_u24 v{t+3}, 9, v{t+2}')
    p(f'v_sub_u32 v{t+1}, v{t+1}, v{t+3}')
    p(f'v_lshl_add_u32 v{t+2}, v{t}, 6, v{t+2}')
    p(f'v_mul_u32_u24 v{t+2}, 3456, v{t+2}')
    p(f'v_mul_u32_u24 v{t+3}, 171, v{t+1}')
    p(f'v_lshrrev_b32 v{t+3}, 9, v{t+3}')
    p(f'v_mul_u32_u24 v{t+3}, 768, v{t+3}')
    p(f'v_lshl_add_u32 v{t+3}, v{t+1}, 7, v{t+3}')
    p(f'v_add_u32 v{vw}, v{t+2}, v{t+3}')
    p(f'v_mov_b32 v{t}, {OOB}')
    p(f'v_cndmask_b32 v{vx}, v{t}, v{vx}, vcc')
    p(f'v_cndmask_b32 v{vw}, v{vw}, v{t}, vcc')

def pf_bases(p, sx, sw):
    p(f's_lshr_b32 s{sw}, s4, 1')
    p(f's_mul_i32 s{sw}, s{sw}, 288')
    p(f's_and_b32 s{sw}, s{sw}, 0xffffff80')
    p(f's_and_b32 s{sx}, s4, 1')
    p(f's_mul_i32 s{sx}, s{sx}, {1026*1152}')

def pf_loads(vx, vw, sx, sw, d):
    return [f'buffer_load_dword v{d}, v{vx}, s[40:43], s{sx} offen{nt("p")}', f'buffer_load_dword v{d+1}, v{vw}, s[44:47], s{sw} offen{nt("p")}']

def role_b(p, k):
    if os.environ.get('NOB'):
        p('s_endpgm'); return
    b_decode(p)
    b1_dma_addr(p)
    if PFB:
        p(f's_mul_i32 s9, s{sW}, 23')
        p('s_add_u32 s9, s9, s5')
        p('s_lshl_b32 s9, s9, 6')
        p(f's_cmp_ge_u32 s{sW}, 6')
        p('s_cselect_b32 s9, 15616, s9')
        p('v_add_u32 v60, s9, v1')
        pf_addr(p, 60, 246, 247, vTmp)
        pf_bases(p, 60, 61)
    p('s_waitcnt lgkmcnt(0)')
    prof_srd(p)
    stamp_begin(p)
    srd(p, SRDx, P_X, SZ_A)
    srd(p, SRDw, P_W, SZ_W)
    c0 = []; c1 = []
    for i in range(6): c0 += dma_slot(i)
    c0.append('\n'.join(dma_advance() + [f's_add_u32 s{sDst}, s{sDst}, {STG}']))
    if PFB:
        p(f's_cmp_ge_u32 s{sW}, {PFB-1}')
        p(f's_cbranch_scc1 L_pf1_{k}')
        for x in pf_loads(246, 247, 60, 61, 248): p(x)
        p.label(f'L_pf1_{k}')
    for x in c0: p(x)
    for x in interleave(b1_consts() + ['PF2'], c0, frac=0.5):
        if x != 'PF2': p(x)
    p(f's_mov_b32 s{sChunk}, 0')
    p(f's_mov_b32 s{sStage}, 0')
    p(f's_mov_b32 s{sNext}, {STG}')
    p('s_waitcnt vmcnt(6)')
    p('s_barrier')
    stamp(p, 1, f'b1a_{k}')
    p(f's_cmp_ge_u32 s{sW}, 6')
    p(f's_cbranch_scc1 L_var2_{k}')
    p(f's_cmp_ge_u32 s{sW}, 4')
    p(f's_cbranch_scc1 L_var1_{k}')
    b1_variant(p, k, 0)
    p.label(f'L_var1_{k}')
    b1_variant(p, k, 1)
    p.label(f'L_var2_{k}')
    b1_variant(p, k, 2)
    attention(p, k, ' sc1')
    p('s_lshl_b32 s13, s6, 3')
    p('s_add_u32 s13, s13, s7')
    p(f's_mul_i32 s13, s13, {FLS}')
    stamp(p, 8)
    signal_and_wait(p, k, 'b', 13, 50, 0xff, True)
    for x in wreads(B2WF, 0, 0): p(x)
    b2_main(p, k, ' sc1')
    stamp_end(p, 30, (0, 2, [1, 2, 8, 9, 12, 14, 30, 63]))
    p('s_endpgm')

def role_a(p, k):
    if os.environ.get('NOA'):
        p('s_endpgm'); return
    a_decode(p)
    a1_addr(p)
    p('s_waitcnt lgkmcnt(0)')
    prof_srd(p)
    stamp_begin(p)
    a1_loads(p, k)
    a1_compute(p, ' sc1')
    stamp(p, 2)
    a2_hstage(p)
    stamp(p, 3)
    signal_and_wait(p, k, 'a', 68, 233, 0xff, PWA)
    a2_main(p, k, ' sc1', True)
    stamp_end(p, 30, (144, 10, [1, 9, 12, 14, 30, 63]))
    p('s_endpgm')

def role_c(p, k):
    p('s_sub_u32 s6, s5, 27')
    p('s_lshl_b32 s6, s6, 3')
    p(f's_add_u32 s6, s6, s{sW}')
    p('s_lshl_b32 s7, s6, 6')
    p('v_add_u32 v2, s7, v1')
    p('s_getpc_b64 s[8:9]')
    p.label(f'L_pc_{k}')
    p(f's_sub_u32 s8, s8, L_pc_{k}-{NAME}_kernel')
    p('s_subb_u32 s9, s9, 0')
    p('v_lshlrev_b32 v3, 7, v2')
    p(f'v_cmp_gt_u32 vcc, L_end_{k}-{NAME}_kernel, v3')
    p('v_mov_b32 v5, s9')
    p('v_add_co_u32 v4, s[10:11], s8, v3')
    p('v_addc_co_u32 v5, s[10:11], 0, v5, s[10:11]')
    p('s_and_saveexec_b64 s[12:13], vcc')
    p(f's_cbranch_execz L_nc_{k}')
    p('global_load_dword v10, v[4:5], off')
    p.label(f'L_nc_{k}')
    p('s_mov_b64 exec, s[12:13]')
    p('s_waitcnt lgkmcnt(0)')
    prof_srd(p)
    stamp_begin(p)
    p('s_cmp_lg_u32 s2, 216')
    p(f's_cbranch_scc1 L_nl_{k}')
    p(f's_cmp_lg_u32 s{sW}, 0')
    p(f's_cbranch_scc1 L_nl_{k}')
    p('s_memrealtime s[60:61]')
    srd(p, 56, P_DBG, 256)
    p('s_waitcnt lgkmcnt(0)')
    p('s_or_b32 s60, s60, 1')
    p('v_mov_b32 v30, s60')
    p('v_mov_b32 v31, s61')
    p('v_mov_b32 v32, 0')
    p('s_mov_b64 exec, 1')
    p('buffer_store_dwordx2 v[30:31], v32, s[56:59], 0 offen sc1')
    p('s_mov_b64 exec, -1')
    if os.environ.get('DIAGT'):
        p.label('L_diag')
        p('s_memrealtime s[62:63]')
        p('s_waitcnt lgkmcnt(0)')
        p('s_sub_u32 s62, s62, s60')
        p(f's_cmp_lt_u32 s62, {os.environ["DIAGT"]}')
        p('s_cbranch_scc1 L_diag')
    p.label(f'L_nl_{k}')
    if os.environ.get('NOC'):
        p('s_endpgm'); return
    srd(p, 40, P_X, SZ_A)
    srd(p, 44, P_W, SZ_W)
    srd(p, 48, P_WO, SZ_WO)
    srd(p, 52, P_Q, SZ_A)
    d = 21
    pf_bases(p, 60, 61)
    p(f's_mul_i32 s9, s{sW}, 23')
    p('s_add_u32 s9, s9, s5')
    p('s_sub_u32 s9, s9, 9')
    p('s_lshl_b32 s9, s9, 6')
    p(f's_cmp_ge_u32 s{sW}, 6')
    p('s_cselect_b32 s9, 15616, s9')
    p('v_add_u32 v6, s9, v1')
    pf_addr(p, 6, 7, 8, 11)
    for x in pf_loads(7, 8, 60, 61, d): p(x)
    d += 2
    p(f's_mul_i32 s9, s{sW}, 5')
    p('s_add_u32 s9, s9, s5')
    p('s_sub_u32 s9, s9, 27')
    p('s_lshl_b32 s9, s9, 6')
    for it in range(3):
        p(f'v_add_u32 v6, s9, v1')
        p(f'v_add_u32 v6, {138*64+2560*it}, v6')
        pf_addr(p, 6, 7, 8, 11)
        p(f's_waitcnt vmcnt({0 if it == 0 else 2})')
        for x in pf_loads(7, 8, 60, 61, d): p(x)
        d += 2
    stamp(p, 1)
    p('s_waitcnt vmcnt(0)')
    stamp(p, 2)
    p('s_mul_i32 s14, s4, 144')
    p('s_and_b32 s14, s14, 0xffffff80')
    for it in range(2):
        p(f'v_add_u32 v6, {2560*it}, v2')
        p('v_lshrrev_b32 v7, 1, v6')
        p('v_mul_u32_u24 v7, 1152, v7')
        p('v_and_b32 v8, 1, v6')
        p('v_lshl_add_u32 v7, v8, 7, v7')
        p(f'buffer_load_dword v{d}, v7, s[52:55], s14 offen{nt("q")}'); d += 1
    for it in range(3):
        p(f'v_add_u32 v6, {2560*it}, v2')
        p('v_lshlrev_b32 v6, 7, v6')
        p(f'buffer_load_dword v{d}, v6, s[48:51], 0 offen{nt("o")}'); d += 1
    stamp(p, 3)
    p('s_waitcnt vmcnt(0)')
    stamp_end(p, 30)

def kernel_mega(p):
    k = 'm'
    p(f's_cmp_ge_u32 s2, {GRID}')
    p(f's_cbranch_scc1 L_end_{k}')
    p('s_load_dwordx16 s[16:31], s[0:1], 0')
    p('s_load_dwordx8 s[32:39], s[0:1], 64')
    p('v_lshrrev_b32 v2, 6, v0')
    p('v_and_b32 v1, 63, v0')
    p(f'v_readfirstlane_b32 s{sW}, v2')
    p('s_and_b32 s4, s2, 7')
    p('s_lshr_b32 s5, s2, 3')
    p('s_cmp_ge_u32 s5, 27')
    p(f's_cbranch_scc1 L_roleC_{k}')
    p('s_cmp_ge_u32 s5, 18')
    p(f's_cbranch_scc1 L_roleA_{k}')
    role_b(p, k)
    p.label(f'L_roleA_{k}')
    role_a(p, k)
    p.label(f'L_roleC_{k}')
    role_c(p, k)
    p.label(f'L_end_{k}')
    p('s_endpgm')

SPIN_MAX = 1 << 16
GRID = int(os.environ.get('GRID', '256'))

HEAD = open(os.path.join(os.path.dirname(os.path.abspath(__file__)), 'head.txt')).read()

def emit_kernel(name, fn):
    p = Prog()
    fn(p)
    lines, n = fix_hazards(p.lines, verbose=bool(os.environ.get('HZ')))
    sys.stderr.write(f'{name}: {len(lines)} lines, {n} nops inserted\n')
    body = '\n'.join(('' if l.endswith(':') else '    ') + l for l in lines)
    return f'''.text
.globl {name}
.p2align 8
.type {name},@function
{name}:
{body}
.section .rodata,"a"
.p2align 6
.amdhsa_kernel {name}
  .amdhsa_next_free_vgpr 256
  .amdhsa_next_free_sgpr 102
  .amdhsa_accum_offset 256
  .amdhsa_group_segment_fixed_size 0
  .amdhsa_kernarg_size 96
  .amdhsa_user_sgpr_count 2
  .amdhsa_user_sgpr_kernarg_segment_ptr 1
  .amdhsa_system_sgpr_workgroup_id_x 1
.end_amdhsa_kernel
'''

def main():
    out = HEAD
    out += f'; @launch grid=({GRID},1,1) block=(512,1,1) lds={LDS_BYTES}\n'
    out += '.amdgcn_target "amdgcn-amd-amdhsa--gfx950"\n'
    out += emit_kernel(NAME + '_kernel', kernel_mega)
    sys.stdout.write(out)

if __name__ == '__main__':
    main()
```

```python
import sys, os
sys.path.insert(0, os.path.dirname(os.path.abspath(__file__)))
from asmlib import Prog, fix_hazards

NAME = 'concat_heads__ssm_conv_h3__sliding_local_dilated__prompt'
MODE = os.environ.get('MODE', 'two')
PROF = int(os.environ.get('PROF', '0'))

FR = float(os.environ.get('FR', '0.7'))
FR2 = float(os.environ.get('FR2', '0.9'))
B2LEAD = int(os.environ.get('B2LEAD', '8'))
NT = os.environ.get('NT', 'a')
nt = lambda c: ' nt' if c in NT else ''
PFB = int(os.environ.get('PFB', '3'))
PWA = int(os.environ.get('PWA', '1'))
PRIO = int(os.environ.get('PRIO', '0'))
PF2POS = os.environ.get('PF2POS', 'none')
ADELAY = int(os.environ.get('ADELAY', '2'))
PFL = int(os.environ.get('PFL', '9'))
SZ_A = 2359296
SZ_W = 1990656
SZ_WO = 663552
SZ_OUT = 4718592
WS_XR = 0
WS_O = 0x240000
WS_FLAG = 0x480000
FLS = int(os.environ.get('FLS', '128'))
SLEEP = int(os.environ.get('SLEEP', '1'))
WS_PROF = 16 << 20
OOB = 0x80000000
NB, NA = 144, 72
NWG = NB + NA
LDS_BYTES = 163840

sW = 3
P_Q, P_K, P_V, P_SH, P_H, P_D, P_X, P_W, P_WO, P_OUT, P_DBG, P_WS = [16 + 2 * i for i in range(12)]

def srd(p, dst, ptr, size, off=0):
    if off:
        p(f's_add_u32 s{dst}, s{ptr}, {off}')
        p(f's_addc_u32 s{dst+1}, s{ptr+1}, 0')
        p(f's_and_b32 s{dst+1}, s{dst+1}, 0xffff')
    else:
        p(f's_mov_b32 s{dst}, s{ptr}')
        p(f's_and_b32 s{dst+1}, s{ptr+1}, 0xffff')
    p(f's_mov_b32 s{dst+2}, {size}')
    p(f's_mov_b32 s{dst+3}, 0x20000')

def vr(a, n):
    return f'v[{a}:{a+n-1}]' if n > 1 else f'v{a}'

def interleave(prim, sec, lead=0, frac=1.0):
    out = list(prim[:lead]); prim = prim[lead:]
    n, m = max(1, int(len(prim) * frac)), len(sec)
    j = 0
    for i, x in enumerate(prim):
        while j < m and j * n <= i * m:
            out.append(sec[j]); j += 1
        out.append(x)
    out += sec[j:]
    return out

def glue_scc(lines):
    out = []; i = 0
    while i < len(lines):
        if lines[i].startswith('s_cmp'):
            assert lines[i+1].startswith('s_cselect') or lines[i+1].startswith('s_cbranch'), lines[i:i+2]
            out.append(lines[i] + '\n' + lines[i+1]); i += 2
        else:
            assert not lines[i].startswith(('s_cselect', 's_addc', 's_subb')), lines[i]
            out.append(lines[i]); i += 1
    return out

def stamp(p, idx, uid=None):
    if not PROF: return
    p('s_memtime s[96:97]')
    p('s_waitcnt lgkmcnt(0)')
    p(f'v_writelane_b32 v253, s96, {idx}')

def stamp_begin(p):
    if not PROF: return
    p('v_mov_b32 v253, 0')
    p('s_memrealtime s[96:97]')
    p('s_waitcnt lgkmcnt(0)')
    p('v_writelane_b32 v253, s96, 62')
    stamp(p, 0)

def stamp_end(p, idx, dbg=None):
    if not PROF: return
    stamp(p, idx)
    p('s_memrealtime s[96:97]')
    p('s_waitcnt lgkmcnt(0)')
    p('v_writelane_b32 v253, s96, 63')
    if PROF == 3:
        if dbg:
            wg, base, lst = dbg
            uid = f'dbg{wg}'
            p(f's_cmp_lg_u32 s2, {wg}')
            p(f's_cbranch_scc1 L_{uid}')
            p(f's_cmp_lg_u32 s{sW}, 4')
            p(f's_cbranch_scc1 L_{uid}')
            p('v_readlane_b32 s98, v253, 0')
            p('v_readlane_b32 s99, v253, 62')
            p('v_mov_b32 v252, 0')
            for i, st in enumerate(lst):
                p(f'v_readlane_b32 s97, v253, {st}')
                p('s_nop 3')
                p(f's_sub_u32 s97, s97, {"s99" if st == 63 else "s98"}')
                p(f'v_writelane_b32 v252, s97, {i}')
            srd(p, 92, P_DBG, 256)
            p('v_lshlrev_b32 v254, 2, v1')
            p(f's_mov_b64 exec, {(1 << len(lst)) - 1}')
            p(f'buffer_store_dword v252, v254, s[92:95], 0 offen offset:{4*base}')
            p.label(f'L_{uid}')
        return
    p('s_lshl_b32 s98, s2, 3')
    p(f's_add_u32 s98, s98, s{sW}')
    p('s_lshl_b32 s98, s98, 8')
    p('v_lshl_add_u32 v254, v1, 2, s98')
    p('buffer_store_dword v253, v254, s[92:95], 0 offen')

def prologue(p, k):
    p(f's_cmp_ge_u32 s2, {NWG}')
    p(f's_cbranch_scc1 L_end_{k}')
    p('s_load_dwordx16 s[16:31], s[0:1], 0')
    p('s_load_dwordx8 s[32:39], s[0:1], 64')
    p('v_lshrrev_b32 v2, 6, v0')
    p('v_and_b32 v1, 63, v0')
    p(f'v_readfirstlane_b32 s{sW}, v2')
    p('s_and_b32 s4, s2, 7')
    p('s_lshr_b32 s5, s2, 3')
    p('s_cmp_ge_u32 s5, 18')
    p(f's_cbranch_scc1 L_roleA_{k}')

def prof_srd(p):
    if PROF:
        srd(p, 92, P_WS, 1 << 20, WS_PROF)

HS = 8384
H1 = 4164
XB = 8 * HS
XS_ = 4576
KB = XB
BS = 1088
VB = KB + 33 * BS
assert VB + 32 * BS <= LDS_BYTES

def a_decode(p):
    p('s_mul_i32 s6, s4, 9')
    p('s_add_u32 s6, s6, s5')
    p('s_sub_u32 s6, s6, 18')

def a1_addr(p):
    p('s_lshr_b32 s7, s6, 3')
    p('s_and_b32 s8, s6, 7')
    p('v_and_b32 v7, 7, v1')
    p('v_lshrrev_b32 v8, 3, v1')
    p('v_mul_u32_u24 v2, 1152, v8')
    p('v_lshl_add_u32 v2, v7, 4, v2')
    p('s_lshl_b32 s9, s7, 7')
    p('v_add_u32 v2, s9, v2')
    p(f's_mul_i32 s10, s8, {256*1152}')
    p(f's_mul_i32 s11, s{sW}, {8*1152}')
    p('s_add_u32 s11, s11, s10')
    p(f's_mul_i32 s12, s{sW}, {BS}')
    p(f's_add_u32 s12, s12, {KB+BS}')
    p(f's_sub_u32 s13, s10, {8*1152}')
    p('s_cmp_eq_u32 s8, 0')
    p(f's_cselect_b32 s13, {OOB}, s13')

def a1_loads(p, k):
    if ADELAY == 2:
        nonce_load(p)
        p('s_waitcnt vmcnt(0)')
    srd(p, 40, P_K, SZ_A)
    srd(p, 44, P_V, SZ_A)
    for n in range(4):
        p(f's_add_u32 m0, s12, {8*BS*n}')
        p(f's_add_u32 s14, s11, {64*1152*n}')
        p(f'buffer_load_dwordx4 v2, s[40:43], s14 offen{nt("a")} lds')
        p(f's_add_u32 m0, s12, {8*BS*n+VB-KB-BS}')
        p('s_nop 0')
        p(f'buffer_load_dwordx4 v2, s[44:47], s14 offen{nt("a")} lds')
    p(f's_cmp_lg_u32 s{sW}, 7')
    p(f's_cbranch_scc1 L_nohalo_{k}')
    p(f's_mov_b32 m0, {KB}')
    p('s_nop 0')
    p('buffer_load_dwordx4 v2, s[40:43], s13 offen lds')
    p.label(f'L_nohalo_{k}')
    p('s_lshl_b32 s8, s8, 8')
    p(f's_lshr_b32 s9, s{sW}, 1')
    p(f's_mul_i32 s10, s9, {8*BS}')
    p('s_lshl_b32 s9, s9, 6')
    p('s_add_u32 s8, s8, s9')
    p('s_lshl_b32 s7, s7, 6')
    p(f's_and_b32 s9, s{sW}, 1')
    p('s_lshl_b32 s11, s9, 6')
    p('s_add_u32 s10, s10, s11')
    p(f's_add_u32 s10, s10, {KB}')
    p('s_lshl_b32 s9, s9, 5')
    p('s_add_u32 s7, s7, s9')
    p(f'v_mul_u32_u24 v3, {BS}, v8')
    p('v_lshl_add_u32 v3, v7, 3, v3')
    p('v_add_u32 v3, s10, v3')
    p('v_lshlrev_b32 v9, 3, v8')
    p('v_add_u32 v9, s8, v9')
    p('v_lshlrev_b32 v7, 2, v7')
    p('v_add_u32 v7, s7, v7')
    p('v_lshlrev_b32 v5, 3, v7')
    srd(p, 48, P_SH, 4608)
    p('buffer_load_dwordx4 v[48:51], v5, s[48:51], 0 offen')
    p('buffer_load_dwordx4 v[52:55], v5, s[48:51], 0 offen offset:16')
    p('v_lshlrev_b32 v6, 12, v7')
    p('v_sub_u32 v8, 2040, v9')
    p('v_lshl_add_u32 v6, v8, 1, v6')

def nonce_load(p):
    srd(p, 48, P_DBG, 256)
    p('v_mov_b32 v241, 0')
    p('buffer_load_dwordx2 v[242:243], v241, s[48:51], 0 offen sc1')

def a1_compute(p, sc):
    K, Vv, Sx, P, KS, OUT = 10, 32, 48, 56, 96, 128
    srd(p, 52, P_WS, SZ_A, WS_XR)
    p('s_mov_b32 s10, 0x05040100')
    p('s_mov_b32 s11, 0x07060302')
    p('s_movk_i32 s12, 0x1000')
    p('s_movk_i32 s13, 0x2000')
    p('s_movk_i32 s14, 0x3000')
    if not ADELAY: a2_addr(p)
    p('s_waitcnt vmcnt(0)')
    p('s_barrier')
    stamp(p, 1)
    for i in range(11):
        p(f'ds_read_b64 {vr(K+2*i,2)}, v3 offset:{(5+i)*128 if i < 3 else BS+128*(i-3)}')
    for j in range(4):
        p(f'ds_read_b64 {vr(Vv+2*j,2)}, v3 offset:{VB-KB+128*j}')
    p('s_add_u32 m0, s63, 32')
    p('s_mov_b64 exec, 15')
    p('ds_write_b64 v227, v[228:229]')
    p(f'ds_write_b64 v227, v[228:229] offset:{H1-4}')
    p('s_mov_b64 exec, -1')
    for i in range(4):
        p(f'buffer_load_dwordx4 v223, s[56:59], s60 offen offset:{1024*i}{nt("a")} lds')
    nonce_load(p)
    for i in range(1, 11):
        if i in (1, 4, 7): p(f's_waitcnt lgkmcnt({max(0, 17-1-(i+2 if i < 7 else 10))})')
        for c in range(4):
            p(f'v_perm_b32 v{P+10*c+i-1}, v{K+2*(i-1)+(c>>1)}, v{K+2*i+(c>>1)}, s{10+(c&1)}')
    for j in range(4, 8):
        p(f'ds_read_b64 {vr(Vv+2*j,2)}, v3 offset:{VB-KB+128*j}')
    for j in range(8):
        for c in range(4):
            p(f'v_dot2_f32_bf16 v{KS+8*c+j}, v{P+10*c+j}, v{Sx+2*c+1}, 0')
    for j in range(8):
        for c in range(4):
            p(f'v_dot2_f32_bf16 v{KS+8*c+j}, v{P+10*c+j+2}, v{Sx+2*c}, v{KS+8*c+j}')
    p('s_waitcnt lgkmcnt(0)')
    for c in range(4):
        for j in range(8):
            if c & 1: p(f'v_and_b32 v{P+8*c+j}, 0xffff0000, v{Vv+2*j+(c>>1)}')
            else: p(f'v_lshlrev_b32 v{P+8*c+j}, 16, v{Vv+2*j+(c>>1)}')
        for j in range(0, 8, 2):
            p(f'v_pk_mul_f32 {vr(KS+8*c+j,2)}, {vr(KS+8*c+j,2)}, {vr(P+8*c+j,2)}')
        for q in range(4):
            p(f'v_cvt_pk_bf16_f32 v{OUT+4*c+q}, v{KS+8*c+7-2*q}, v{KS+8*c+6-2*q}')
        so = '0' if c == 0 else f's{11+c}'
        p(f'buffer_store_dwordx4 {vr(OUT+4*c,4)}, v6, s[52:55], {so} offen{sc}')

HD, HP, HT = 144, 160, 164
QR, XS = 180, 196
vHa, vXa, vEa, vZw, vZr, vQo, vOo, vLb, vXw = 212, 216, 217, 218, 219, 220, 221, 222, 226

def a2_addr(p):
    srd(p, 56, P_H, SZ_A)
    p('s_lshl_b32 s15, s6, 3')
    p(f's_add_u32 s15, s15, s{sW}')
    p('s_lshl_b32 s60, s15, 12')
    p('v_lshlrev_b32 v223, 4, v1')
    p('v_add_u32 v224, s60, v223')
    p('s_lshr_b32 s61, s15, 1')
    p('s_lshl_b32 s61, s61, 2')
    p(f's_load_dword s62, s[{P_D}:{P_D+1}], s61')
    p(f's_mul_i32 s63, s{sW}, {HS}')
    p(f's_mul_i32 s67, s{sW}, {XS_}')
    p(f's_add_u32 s67, s67, {XB}')
    p(f'v_add_u32 v{vLb}, s63, v223')
    p(f'v_add_u32 v{vXw}, s67, v223')
    p('v_lshlrev_b32 v227, 3, v1')
    p('v_add_u32 v225, s67, v227')
    p('v_add_u32 v227, s63, v227')
    p('v_and_b32 v228, 15, v1')
    p('v_lshrrev_b32 v229, 4, v1')
    p('v_and_b32 v230, 1, v1')
    p('v_cmp_eq_u32 vcc, 1, v230')
    p(f'v_mov_b32 v231, {H1}')
    p('v_lshlrev_b32 v230, 5, v228')
    p('v_cndmask_b32 v231, v231, 2, vcc')
    p('v_lshl_add_u32 v231, v228, 1, v231')
    p('v_lshl_add_u32 v231, v229, 4, v231')
    p(f'v_add_u32 v{vHa}, s63, v231')
    for i in range(1, 4):
        p(f'v_add_u32 v{vHa+i}, {1024*i}, v{vHa}')
    p('v_sub_u32 v231, 480, v230')
    p('v_lshl_add_u32 v231, v229, 4, v231')
    p(f'v_add_u32 v{vXa}, s67, v231')
    p('v_sub_u32 v231, 504, v230')
    p('v_lshlrev_b32 v232, 3, v229')
    p('v_sub_u32 v231, v231, v232')
    p(f'v_add_u32 v{vEa}, s67, v231')
    p('v_add_u32 v231, v230, v232')
    p(f'v_add_u32 v{vZw}, s63, v231')
    p('v_bfe_u32 v231, v1, 2, 2')
    p(f'v_mul_u32_u24 v231, {HS}, v231')
    p('v_lshl_add_u32 v231, v229, 5, v231')
    p('v_and_b32 v232, 3, v1')
    p('v_lshl_add_u32 v231, v232, 3, v231')
    p(f's_lshl_b32 s64, s{sW}, 9')
    p(f'v_add_u32 v{vZr}, s64, v231')
    p(f's_lshl_b32 s64, s{sW}, 8')
    p('v_add_u32 v231, s64, v1')
    p('s_lshl_b32 s65, s6, 4')
    p(f'v_mul_u32_u24 v{vQo}, 1152, v231')
    p(f'v_add_u32 v{vQo}, s65, v{vQo}')
    p(f'v_mul_u32_u24 v{vOo}, 2304, v231')
    p(f'v_add_u32 v{vOo}, s65, v{vOo}')
    p('s_add_u32 s68, s6, 144')
    p('s_and_b32 s9, s68, 0xf8')
    p(f's_mul_i32 s68, s68, {FLS}')
    p(f's_mul_i32 s9, s9, {FLS}')
    p(f'v_mul_u32_u24 v233, {FLS}, v1')
    p('v_add_u32 v233, s9, v233')
    p('s_mov_b32 s66, 0xff')
    p('v_mov_b32 v228, 0')
    p('v_mov_b32 v229, 0')

def a2_hstage(p):
    p('s_waitcnt vmcnt(5)')
    for i in range(4):
        p(f'ds_read_b128 {vr(HD+4*i,4)}, v{vLb} offset:{32+1024*i}')
        p(f'ds_read_b32 v{HP+i}, v{vLb} offset:{28+1024*i}')
    for i in range(4):
        p(f's_waitcnt lgkmcnt({6-2*i if i < 3 else 0})' if i == 0 else f's_waitcnt lgkmcnt({6-2*i+i})')
        p(f'v_alignbit_b32 v{HT+4*i}, v{HD+4*i}, v{HP+i}, 16')
        for d in range(1, 4):
            p(f'v_alignbit_b32 v{HT+4*i+d}, v{HD+4*i+d}, v{HD+4*i+d-1}, 16')
        p(f'ds_write_b128 v{vLb}, {vr(HT+4*i,4)} offset:{H1+28+1024*i}')

def a2_qloads(p):
    srd(p, 40, P_Q, SZ_A)
    for j in range(4):
        p(f's_mov_b32 s65, {64*1152*j}')
        p(f'buffer_load_dwordx4 {vr(QR+4*j,4)}, v{vQo}, s[40:43], s65 offen')
    return 4

def a2_main(p, k, sc, qlater):
    srd(p, 52, P_WS, SZ_A, WS_XR)
    for i in range(4):
        p(f'buffer_load_dwordx4 {vr(XS+4*i,4)}, v224, s[52:55], 0 offen offset:{1024*i}{sc}')
    p('s_mov_b32 exec_hi, 0x0fffffff')
    p('ds_write_b64 v225, v[228:229] offset:4096')
    p('s_mov_b32 exec_hi, -1')
    FA = [10, 74]; FB = [42, 106]; ACC = 138
    def a_reads(st, b):
        r = []
        for a in range(8):
            o = 128 * (a & 1) + 16 * b
            r.append(f'ds_read2_b32 {vr(FA[st]+4*a,2)}, v{vHa+(a>>1)} offset0:{o} offset1:{o+1}')
            r.append(f'ds_read2_b32 {vr(FA[st]+4*a+2,2)}, v{vHa+(a>>1)} offset0:{o+2} offset1:{o+3}')
        return r
    def b_reads(st, b):
        return [f'ds_read_b128 {vr(FB[st]+4*e,4)}, v{vXa} offset:{64*(56-8*e+b)}' for e in range(8)]
    def reads(st, b):
        A, B = a_reads(st, b), b_reads(st, b)
        out = []
        for i in range(8):
            out += [B[i], A[2*i], A[2*i+1]]
        return out
    def mfmas(st):
        out = []
        for s_ in range(8):
            for a in range(8):
                for e in range(8):
                    if a + e <= 7 and max(a, e) == s_:
                        n = a + e
                        out.append(f'v_mfma_f32_16x16x32_bf16 {vr(ACC+4*n,4)}, {vr(FA[st]+4*a,4)}, {vr(FB[st]+4*e,4)}, {vr(ACC+4*n,4)}')
        return out
    for i in range(32):
        p(f'v_mov_b32 v{ACC+i}, 0')
    p('s_waitcnt lgkmcnt(0)')
    for x in a_reads(0, 0): p(x)
    for i in range(4):
        p(f's_waitcnt vmcnt({3-i})')
        p(f'ds_write_b128 v{vXw}, {vr(XS+4*i,4)} offset:{1024*i}')
    p('s_waitcnt lgkmcnt(0)')
    stamp(p, 13)
    for x in b_reads(0, 0): p(x)
    p('s_mov_b32 s64, 0')
    p.label(f'L_a2loop_{k}')
    p('s_waitcnt lgkmcnt(0)')
    for x in interleave(mfmas(0), reads(1, 1), lead=1, frac=FR): p(x)
    p('s_waitcnt lgkmcnt(0)')
    for x in interleave(mfmas(1), reads(0, 2), lead=1, frac=FR): p(x)
    p('s_cmp_lg_u32 s64, 0')
    p(f's_cbranch_scc1 L_a2nq_{k}')
    a2_qloads(p)
    p.label(f'L_a2nq_{k}')
    for i in range(4):
        p(f'v_add_u32 v{vHa+i}, 128, v{vHa+i}')
    p(f'v_add_u32 v{vXa}, 128, v{vXa}')
    p('s_add_u32 s64, s64, 1')
    p('s_cmp_lt_u32 s64, 4')
    p(f's_cbranch_scc1 L_a2loop_{k}')
    KV = 10
    p('s_waitcnt lgkmcnt(0)')
    stamp(p, 14)
    for n in range(8):
        p(f'ds_read_b64 {vr(KV+2*n,2)}, v{vEa} offset:{512*(7-n)}')
    p('s_and_b32 s61, s15, 1')
    p('s_lshl_b32 s61, s61, 4')
    p('s_lshr_b32 s62, s62, s61')
    p('s_lshl_b32 s62, s62, 16')
    T = 42
    for n in range(8):
        p(f's_waitcnt lgkmcnt({7-n})' if n < 8 else '')
        d0, d1 = KV + 2*n, KV + 2*n + 1
        t = T + 4*n
        p(f'v_and_b32 v{t}, 0xffff0000, v{d1}')
        p(f'v_lshlrev_b32 v{t+1}, 16, v{d1}')
        p(f'v_and_b32 v{t+2}, 0xffff0000, v{d0}')
        p(f'v_lshlrev_b32 v{t+3}, 16, v{d0}')
        for rr in range(4):
            p(f'v_fmac_f32 v{ACC+4*n+rr}, s62, v{t+rr}')
        p(f'v_cvt_pk_bf16_f32 v{t}, v{ACC+4*n}, v{ACC+4*n+1}')
        p(f'v_cvt_pk_bf16_f32 v{t+1}, v{ACC+4*n+2}, v{ACC+4*n+3}')
    for n in range(8):
        p(f'ds_write_b64 v{vZw}, {vr(T+4*n,2)} offset:{512*n}')
    srd(p, 44, P_OUT, SZ_OUT)
    p('s_waitcnt lgkmcnt(0)')
    stamp(p, 15)
    p('s_barrier')
    stamp(p, 16)
    Z = 74
    for j in range(4):
        p(f'ds_read_b64_tr_b16 {vr(Z+4*j,2)}, v{vZr} offset:{128*j}')
        p(f'ds_read_b64_tr_b16 {vr(Z+4*j+2,2)}, v{vZr} offset:{4*HS+128*j}')
    p('s_waitcnt vmcnt(0)')
    stamp(p, 17)
    U = 106
    for j in range(4):
        p(f's_waitcnt lgkmcnt({6-2*j})')
        for d in range(4):
            z, q = Z + 4*j + d, QR + 4*j + d
            p(f'v_lshlrev_b32 v{U}, 16, v{z}')
            p(f'v_lshlrev_b32 v{U+1}, 16, v{q}')
            p(f'v_and_b32 v{U+2}, 0xffff0000, v{z}')
            p(f'v_and_b32 v{U+3}, 0xffff0000, v{q}')
            p(f'v_mul_f32 v{U}, v{U}, v{U+1}')
            p(f'v_mul_f32 v{U+2}, v{U+2}, v{U+3}')
            p(f'v_cvt_pk_bf16_f32 v{z}, v{U}, v{U+2}')
            U = 106 + (U - 106 + 4) % 16
        p(f's_mov_b32 s64, {64*2304*j}')
        p(f'buffer_store_dwordx4 {vr(Z+4*j,4)}, v{vOo}, s[44:47], s64 offen')

WPS = 1056
WOFF = 16384
STG = WOFF + 32 * WPS
WOB = 0
KQS = 304
KQB = 73728
VTB = KQB + 128 * KQS
VP = 73 * 144
OB = VTB + 2 * VP
SCR = OB + 18432
RED = KQB
assert SCR + 1024 <= LDS_BYTES and 3 * STG <= SCR
ACCB = 64
SET = [(128, 144), (160, 176)]
vD = [2, 3, 4, 4, 4, 4]
vXb0, vXb1, vWb = 8, 9, 10
vXa0, vXa1, vWa = 11, 12, 13
vKQ, vVT, vWo = 14, 15, 16
vQm = 17
vBias, vBias0 = 24, 28
vTmp = 33
vKf, vV0, vV1, vOw = 5, 6, 7, 21
vOs = [21, 22, 23]
vWoL = 32
vG = 56
sB = [84, 85, 86, 87, 88, 89]
sO = [74, 75, 76, 77, 78, 79]
sDst, sStage, sNext, sChunk = 80, 81, 82, 83
SRDx, SRDw = 40, 44

def b_decode(p):
    p('s_and_b32 s6, s4, 1')
    p('s_mul_i32 s6, s6, 9')
    p('s_lshr_b32 s8, s5, 1')
    p('s_add_u32 s6, s6, s8')
    p('s_and_b32 s7, s4, 6')
    p('s_and_b32 s8, s5, 1')
    p('s_add_u32 s7, s7, s8')
    p('s_mul_i32 s8, s6, 114')

def b1_dma_addr(p):
    t = vTmp
    p(f's_and_b32 s9, s{sW}, 3')
    p('s_lshl_b32 s9, s9, 5')
    p(f's_lshr_b32 s10, s{sW}, 2')
    p('s_add_u32 s9, s9, s10')
    p('s_add_u32 s9, s9, s8')
    p(f'v_lshrrev_b32 v{t}, 3, v1')
    p(f'v_lshl_add_u32 v{t+1}, v{t}, 1, s9')
    p(f'v_mul_u32_u24 v{t+1}, 1152, v{t+1}')
    p(f'v_lshrrev_b32 v{t+2}, 4, v1')
    p(f'v_and_b32 v{t+3}, 7, v1')
    p(f'v_xor_b32 v{t+2}, v{t+2}, v{t+3}')
    p(f'v_lshl_add_u32 v2, v{t+2}, 4, v{t+1}')
    p(f'v_xor_b32 v3, 64, v2')
    p(f'v_add_u32 v3, {16*1152}, v3')
    p('v_cmp_le_u32 vcc, 27, v1')
    p(f'v_subrev_u32 v{t}, 27, v1')
    p(f'v_mov_b32 v{t+1}, {4*3456}')
    p(f'v_cndmask_b32 v{t}, v1, v{t}, vcc')
    p(f'v_cndmask_b32 v{t+1}, 0, v{t+1}, vcc')
    p(f'v_lshl_add_u32 v{t+1}, v{t}, 4, v{t+1}')
    p(f'v_cmp_gt_u32 vcc, 9, v{t}')
    p(f'v_cmp_le_u32 s[10:11], 18, v{t}')
    p(f'v_mov_b32 v{t+2}, -144')
    p(f'v_mov_b32 v{t+3}, 1152')
    p(f'v_cndmask_b32 v{t+2}, v{t+2}, v{t+3}, vcc')
    p(f'v_mov_b32 v{t+3}, 2016')
    p('v_cmp_le_u32 vcc, 54, v1')
    p(f'v_cndmask_b32 v{t+2}, v{t+2}, v{t+3}, s[10:11]')
    p('s_mul_i32 s10, s7, 144')
    p(f'v_mov_b32 v{t+3}, {OOB}')
    p(f'v_add3_u32 v4, v{t+1}, v{t+2}, s10')
    p(f'v_cndmask_b32 v4, v4, v{t+3}, vcc')
    p(f's_lshl_b32 s{sB[0]}, s{sW}, 11')
    p(f's_add_u32 s{sB[1]}, s{sB[0]}, 1024')
    p(f's_mul_i32 s{sB[2]}, s{sW}, {4*WPS}')
    p(f's_add_u32 s{sB[2]}, s{sB[2]}, {WOFF}')
    for n in range(1, 4): p(f's_add_u32 s{sB[2+n]}, s{sB[2]}, {WPS*n}')
    p(f's_mov_b32 s{sO[0]}, 0')
    p(f's_mov_b32 s{sO[1]}, 0')
    p(f's_mul_i32 s{sO[2]}, s{sW}, {8*3456}')
    for n in range(1, 4): p(f's_add_u32 s{sO[2+n]}, s{sO[2]}, {3456*n}')
    p(f's_mov_b32 s{sDst}, 0')

def dma_slot(i):
    srd_ = SRDx if i < 2 else SRDw
    return [f's_add_u32 m0, s{sB[i]}, s{sDst}', f'buffer_load_dwordx4 v{vD[i]}, s[{srd_}:{srd_+3}], s{sO[i]} offen lds']

def dma_advance(lo=0, hi=6):
    return [f's_add_u32 s{sO[i]}, s{sO[i]}, {128 if i < 2 else 221184}' for i in range(lo, hi)]

def b1_consts():
    p = Prog()
    t = vTmp
    c, g = t, t + 1
    p(f'v_and_b32 v{c}, 15, v1')
    p(f'v_lshrrev_b32 v{g}, 4, v1')
    p(f'v_mov_b32 v{vG}, v{g}')
    p(f's_and_b32 s14, s{sW}, 1')
    p(f's_lshr_b32 s15, s{sW}, 1')
    p(f'v_lshrrev_b32 v{t+2}, 1, v{c}')
    p(f'v_xor_b32 v{t+2}, v{t+2}, v{g}')
    p(f'v_lshlrev_b32 v{t+2}, 4, v{t+2}')
    p(f'v_lshl_add_u32 v{t+2}, v{c}, 7, v{t+2}')
    p('s_lshl_b32 s9, s14, 13')
    p(f'v_add_u32 v{vXb0}, s9, v{t+2}')
    p(f'v_xor_b32 v{vXb1}, 64, v{vXb0}')
    p(f'v_lshrrev_b32 v{t+2}, 2, v1')
    p(f'v_mul_u32_u24 v{t+2}, {WPS}, v{t+2}')
    p(f'v_and_b32 v{t+3}, 3, v1')
    p(f'v_lshl_add_u32 v{t+2}, v{t+3}, 3, v{t+2}')
    p('s_lshl_b32 s9, s15, 2')
    p('s_mul_i32 s10, s15, 3')
    p('s_add_u32 s10, s10, 2')
    p('s_cmp_lt_u32 s15, 2')
    p('s_cselect_b32 s70, s9, s10')
    p('s_lshl_b32 s9, s70, 5')
    p(f's_add_u32 s10, s9, {WOFF}')
    p(f'v_add_u32 v{vWb}, s10, v{t+2}')
    p(f'v_mov_b32 v{vXa1}, v{vXb1}')
    p(f'v_mov_b32 v{vWa}, v{vWb}')
    for i in range(64):
        p(f'v_mov_b32 v{ACCB+i}, 0')
    p(f's_mul_i32 s10, s14, {64*KQS}')
    p(f's_add_u32 s10, s10, {KQB}')
    p('s_add_u32 s9, s9, s10')
    p(f'v_mul_u32_u24 v{t+2}, {KQS}, v{c}')
    p(f'v_lshl_add_u32 v{t+3}, v{g}, 3, v{t+2}')
    p(f'v_add_u32 v{vKQ}, s9, v{t+3}')
    p('s_lshl_b32 s9, s15, 5')
    p('s_add_u32 s9, s9, s10')
    p(f'v_lshl_add_u32 v{t+3}, v{g}, 4, v{t+2}')
    p(f'v_add_u32 v{vKf}, s9, v{t+3}')
    p(f'v_mul_u32_u24 v{t+2}, 144, v{c}')
    p(f'v_lshl_add_u32 v{t+2}, v{g}, 3, v{t+2}')
    p(f's_mul_i32 s9, s14, {VP}')
    p(f's_add_u32 s9, s9, {VTB}')
    p('s_mul_i32 s10, s70, 2304')
    p('s_add_u32 s10, s10, s9')
    p(f's_sub_u32 s10, s10, {9*2304}')
    p(f'v_add_u32 v{vVT}, s10, v{t+2}')
    p('s_mul_i32 s10, s15, 2592')
    p('s_add_u32 s10, s10, s9')
    p(f'v_add_u32 v{vV0}, s10, v{t+2}')
    p(f'v_and_b32 v{t+3}, 2, v1')
    p(f'v_cmp_eq_u32 vcc, 0, v{t+3}')
    p(f'v_and_b32 v{t+3}, 1, v1')
    p(f'v_mul_u32_u24 v{t+3}, 144, v{t+3}')
    p(f's_add_u32 s10, s10, {16*144}')
    p(f'v_add_u32 v{t+3}, s10, v{t+3}')
    p(f's_add_u32 s9, s9, {72*144}')
    p(f'v_mov_b32 v{t+4}, s9')
    p(f'v_cndmask_b32 v{t+3}, v{t+4}, v{t+3}, vcc')
    p(f'v_lshl_add_u32 v{vV1}, v{g}, 3, v{t+3}')
    p('s_mul_i32 s9, s6, 57')
    p('s_cmp_eq_u32 s6, 0')
    p('s_cselect_b32 s12, 0, 7')
    p('s_mul_i32 s10, s14, 18432')
    p('s_lshl_b32 s11, s15, 12')
    p('s_add_u32 s11, s11, s10')
    p('s_lshl_b32 s13, s7, 8')
    p('s_add_u32 s11, s11, s13')
    p(f'v_and_b32 v{t+3}, 31, v1')
    p(f'v_cmp_gt_u32 vcc, s12, v{t+3}')
    p(f'v_add_u32 v{t+3}, s9, v{t+3}')
    p(f'v_lshrrev_b32 v{t+4}, 4, v{t+3}')
    p(f'v_mul_u32_u24 v{t+4}, 36864, v{t+4}')
    p(f'v_and_b32 v{t+3}, 15, v{t+3}')
    p(f'v_lshl_add_u32 v{t+4}, v{t+3}, 4, v{t+4}')
    p(f'v_lshrrev_b32 v{t+3}, 5, v1')
    p(f'v_lshl_add_u32 v{t+4}, v{t+3}, 11, v{t+4}')
    p(f'v_add_u32 v{vOs[0]}, s11, v{t+4}')
    p(f'v_add_u32 v{vOs[1]}, {2*36864}, v{vOs[0]}')
    p(f'v_mov_b32 v{t+5}, {OOB}')
    p(f'v_cndmask_b32 v{vOs[0]}, v{vOs[0]}, v{t+5}, vcc')
    p('v_cmp_gt_u32 vcc, s12, v1')
    p(f'v_add_u32 v{t+3}, s9, v1')
    p(f'v_lshrrev_b32 v{t+4}, 4, v{t+3}')
    p(f'v_mul_u32_u24 v{t+4}, 36864, v{t+4}')
    p(f'v_and_b32 v{t+3}, 15, v{t+3}')
    p(f'v_lshl_add_u32 v{t+4}, v{t+3}, 4, v{t+4}')
    p('s_add_u32 s10, s10, s13')
    p('s_lshl_b32 s11, s15, 2')
    p('s_add_u32 s10, s10, s11')
    p(f's_add_u32 s10, s10, {64*256}')
    p(f'v_add_u32 v{vOs[2]}, s10, v{t+4}')
    p(f'v_cndmask_b32 v{vOs[2]}, v{vOs[2]}, v{t+5}, vcc')
    p(f'v_lshlrev_b32 v{t+2}, 2, v{g}')
    p(f'v_subrev_u32 v{t+3}, s15, v{t+2}')
    for i in range(4):
        p(f'v_add_u32 v{t+4+i}, {i}, v{t+3}')
    for i in range(4):
        p(f'v_cmp_gt_u32 s[{10+2*(i&1)}:{11+2*(i&1)}], 9, v{t+4+i}')
        if i & 1:
            p('s_nop 0')
            p(f'v_cndmask_b32 v{vQm+i-1}, 0, -1, s[10:11]')
            p(f'v_cndmask_b32 v{vQm+i}, 0, -1, s[12:13]')
    p(f'v_sub_u32 v{t+2}, v{c}, v{t+2}')
    p(f'v_cmp_ge_i32 s[72:73], -6, v{t+2}')
    p(f'v_mov_b32 v{t+5}, 0xf149f2ca')
    for rr in range(4):
        p(f'v_subrev_u32 v{t+3}, {rr}, v{t+2}')
        p(f'v_and_b32 v{t+4}, 8, v{t+3}')
        p(f'v_cmp_ge_u32 s[10:11], 7, v{t+3}')
        p(f'v_cmp_eq_u32 vcc, 0, v{t+4}')
        p('s_nop 0')
        p(f'v_cndmask_b32 v{vBias0+rr}, v{t+5}, 0, s[10:11]')
        p(f'v_cndmask_b32 v{vBias+rr}, v{t+5}, 0, vcc')
    p('s_cmp_ge_u32 s5, 9')
    p('s_cselect_b32 s9, 1, 0')
    p('s_lshl_b32 s66, s4, 1')
    p('s_add_u32 s66, s66, s9')
    p('s_mul_i32 s9, s9, 9')
    p('s_sub_u32 s67, s5, s9')
    p(f'v_lshrrev_b32 v{t}, 3, v1')
    p(f'v_mul_u32_u24 v{t}, 1152, v{t}')
    p(f'v_bfe_u32 v{t+1}, v1, 4, 1')
    p(f'v_lshlrev_b32 v{t+1}, 1, v{t+1}')
    p(f'v_and_b32 v{t+2}, 7, v1')
    p(f'v_xor_b32 v{t+1}, v{t+1}, v{t+2}')
    p('s_lshl_b32 s9, s14, 2')
    p(f'v_xor_b32 v{t+1}, s9, v{t+1}')
    p('s_lshl_b32 s9, s67, 7')
    p(f'v_add_u32 v{t}, s9, v{t}')
    p(f'v_lshl_add_u32 v{vWo}, v{t+1}, 4, v{t}')
    p(f'v_lshrrev_b32 v{t}, 4, v1')
    p(f'v_mul_u32_u24 v{t}, {16*1152}, v{t}')
    p(f'v_add_u32 v{t}, {16*1152}, v{t}')
    p(f'v_add_u32 v{vWoL}, v{vWo}, v{t}')
    b2_addr(p)
    return glue_scc(p.lines)

def b1_variant(p, k, var):
    types = [['kq']*4, ['kq', 'v', 'v'], ['v']*3][var]
    nT = len(types)
    def reads(st, ks, xa):
        X, W = SET[st]
        r = [f'ds_read_b128 {vr(X+4*t,4)}, v{xa} offset:{2048*t}' for t in range(4)]
        for j in range(nT):
            for hf in range(2):
                r.append(f'ds_read_b64_tr_b16 {vr(W+4*j+2*hf,2)}, v{vWa} offset:{16*WPS*ks+432*hf+32*j}')
        return r
    def mfmas(st):
        X, W = SET[st]
        out = []
        for j in range(nT):
            for t in range(4):
                a = vr(ACCB+16*j+4*t, 4)
                if types[j] == 'kq': out.append(f'v_mfma_f32_16x16x32_bf16 {a}, {vr(W+4*j,4)}, {vr(X+4*t,4)}, {a}')
                else: out.append(f'v_mfma_f32_16x16x32_bf16 {a}, {vr(X+4*t,4)}, {vr(W+4*j,4)}, {a}')
        return out
    L = f'{k}_{var}'
    X_ = os.environ.get('X', '')
    global dma_slot
    ds0 = dma_slot
    if 'd' in X_: dma_slot = lambda i: []
    if 'r' in X_: reads = lambda st, ks, xa: []
    if 'm' in X_: mfmas = lambda st: ['s_nop 0'] * 4
    for x in reads(0, 0, vXb0): p(x)
    for x in dma_slot(0) + dma_slot(1) + dma_slot(2): p(x)
    if PFB and var < 2 and PF2POS == 'loop':
        p(f's_cmp_lt_u32 s{sW}, {PFB-1}')
        p(f's_cbranch_scc1 L_b1loop_{L}')
        for x in pf_loads(246, 247, 60, 61, 248): p(x)
    p.label(f'L_b1loop_{L}')
    if PRIO == 2: p(f's_setprio {1 if var == 0 else 0}')
    if PRIO == 3: p(f's_setprio {0 if var == 0 else 1}')
    p('s_waitcnt lgkmcnt(0)')
    sec = interleave(reads(1, 1, vXa1), dma_slot(3) + dma_slot(4) + dma_slot(5))
    mf = mfmas(0)
    nh = len(mf) - 4
    for x in interleave(mf[:nh], sec, lead=1, frac=FR2): p(x)
    p(f's_cmp_ge_u32 s{sChunk}, 6')
    p(f's_cbranch_scc1 L_b1sp_{L}')
    upd = [f's_mov_b32 s{sDst}, s{sStage}'] + dma_advance()
    for x in interleave(mf[nh:nh+2], upd): p(x)
    p.label(f'L_b1mid_{L}')
    upd = [f'v_add_u32 v{vXa0}, s{sNext}, v{vXb0}', f'v_add_u32 v{vXa1}, s{sNext}, v{vXb1}', f's_mov_b32 s{sStage}, s{sNext}', f's_add_u32 s{sChunk}, s{sChunk}, 1']
    for x in interleave(mf[nh+2:], upd): p(x)
    p('s_waitcnt vmcnt(6) lgkmcnt(0)')
    p('s_barrier')
    if PROF == 2:
        p('s_memtime s[96:97]')
        p(f's_add_u32 m0, s{sChunk}, 39')
        p('s_waitcnt lgkmcnt(0)')
        p('v_writelane_b32 v253, s96, m0')
    mf = mfmas(1)
    if PRIO == 2: p(f's_setprio {0 if var == 0 else 1}')
    if PRIO == 3: p(f's_setprio {1 if var == 0 else 0}')
    p(mf[0])
    p(f'v_add_u32 v{vWa}, s{sNext}, v{vWb}')
    sec = interleave(reads(0, 0, vXa0), dma_slot(0) + dma_slot(1) + dma_slot(2))
    sec.append(f's_add_u32 s{sNext}, s{sStage}, {STG}\ns_cmp_eq_u32 s{sNext}, {3*STG}\ns_cselect_b32 s{sNext}, 0, s{sNext}')
    for x in interleave(mf[1:-1], sec, lead=1, frac=FR): p(x)
    p(f's_cmp_lt_u32 s{sChunk}, 9')
    p(mf[-1])
    p(f's_cbranch_scc1 L_b1loop_{L}')
    dma_slot = ds0
    stamp(p, 2, f'b1b_{L}')
    Z = SET[0][0]
    p('s_waitcnt lgkmcnt(0)')
    if var == 0:
        p(f'v_lshrrev_b32 v{Z}, 5, v1')
        p(f'v_mul_u32_u24 v{Z}, {VP}, v{Z}')
        p(f'v_and_b32 v{Z+1}, 31, v1')
        p(f'v_lshl_add_u32 v{Z}, v{Z+1}, 2, v{Z}')
        p(f'v_add_u32 v{Z}, {VTB+72*144}, v{Z}')
        p(f'v_mov_b32 v{Z+1}, 0x3f803f80')
        p(f'ds_write_b32 v{Z}, v{Z+1}')
    T = Z + 8
    u = 0
    for j in range(nT):
        if var == 2 and j == 2:
            p('s_mov_b32 exec_lo, 0x00ff00ff')
            p('s_mov_b32 exec_hi, 0x00ff00ff')
        for t in range(4):
            a = ACCB + 16*j + 4*t
            d = T + 2*(u % 8); u += 1
            p(f'v_cvt_pk_bf16_f32 v{d}, v{a}, v{a+1}')
            p(f'v_cvt_pk_bf16_f32 v{d+1}, v{a+2}, v{a+3}')
            if types[j] == 'kq':
                p(f'ds_write_b64 v{vKQ}, {vr(d,2)} offset:{16*KQS*t+32*j}')
            else:
                p(f'ds_write_b64 v{vVT}, {vr(d,2)} offset:{2304*j+32*t}')
    if var == 2: p('s_mov_b64 exec, -1')
    p(f's_branch L_attn_{k}')
    p.label(f'L_b1sp_{L}')
    for x in mfmas(0)[nh:nh+2]: p(x)
    p(f's_cmp_eq_u32 s{sChunk}, 7')
    p(f's_cbranch_scc1 L_b1sp7_{L}')
    p(f's_cmp_eq_u32 s{sChunk}, 8')
    p(f's_cbranch_scc1 L_b1sp8_{L}')
    for r in (SRDx, SRDw):
        p(f's_mov_b32 s{r}, s{P_WO}')
        p(f's_and_b32 s{r+1}, s{P_WO+1}, 0xffff')
        p(f's_mov_b32 s{r+2}, {SZ_WO}')
    for v in (2, 3, 4): p(f'v_mov_b32 v{v}, v{vWo}')
    nonce_load(p)
    p(f's_mov_b32 s{sDst}, {WOB}')
    p(f's_lshl_b32 s{sB[0]}, s{sW}, 10')
    p(f's_mul_i32 s{sO[0]}, s{sW}, {72*1152}')
    for i in range(1, 6):
        p(f's_add_u32 s{sB[i]}, s{sB[0]}, {8192*i}')
        p(f's_add_u32 s{sO[i]}, s{sO[0]}, {(18*(i>>1)+8*(i&1))*1152}')
    p(f's_branch L_b1mid_{L}')
    p.label(f'L_b1sp7_{L}')
    p(f'v_mov_b32 v4, v{vWoL}')
    for i in range(3):
        p(f's_add_u32 s{sB[i]}, s{sB[i]}, {8192*6}')
        p(f's_add_u32 s{sO[i]}, s{sO[i]}, {54*1152}' if i < 2 else f's_sub_u32 s{sO[i]}, s{sO[i]}, {18*1152}')
        p(f's_mov_b32 s{sB[3+i]}, {SCR-WOB}')
        p(f's_mov_b32 s{sO[3+i]}, {OOB}')
    p(f's_branch L_b1mid_{L}')
    p.label(f'L_b1sp8_{L}')
    for i in range(3):
        p(f's_mov_b32 s{sB[i]}, {SCR-WOB}')
        p(f's_mov_b32 s{sO[i]}, {OOB}')
    p(f's_branch L_b1mid_{L}')

def attention(p, k, sc):
    KF, QF, V0, V1 = 64, 80, 96, 106
    S1, S0 = 116, 132
    p.label(f'L_attn_{k}')
    if PRIO >= 2: p('s_setprio 0')
    for i in range(2):
        p(f'v_mov_b32 v{V0+i}, 0')
        p(f'v_mov_b32 v{V1+i}, 0')
    p('s_mov_b32 s90, 0x3eae1a93')
    p('s_mov_b32 s91, 0x3eae1a93')
    srd(p, 52, P_WS, SZ_A, WS_O)
    p(f'v_cmp_eq_u32 s[10:11], 1, v{vG}')
    p(f'v_cmp_eq_u32 s[12:13], 2, v{vG}')
    p(f'v_cmp_eq_u32 s[74:75], 3, v{vG}')
    p('s_waitcnt lgkmcnt(0)')
    stamp(p, 3)
    p('s_barrier')
    stamp(p, 4)
    for t in range(4):
        p(f'ds_read_b128 {vr(QF+4*t,4)}, v{vKf} offset:{144+16*KQS*t}')
        p(f'ds_read_b128 {vr(KF+4*t,4)}, v{vKf} offset:{16*KQS*t}')
    for t in range(4):
        p(f'ds_read_b64 {vr(V0+2+2*t,2)}, v{vV0} offset:{32*t}')
        p(f'ds_read_b64 {vr(V1+2+2*t,2)}, v{vV1} offset:{32*t}')
    for t in range(4):
        p(f's_waitcnt lgkmcnt({15-2*t})')
        for i in range(4): p(f'v_and_b32 v{QF+4*t+i}, v{QF+4*t+i}, v{vQm+i}')
    for t in range(4):
        if t == 0: p('s_waitcnt lgkmcnt(8)')
        p(f'v_mfma_f32_16x16x32_bf16 {vr(S1+4*t,4)}, {vr(KF+4*t,4)}, {vr(QF+4*t,4)}, 0')
        if t: p(f'v_mfma_f32_16x16x32_bf16 {vr(S0+4*t,4)}, {vr(KF+4*t-4,4)}, {vr(QF+4*t,4)}, 0')
    stamp(p, 5)
    PF = 156
    M = lambda t: 148 + 2 * t
    M2 = lambda t: 149 + 2 * t
    BC = 'op_sel:[0,0] op_sel_hi:[1,0]'
    for t in range(4):
        for rr in range(4):
            if t: p(f'v_cndmask_b32 v{S1+4*t+rr}, v{S1+4*t+rr}, v{S0+4*t+rr}, s[72:73]')
        for rr in (0, 2):
            p(f'v_pk_fma_f32 {vr(S1+4*t+rr,2)}, {vr(S1+4*t+rr,2)}, s[90:91], {vr((vBias if t else vBias0)+rr,2)}')
        p(f'v_max3_f32 v{M(t)}, v{S1+4*t}, v{S1+4*t+1}, v{S1+4*t+2}')
        p(f'v_max_f32 v{M(t)}, v{M(t)}, v{S1+4*t+3}')
        p(f'v_mov_b32 v{M2(t)}, v{M(t)}')
    for t in range(4): p(f'v_permlane32_swap_b32 v{M(t)}, v{M2(t)}')
    for t in range(4): p(f'v_max_f32 v{M(t)}, v{M(t)}, v{M2(t)}')
    for t in range(4): p(f'v_mov_b32 v{M2(t)}, v{M(t)}')
    for t in range(4): p(f'v_permlane16_swap_b32 v{M(t)}, v{M2(t)}')
    for t in range(4): p(f'v_max_f32 v{M(t)}, v{M(t)}, v{M2(t)}')
    for t in range(4):
        for rr in (0, 2): p(f'v_pk_add_f32 {vr(S1+4*t+rr,2)}, {vr(S1+4*t+rr,2)}, {vr(M(t),2)} {BC} neg_lo:[0,1] neg_hi:[0,1]')
    p('s_waitcnt lgkmcnt(0)')
    stamp(p, 6)
    O0, O1 = 64, 80
    def pv(t):
        p(f'v_mfma_f32_16x16x32_bf16 {vr(O1+4*t,4)}, {vr(V1+2*t,4)}, {vr(PF+4*t,4)}, 0')
        p(f'v_mfma_f32_16x16x32_bf16 {vr(O0+4*t,4)}, {vr(V0+2*t,4)}, {vr(PF+4*t,4)}, 0')
    for rr in range(4): p(f'v_exp_f32 v{S1+rr}, v{S1+rr}')
    for t in range(4):
        if t < 3:
            for rr in range(4): p(f'v_exp_f32 v{S1+4*t+4+rr}, v{S1+4*t+4+rr}')
        p(f'v_cvt_pk_bf16_f32 v{S0+2*(t&1)}, v{S1+4*t}, v{S1+4*t+1}')
        p(f'v_cvt_pk_bf16_f32 v{S0+2*(t&1)+1}, v{S1+4*t+2}, v{S1+4*t+3}')
        if t: pv(t - 1)
        for i in range(2):
            p(f'v_cndmask_b32 v{PF+4*t+i}, 0, v{S0+2*(t&1)+i}, s[72:73]')
            p(f'v_cndmask_b32 v{PF+4*t+2+i}, v{S0+2*(t&1)+i}, 0, s[72:73]')
    PO, PE = 116, 124
    def fin(u):
        for rr in (0, 2): p(f'v_pk_mul_f32 {vr(O0+4*u+rr,2)}, {vr(O0+4*u+rr,2)}, {vr(M(u),2)} {BC}')
        p(f'v_pk_mul_f32 {vr(O1+4*u,2)}, {vr(O1+4*u,2)}, {vr(M(u),2)} {BC}')
        p(f'v_cvt_pk_bf16_f32 v{PO+2*u}, v{O0+4*u}, v{O0+4*u+1}')
        p(f'v_cvt_pk_bf16_f32 v{PO+2*u+1}, v{O0+4*u+2}, v{O0+4*u+3}')
        p(f'v_cvt_pk_bf16_f32 v{PE+u}, v{O1+4*u}, v{O1+4*u+1}')
    def sto(i):
        p(f'v_permlane16_swap_b32 v{PO+4*i}, v{PO+4*i+2}')
        p(f'v_permlane16_swap_b32 v{PO+4*i+1}, v{PO+4*i+3}')
        p(f'buffer_store_dwordx4 {vr(PO+4*i,4)}, v{vOs[i]}, s[52:55], 0 offen{sc}')
    p(f'v_rcp_f32 v{M(0)}, v{O1+2}')
    pv(3)
    p(f'v_rcp_f32 v{M(1)}, v{O1+6}')
    fin(0)
    p(f'v_rcp_f32 v{M(2)}, v{O1+10}')
    fin(1)
    p(f'v_rcp_f32 v{M(3)}, v{O1+14}')
    p(f'v_cndmask_b32 v{PE}, v{PE}, v{PE+1}, s[10:11]')
    sto(0)
    fin(2)
    fin(3)
    p(f'v_cndmask_b32 v{PE}, v{PE}, v{PE+2}, s[12:13]')
    p(f'v_cndmask_b32 v{PE}, v{PE}, v{PE+3}, s[74:75]')
    sto(1)
    p(f'buffer_store_dword v{PE}, v{vOs[2]}, s[52:55], 0 offen{sc}')

def b2_addr(p):
    t = 58
    p(f'v_lshrrev_b32 v{t}, 4, v1')
    p(f'v_bfe_u32 v{t+1}, v1, 2, 2')
    p(f'v_lshl_add_u32 v{t+2}, v{t}, 3, v{t+1}')
    p(f'v_lshlrev_b32 v{t+2}, 7, v{t+2}')
    p(f'v_and_b32 v{t+3}, 3, v1')
    p(f'v_lshl_add_u32 v{t+2}, v{t+3}, 3, v{t+2}')
    p(f'v_and_b32 v{t+3}, 1, v{t}')
    p(f'v_lshlrev_b32 v{t+3}, 1, v{t+3}')
    p(f'v_lshrrev_b32 v{t+1}, 1, v{t+1}')
    p(f'v_or_b32 v{t+3}, v{t+3}, v{t+1}')
    p(f'v_lshl_add_u32 v{t+2}, v{t+3}, 5, v{t+2}')
    p(f'v_add_u32 v42, {WOB}, v{t+2}')
    for m in range(1, 4): p(f'v_xor_b32 v{42+m}, {32*m}, v42')
    for m in range(4): p(f'v_add_u32 v{38+m+8+4}, 49152, v{42+m}')
    p('v_lshlrev_b32 v46, 4, v1')
    p('s_lshl_b32 s9, s66, 3')
    p(f's_add_u32 s9, s9, s{sW}')
    p('s_mul_i32 s64, s9, 18432')
    p('s_lshr_b32 s10, s9, 1')
    p('s_lshl_b32 s69, s10, 5')
    p('s_add_u32 s10, s69, s14')
    p(f'v_and_b32 v{t+1}, 15, v1')
    p(f'v_lshl_add_u32 v{t+1}, v{t+1}, 1, s10')
    p(f'v_mul_u32_u24 v{t+1}, 2304, v{t+1}')
    p(f'v_and_b32 v{t+2}, 1, v{t}')
    p(f'v_lshl_add_u32 v{t+1}, v{t+2}, 5, v{t+1}')
    p(f'v_lshrrev_b32 v{t+2}, 1, v{t}')
    p(f'v_lshl_add_u32 v{t+1}, v{t+2}, 4, v{t+1}')
    p('s_lshl_b32 s9, s67, 7')
    p('s_add_u32 s9, s9, 1152')
    p(f'v_add_u32 v49, s9, v{t+1}')
    p('s_add_u32 s10, s69, 17')
    p('s_mul_i32 s10, s10, 575')
    p('s_lshr_b32 s10, s10, 16')
    p('s_max_u32 s9, s69, 14')
    p('s_sub_u32 s9, s9, 14')
    p('s_mul_i32 s9, s9, 575')
    p('s_lshr_b32 s9, s9, 16')
    p('v_cmp_gt_u32 vcc, 8, v1')
    p('v_mov_b32 v47, s10')
    p('v_mov_b32 v48, s9')
    p('v_cndmask_b32 v47, v47, v48, vcc')
    p('v_and_b32 v48, 7, v1')
    p('v_lshl_add_u32 v47, v47, 3, v48')
    p(f'v_mul_u32_u24 v47, {FLS}, v47')

NSL = 6
def wreads(ks):
    r = []
    base = 136 + 16 * (ks % NSL)
    for m in range(4):
        for hf in range(2):
            a, o = (42 + m, 4096 * ks) if ks < 12 else (50 + m, 4096 * (ks - 12))
            r.append(f'ds_read_b64_tr_b16 {vr(base+4*m+2*hf,2)}, v{a} offset:{o+512*hf}')
    return r

def b2_main(p, k, sc):
    OF, AC = 64, 232
    def oload(ks):
        return [f's_add_u32 s65, s64, {4096*(ks//4)}'] * (ks % 4 == 0) + [f'buffer_load_dwordx4 {vr(OF+4*ks,4)}, v46, s[52:55], s65 offen offset:{1024*(ks%4)}{sc}']
    LEAD = B2LEAD
    for ks in range(LEAD):
        for x in oload(ks): p(x)
    srd(p, 56, P_OUT, SZ_OUT)
    for ks in range(18):
        issued = min(18, LEAD + ks)
        p(f's_waitcnt vmcnt({issued-ks-1}) lgkmcnt({min(15, 8*(min(17, ks+NSL-2)-ks))})')
        if ks == 0: stamp(p, 13)
        mf = []
        for m in range(4):
            a = vr(AC+4*m, 4)
            mf.append(f'v_mfma_f32_16x16x32_bf16 {a}, {vr(136+16*(ks%NSL)+4*m,4)}, {vr(OF+4*ks,4)}, {a if ks else 0}')
        sec = (oload(ks+LEAD) if ks + LEAD < 18 else []) + (wreads(ks+NSL-1) if ks + NSL - 1 < 18 else [])
        for x in interleave(mf, sec, lead=1): p(x)
    stamp(p, 14)
    D = 64
    for m in range(4):
        p(f'v_cvt_pk_bf16_f32 v{D+2*m}, v{AC+4*m}, v{AC+4*m+1}')
        p(f'v_cvt_pk_bf16_f32 v{D+2*m+1}, v{AC+4*m+2}, v{AC+4*m+3}')
    for mp in range(2):
        p(f'v_permlane16_swap_b32 v{D+4*mp}, v{D+4*mp+2}')
        p(f'v_permlane16_swap_b32 v{D+4*mp+1}, v{D+4*mp+3}')
    for mp in range(2):
        p(f'buffer_store_dwordx4 {vr(D+4*mp,4)}, v49, s[56:59], 0 offen offset:{64*mp}')

def signal_and_wait(p, k, who, sFlagOff, vPoll, sMask, perwave, pre=()):
    p('s_waitcnt vmcnt(0)')
    stamp(p, 9)
    p('s_barrier')
    stamp(p, 10)
    if not perwave:
        p(f's_cmp_lg_u32 s{sW}, 0')
        p(f's_cbranch_scc1 L_w{who}_{k}')
    p('s_mov_b32 s11, 0')
    p.label(f'L_t{who}_{k}')
    p('v_cmp_eq_u32 vcc, 0, v242')
    p(f's_cbranch_vccz L_u{who}_{k}')
    nonce_load(p)
    p('s_waitcnt vmcnt(0)')
    p('s_add_u32 s11, s11, 1')
    p(f's_cmp_lt_u32 s11, {SPIN_MAX}')
    p(f's_cbranch_scc1 L_t{who}_{k}')
    p.label(f'L_u{who}_{k}')
    srd(p, 48, P_WS, 216*FLS, WS_FLAG)
    p(f'v_mov_b32 v241, s{sFlagOff}')
    p('s_mov_b64 exec, 1')
    if perwave:
        p(f's_cmp_lg_u32 s{sW}, 0')
        p(f's_cbranch_scc1 L_s{who}_{k}')
    p('buffer_store_dwordx2 v[242:243], v241, s[48:51], 0 offen sc1')
    stamp(p, 11)
    p.label(f'L_s{who}_{k}')
    if pre:
        p('s_mov_b64 exec, -1')
        for x in pre: p(x)
        p('s_mov_b32 exec_hi, 0')
    p(f's_mov_b32 exec_lo, {sMask}')
    p.label(f'L_p{who}_{k}')
    p(f'buffer_load_dwordx2 v[244:245], v{vPoll}, s[48:51], 0 offen sc1')
    p('s_waitcnt vmcnt(0)')
    p('v_cmp_ne_u64 vcc, v[244:245], v[242:243]')
    p(f's_cbranch_vccz L_d{who}_{k}')
    if SLEEP: p(f's_sleep {SLEEP}')
    p('s_add_u32 s11, s11, 1')
    p(f's_cmp_lt_u32 s11, {SPIN_MAX}')
    p(f's_cbranch_scc1 L_p{who}_{k}')
    p.label(f'L_d{who}_{k}')
    p('s_mov_b64 exec, -1')
    p.label(f'L_w{who}_{k}')
    if not perwave: p('s_barrier')
    stamp(p, 12)

def pf_addr(p, vi, vx, vw, t):
    p(f'v_mul_u32_u24 v{t}, 10382, v{vi}')
    p(f'v_lshrrev_b32 v{t}, 24, v{t}')
    p(f'v_mul_u32_u24 v{t+1}, 1616, v{t}')
    p(f'v_sub_u32 v{t+1}, v{vi}, v{t+1}')
    p(f'v_cmp_gt_u32 vcc, 1040, v{t+1}')
    p(f'v_mul_u32_u24 v{vx}, 1152, v{t+1}')
    p(f'v_lshl_add_u32 v{vx}, v{t}, 7, v{vx}')
    p(f'v_subrev_u32 v{t+1}, 1040, v{t+1}')
    p(f'v_and_b32 v{t+1}, 0x3ff, v{t+1}')
    p(f'v_mul_u32_u24 v{t+2}, 7282, v{t+1}')
    p(f'v_lshrrev_b32 v{t+2}, 16, v{t+2}')
    p(f'v_mul_u32_u24 v{t+3}, 9, v{t+2}')
    p(f'v_sub_u32 v{t+1}, v{t+1}, v{t+3}')
    p(f'v_lshl_add_u32 v{t+2}, v{t}, 6, v{t+2}')
    p(f'v_mul_u32_u24 v{t+2}, 3456, v{t+2}')
    p(f'v_mul_u32_u24 v{t+3}, 171, v{t+1}')
    p(f'v_lshrrev_b32 v{t+3}, 9, v{t+3}')
    p(f'v_mul_u32_u24 v{t+3}, 768, v{t+3}')
    p(f'v_lshl_add_u32 v{t+3}, v{t+1}, 7, v{t+3}')
    p(f'v_add_u32 v{vw}, v{t+2}, v{t+3}')
    p(f'v_mov_b32 v{t}, {OOB}')
    p(f'v_cndmask_b32 v{vx}, v{t}, v{vx}, vcc')
    p(f'v_cndmask_b32 v{vw}, v{vw}, v{t}, vcc')

def pf_first_addr(p, sub, vi, vx, vw, t):
    p(f's_sub_u32 s9, s5, {sub}')
    p('s_lshl_b32 s9, s9, 3')
    p(f's_add_u32 s9, s9, s{sW}')
    p(f's_mul_i32 s9, s9, {PFL}')
    p(f'v_cmp_gt_u32 vcc, {PFL}, v1')
    p(f'v_add_u32 v{vi}, s9, v1')
    p(f'v_mov_b32 v{t}, 15616')
    p(f'v_cndmask_b32 v{vi}, v{t}, v{vi}, vcc')
    pf_addr(p, vi, vx, vw, t)
    pf_bases(p, 60, 61)

def pf_bases(p, sx, sw):
    p(f's_lshr_b32 s{sw}, s4, 1')
    p(f's_mul_i32 s{sw}, s{sw}, 288')
    p(f's_and_b32 s{sw}, s{sw}, 0xffffff80')
    p(f's_and_b32 s{sx}, s4, 1')
    p(f's_mul_i32 s{sx}, s{sx}, {1026*1152}')

def pf_loads(vx, vw, sx, sw, d):
    return [f'buffer_load_dword v{d}, v{vx}, s[40:43], s{sx} offen{nt("p")}', f'buffer_load_dword v{d+1}, v{vw}, s[44:47], s{sw} offen{nt("p")}']

def role_b(p, k):
    if os.environ.get('NOB'):
        p('s_endpgm'); return
    b_decode(p)
    b1_dma_addr(p)
    if PFB:
        pf_first_addr(p, 0, 60, 246, 247, vTmp)
    p('s_waitcnt lgkmcnt(0)')
    prof_srd(p)
    stamp_begin(p)
    srd(p, SRDx, P_X, SZ_A)
    srd(p, SRDw, P_W, SZ_W)
    c0 = []; c1 = []
    for i in range(6): c0 += dma_slot(i)
    c0.append('\n'.join(dma_advance() + [f's_add_u32 s{sDst}, s{sDst}, {STG}']))
    if PFB:
        for x in pf_loads(246, 247, 60, 61, 248): p(x)
    for x in c0: p(x)
    stamp(p, 20)
    for x in interleave(b1_consts() + ['PF2'], c0, frac=0.5):
        if x != 'PF2': p(x)
    if PFB and PF2POS == 'pro':
        p(f's_cmp_lt_u32 s{sW}, {PFB-1}')
        p(f's_cbranch_scc1 L_pf2_{k}')
        for x in pf_loads(246, 247, 60, 61, 248): p(x)
        p.label(f'L_pf2_{k}')
    stamp(p, 21)
    if PRIO == 1:
        p(f's_cmp_lt_u32 s{sW}, 4')
        p(f's_cbranch_scc1 L_prio_{k}')
        p('s_setprio 1')
        p.label(f'L_prio_{k}')
    p(f's_mov_b32 s{sChunk}, 0')
    p(f's_mov_b32 s{sStage}, 0')
    p(f's_mov_b32 s{sNext}, {STG}')
    p('s_waitcnt vmcnt(6)')
    p('s_barrier')
    stamp(p, 1, f'b1a_{k}')
    p(f's_cmp_ge_u32 s{sW}, 6')
    p(f's_cbranch_scc1 L_var2_{k}')
    p(f's_cmp_ge_u32 s{sW}, 4')
    p(f's_cbranch_scc1 L_var1_{k}')
    b1_variant(p, k, 0)
    p.label(f'L_var1_{k}')
    b1_variant(p, k, 1)
    p.label(f'L_var2_{k}')
    b1_variant(p, k, 2)
    attention(p, k, ' sc1')
    p('s_lshl_b32 s13, s6, 3')
    p('s_add_u32 s13, s13, s7')
    p(f's_mul_i32 s13, s13, {FLS}')
    stamp(p, 8)
    signal_and_wait(p, k, 'b', 13, 47, 0xffff, True, sum((wreads(i) for i in range(NSL-1)), []))
    b2_main(p, k, ' sc1')
    stamp_end(p, 30, (0, 2, [1, 2, 8, 9, 12, 14, 30, 63]))
    p('s_endpgm')

def role_a(p, k):
    if os.environ.get('NOA'):
        p('s_endpgm'); return
    a_decode(p)
    a1_addr(p)
    p('s_waitcnt lgkmcnt(0)')
    prof_srd(p)
    stamp_begin(p)
    if ADELAY: a2_addr(p)
    a1_loads(p, k)
    a1_compute(p, ' sc1')
    stamp(p, 2)
    a2_hstage(p)
    stamp(p, 3)
    signal_and_wait(p, k, 'a', 68, 233, 0xff, PWA)
    a2_main(p, k, ' sc1', True)
    stamp_end(p, 30, (144, 10, [1, 9, 12, 14, 30, 63]))
    p('s_endpgm')

def role_c(p, k):
    p('s_sub_u32 s6, s5, 27')
    p('s_lshl_b32 s6, s6, 3')
    p(f's_add_u32 s6, s6, s{sW}')
    p('s_lshl_b32 s7, s6, 6')
    p('v_add_u32 v2, s7, v1')
    p('s_getpc_b64 s[8:9]')
    p.label(f'L_pc_{k}')
    p(f's_sub_u32 s8, s8, L_pc_{k}-{NAME}_kernel')
    p('s_subb_u32 s9, s9, 0')
    p('v_lshlrev_b32 v3, 7, v2')
    p(f'v_cmp_gt_u32 vcc, L_end_{k}-{NAME}_kernel, v3')
    p('v_mov_b32 v5, s9')
    p('v_add_co_u32 v4, s[10:11], s8, v3')
    p('v_addc_co_u32 v5, s[10:11], 0, v5, s[10:11]')
    p('s_and_saveexec_b64 s[12:13], vcc')
    p(f's_cbranch_execz L_nc_{k}')
    p('global_load_dword v10, v[4:5], off')
    p.label(f'L_nc_{k}')
    p('s_mov_b64 exec, s[12:13]')
    p('s_waitcnt lgkmcnt(0)')
    prof_srd(p)
    stamp_begin(p)
    p('s_cmp_lg_u32 s2, 216')
    p(f's_cbranch_scc1 L_nl_{k}')
    p(f's_cmp_lg_u32 s{sW}, 0')
    p(f's_cbranch_scc1 L_nl_{k}')
    p('s_memrealtime s[60:61]')
    srd(p, 56, P_DBG, 256)
    p('s_waitcnt lgkmcnt(0)')
    p('s_or_b32 s60, s60, 1')
    p('v_mov_b32 v30, s60')
    p('v_mov_b32 v31, s61')
    p('v_mov_b32 v32, 0')
    p('s_mov_b64 exec, 1')
    p('buffer_store_dwordx2 v[30:31], v32, s[56:59], 0 offen sc1')
    p('s_mov_b64 exec, -1')
    if os.environ.get('DIAGT'):
        p.label('L_diag')
        p('s_memrealtime s[62:63]')
        p('s_waitcnt lgkmcnt(0)')
        p('s_sub_u32 s62, s62, s60')
        p(f's_cmp_lt_u32 s62, {os.environ["DIAGT"]}')
        p('s_cbranch_scc1 L_diag')
    p.label(f'L_nl_{k}')
    if os.environ.get('NOC'):
        p('s_endpgm'); return
    srd(p, 40, P_X, SZ_A)
    srd(p, 44, P_W, SZ_W)
    srd(p, 48, P_WO, SZ_WO)
    srd(p, 52, P_Q, SZ_A)
    d = 21
    pf_first_addr(p, 9, 6, 7, 8, 11)
    for x in pf_loads(7, 8, 60, 61, d): p(x)
    d += 2
    first = 23*8*PFL
    nb = -(-(14544-first)//2560)
    p(f's_and_b32 s9, s{sW}, 3')
    p('s_mul_i32 s9, s9, 5')
    p('s_add_u32 s9, s9, s5')
    p('s_sub_u32 s9, s9, 27')
    p('s_lshl_b32 s9, s9, 6')
    p(f's_lshr_b32 s10, s{sW}, 2')
    p(f's_mul_i32 s10, s10, {1280*nb}')
    p('s_add_u32 s9, s9, s10')
    for it in range(nb):
        p(f'v_add_u32 v6, s9, v1')
        p(f'v_add_u32 v6, {first+1280*it}, v6')
        pf_addr(p, 6, 7, 8, 11)
        for x in pf_loads(7, 8, 60, 61, d): p(x)
        d += 2
    stamp(p, 1)
    p('s_waitcnt vmcnt(0)')
    stamp(p, 2)
    p('s_mul_i32 s14, s4, 144')
    p('s_and_b32 s14, s14, 0xffffff80')
    for it in range(2):
        p(f'v_add_u32 v6, {2560*it}, v2')
        p('v_lshrrev_b32 v7, 1, v6')
        p('v_mul_u32_u24 v7, 1152, v7')
        p('v_and_b32 v8, 1, v6')
        p('v_lshl_add_u32 v7, v8, 7, v7')
        p(f'buffer_load_dword v{d}, v7, s[52:55], s14 offen{nt("q")}'); d += 1
    for it in range(3):
        p(f'v_add_u32 v6, {2560*it}, v2')
        p('v_lshlrev_b32 v6, 7, v6')
        p(f'buffer_load_dword v{d}, v6, s[48:51], 0 offen{nt("o")}'); d += 1
    stamp(p, 3)
    p('s_waitcnt vmcnt(0)')
    stamp_end(p, 30)

def kernel_mega(p):
    k = 'm'
    p(f's_cmp_ge_u32 s2, {GRID}')
    p(f's_cbranch_scc1 L_end_{k}')
    p('s_load_dwordx16 s[16:31], s[0:1], 0')
    p('s_load_dwordx8 s[32:39], s[0:1], 64')
    p('v_lshrrev_b32 v2, 6, v0')
    p('v_and_b32 v1, 63, v0')
    p(f'v_readfirstlane_b32 s{sW}, v2')
    p('s_and_b32 s4, s2, 7')
    p('s_lshr_b32 s5, s2, 3')
    p('s_cmp_ge_u32 s5, 27')
    p(f's_cbranch_scc1 L_roleC_{k}')
    p('s_cmp_ge_u32 s5, 18')
    p(f's_cbranch_scc1 L_roleA_{k}')
    role_b(p, k)
    p.label(f'L_roleA_{k}')
    role_a(p, k)
    p.label(f'L_roleC_{k}')
    role_c(p, k)
    p.label(f'L_end_{k}')
    p('s_endpgm')

SPIN_MAX = 1 << 16
GRID = int(os.environ.get('GRID', '256'))

HEAD = open(os.path.join(os.path.dirname(os.path.abspath(__file__)), 'head.txt')).read()

def emit_kernel(name, fn):
    p = Prog()
    fn(p)
    lines, n = fix_hazards(p.lines, verbose=bool(os.environ.get('HZ')))
    sys.stderr.write(f'{name}: {len(lines)} lines, {n} nops inserted\n')
    body = '\n'.join(('' if l.endswith(':') else '    ') + l for l in lines)
    return f'''.text
.globl {name}
.p2align 8
.type {name},@function
{name}:
{body}
.section .rodata,"a"
.p2align 6
.amdhsa_kernel {name}
  .amdhsa_next_free_vgpr 256
  .amdhsa_next_free_sgpr 102
  .amdhsa_accum_offset 256
  .amdhsa_group_segment_fixed_size 0
  .amdhsa_kernarg_size 96
  .amdhsa_user_sgpr_count 2
  .amdhsa_user_sgpr_kernarg_segment_ptr 1
  .amdhsa_system_sgpr_workgroup_id_x 1
.end_amdhsa_kernel
'''

def main():
    out = HEAD
    out += f'; @launch grid=({GRID},1,1) block=(512,1,1) lds={LDS_BYTES}\n'
    out += '.amdgcn_target "amdgcn-amd-amdhsa--gfx950"\n'
    out += emit_kernel(NAME + '_kernel', kernel_mega)
    sys.stdout.write(out)

if __name__ == '__main__':
    main()
```

```python
import sys, os
sys.path.insert(0, os.path.dirname(os.path.abspath(__file__)))
from asmlib import Prog, fix_hazards

NAME = 'concat_heads__ssm_conv_h3__sliding_local_dilated__prompt'
MODE = os.environ.get('MODE', 'two')
PROF = int(os.environ.get('PROF', '0'))

FR = float(os.environ.get('FR', '0.7'))
FR2 = float(os.environ.get('FR2', '0.9'))
B2LEAD = int(os.environ.get('B2LEAD', '8'))
NT = os.environ.get('NT', 'a')
nt = lambda c: ' nt' if c in NT else ''
PFB = int(os.environ.get('PFB', '3'))
PWA = int(os.environ.get('PWA', '1'))
PRIO = int(os.environ.get('PRIO', '0'))
PF2POS = os.environ.get('PF2POS', 'none')
ADELAY = int(os.environ.get('ADELAY', '2'))
PFL = int(os.environ.get('PFL', '9'))
OUTA = os.environ.get('OUTA', '').replace('_', ' ')
OUTB = os.environ.get('OUTB', '').replace('_', ' ')
SZ_A = 2359296
SZ_W = 1990656
SZ_WO = 663552
SZ_OUT = 4718592
WS_XR = 0
WS_O = 0x240000
WS_FLAG = 0x480000
FLS = int(os.environ.get('FLS', '128'))
SLEEP = int(os.environ.get('SLEEP', '1'))
WS_PROF = 16 << 20
OOB = 0x80000000
NB, NA = 144, 72
NWG = NB + NA
LDS_BYTES = 163840

sW = 3
P_Q, P_K, P_V, P_SH, P_H, P_D, P_X, P_W, P_WO, P_OUT, P_DBG, P_WS = [16 + 2 * i for i in range(12)]

def srd(p, dst, ptr, size, off=0):
    if off:
        p(f's_add_u32 s{dst}, s{ptr}, {off}')
        p(f's_addc_u32 s{dst+1}, s{ptr+1}, 0')
        p(f's_and_b32 s{dst+1}, s{dst+1}, 0xffff')
    else:
        p(f's_mov_b32 s{dst}, s{ptr}')
        p(f's_and_b32 s{dst+1}, s{ptr+1}, 0xffff')
    p(f's_mov_b32 s{dst+2}, {size}')
    p(f's_mov_b32 s{dst+3}, 0x20000')

def vr(a, n):
    return f'v[{a}:{a+n-1}]' if n > 1 else f'v{a}'

def interleave(prim, sec, lead=0, frac=1.0):
    out = list(prim[:lead]); prim = prim[lead:]
    n, m = max(1, int(len(prim) * frac)), len(sec)
    j = 0
    for i, x in enumerate(prim):
        while j < m and j * n <= i * m:
            out.append(sec[j]); j += 1
        out.append(x)
    out += sec[j:]
    return out

def glue_scc(lines):
    out = []; i = 0
    while i < len(lines):
        if lines[i].startswith('s_cmp'):
            assert lines[i+1].startswith('s_cselect') or lines[i+1].startswith('s_cbranch'), lines[i:i+2]
            out.append(lines[i] + '\n' + lines[i+1]); i += 2
        else:
            assert not lines[i].startswith(('s_cselect', 's_addc', 's_subb')), lines[i]
            out.append(lines[i]); i += 1
    return out

def stamp(p, idx, uid=None):
    if not PROF: return
    p('s_memtime s[96:97]')
    p('s_waitcnt lgkmcnt(0)')
    p(f'v_writelane_b32 v253, s96, {idx}')

def stamp_begin(p):
    if not PROF: return
    p('v_mov_b32 v253, 0')
    p('s_memrealtime s[96:97]')
    p('s_waitcnt lgkmcnt(0)')
    p('v_writelane_b32 v253, s96, 62')
    p('v_writelane_b32 v253, s100, 61')
    stamp(p, 0)

def stamp_end(p, idx, dbg=None):
    if not PROF: return
    stamp(p, idx)
    p('s_memrealtime s[96:97]')
    p('s_waitcnt lgkmcnt(0)')
    p('v_writelane_b32 v253, s96, 63')
    if PROF == 3:
        if dbg:
            wg, base, lst = dbg
            uid = f'dbg{wg}'
            p(f's_cmp_lg_u32 s2, {wg}')
            p(f's_cbranch_scc1 L_{uid}')
            p(f's_cmp_lg_u32 s{sW}, 4')
            p(f's_cbranch_scc1 L_{uid}')
            p('v_readlane_b32 s98, v253, 0')
            p('v_readlane_b32 s99, v253, 62')
            p('v_mov_b32 v252, 0')
            for i, st in enumerate(lst):
                p(f'v_readlane_b32 s97, v253, {st}')
                p('s_nop 3')
                p(f's_sub_u32 s97, s97, {"s99" if st == 63 else "s98"}')
                p(f'v_writelane_b32 v252, s97, {i}')
            srd(p, 92, P_DBG, 256)
            p('v_lshlrev_b32 v254, 2, v1')
            p(f's_mov_b64 exec, {(1 << len(lst)) - 1}')
            p(f'buffer_store_dword v252, v254, s[92:95], 0 offen offset:{4*base}')
            p.label(f'L_{uid}')
        return
    p('s_lshl_b32 s98, s2, 3')
    p(f's_add_u32 s98, s98, s{sW}')
    p('s_lshl_b32 s98, s98, 8')
    p('v_lshl_add_u32 v254, v1, 2, s98')
    p('buffer_store_dword v253, v254, s[92:95], 0 offen')

def prologue(p, k):
    p(f's_cmp_ge_u32 s2, {NWG}')
    p(f's_cbranch_scc1 L_end_{k}')
    p('s_load_dwordx16 s[16:31], s[0:1], 0')
    p('s_load_dwordx8 s[32:39], s[0:1], 64')
    p('v_lshrrev_b32 v2, 6, v0')
    p('v_and_b32 v1, 63, v0')
    p(f'v_readfirstlane_b32 s{sW}, v2')
    p('s_and_b32 s4, s2, 7')
    p('s_lshr_b32 s5, s2, 3')
    p('s_cmp_ge_u32 s5, 18')
    p(f's_cbranch_scc1 L_roleA_{k}')

def prof_srd(p):
    if PROF:
        srd(p, 92, P_WS, 1 << 20, WS_PROF)

HS = 8384
H1 = 4164
XB = 8 * HS
XS_ = 4576
KB = XB
BS = 1088
VB = KB + 33 * BS
assert VB + 32 * BS <= LDS_BYTES

def a_decode(p):
    p('s_mul_i32 s6, s4, 9')
    p('s_add_u32 s6, s6, s5')
    p('s_sub_u32 s6, s6, 18')

def a1_addr(p):
    p('s_lshr_b32 s7, s6, 3')
    p('s_and_b32 s8, s6, 7')
    p('v_and_b32 v7, 7, v1')
    p('v_lshrrev_b32 v8, 3, v1')
    p('v_mul_u32_u24 v2, 1152, v8')
    p('v_lshl_add_u32 v2, v7, 4, v2')
    p('s_lshl_b32 s9, s7, 7')
    p('v_add_u32 v2, s9, v2')
    p(f's_mul_i32 s10, s8, {256*1152}')
    p(f's_mul_i32 s11, s{sW}, {8*1152}')
    p('s_add_u32 s11, s11, s10')
    p(f's_mul_i32 s12, s{sW}, {BS}')
    p(f's_add_u32 s12, s12, {KB+BS}')
    p(f's_sub_u32 s13, s10, {8*1152}')
    p('s_cmp_eq_u32 s8, 0')
    p(f's_cselect_b32 s13, {OOB}, s13')

def a1_loads(p, k):
    if ADELAY == 2:
        nonce_load(p)
        p('s_waitcnt vmcnt(0)')
    srd(p, 40, P_K, SZ_A)
    srd(p, 44, P_V, SZ_A)
    for n in range(4):
        p(f's_add_u32 m0, s12, {8*BS*n}')
        p(f's_add_u32 s14, s11, {64*1152*n}')
        p(f'buffer_load_dwordx4 v2, s[40:43], s14 offen{nt("a")} lds')
        p(f's_add_u32 m0, s12, {8*BS*n+VB-KB-BS}')
        p('s_nop 0')
        p(f'buffer_load_dwordx4 v2, s[44:47], s14 offen{nt("a")} lds')
    p(f's_cmp_lg_u32 s{sW}, 7')
    p(f's_cbranch_scc1 L_nohalo_{k}')
    p(f's_mov_b32 m0, {KB}')
    p('s_nop 0')
    p('buffer_load_dwordx4 v2, s[40:43], s13 offen lds')
    p.label(f'L_nohalo_{k}')
    p('s_lshl_b32 s8, s8, 8')
    p(f's_lshr_b32 s9, s{sW}, 1')
    p(f's_mul_i32 s10, s9, {8*BS}')
    p('s_lshl_b32 s9, s9, 6')
    p('s_add_u32 s8, s8, s9')
    p('s_lshl_b32 s7, s7, 6')
    p(f's_and_b32 s9, s{sW}, 1')
    p('s_lshl_b32 s11, s9, 6')
    p('s_add_u32 s10, s10, s11')
    p(f's_add_u32 s10, s10, {KB}')
    p('s_lshl_b32 s9, s9, 5')
    p('s_add_u32 s7, s7, s9')
    p(f'v_mul_u32_u24 v3, {BS}, v8')
    p('v_lshl_add_u32 v3, v7, 3, v3')
    p('v_add_u32 v3, s10, v3')
    p('v_lshlrev_b32 v9, 3, v8')
    p('v_add_u32 v9, s8, v9')
    p('v_lshlrev_b32 v7, 2, v7')
    p('v_add_u32 v7, s7, v7')
    p('v_lshlrev_b32 v5, 3, v7')
    srd(p, 48, P_SH, 4608)
    p('buffer_load_dwordx4 v[48:51], v5, s[48:51], 0 offen')
    p('buffer_load_dwordx4 v[52:55], v5, s[48:51], 0 offen offset:16')
    p('v_lshlrev_b32 v6, 12, v7')
    p('v_sub_u32 v8, 2040, v9')
    p('v_lshl_add_u32 v6, v8, 1, v6')

def nonce_load(p):
    srd(p, 48, P_DBG, 256)
    p('v_mov_b32 v241, 0')
    p('buffer_load_dwordx2 v[242:243], v241, s[48:51], 0 offen sc1')

def a1_compute(p, sc):
    K, Vv, Sx, P, KS, OUT = 10, 32, 48, 56, 96, 128
    srd(p, 52, P_WS, SZ_A, WS_XR)
    p('s_mov_b32 s10, 0x05040100')
    p('s_mov_b32 s11, 0x07060302')
    p('s_movk_i32 s12, 0x1000')
    p('s_movk_i32 s13, 0x2000')
    p('s_movk_i32 s14, 0x3000')
    if not ADELAY: a2_addr(p)
    p('s_waitcnt vmcnt(0)')
    p('s_barrier')
    stamp(p, 1)
    for i in range(11):
        p(f'ds_read_b64 {vr(K+2*i,2)}, v3 offset:{(5+i)*128 if i < 3 else BS+128*(i-3)}')
    for j in range(4):
        p(f'ds_read_b64 {vr(Vv+2*j,2)}, v3 offset:{VB-KB+128*j}')
    p('s_add_u32 m0, s63, 32')
    p('s_mov_b64 exec, 15')
    p('ds_write_b64 v227, v[228:229]')
    p(f'ds_write_b64 v227, v[228:229] offset:{H1-4}')
    p('s_mov_b64 exec, -1')
    for i in range(4):
        p(f'buffer_load_dwordx4 v223, s[56:59], s60 offen offset:{1024*i}{nt("a")} lds')
    nonce_load(p)
    for i in range(1, 11):
        if i in (1, 4, 7): p(f's_waitcnt lgkmcnt({max(0, 17-1-(i+2 if i < 7 else 10))})')
        for c in range(4):
            p(f'v_perm_b32 v{P+10*c+i-1}, v{K+2*(i-1)+(c>>1)}, v{K+2*i+(c>>1)}, s{10+(c&1)}')
    for j in range(4, 8):
        p(f'ds_read_b64 {vr(Vv+2*j,2)}, v3 offset:{VB-KB+128*j}')
    for j in range(8):
        for c in range(4):
            p(f'v_dot2_f32_bf16 v{KS+8*c+j}, v{P+10*c+j}, v{Sx+2*c+1}, 0')
    for j in range(8):
        for c in range(4):
            p(f'v_dot2_f32_bf16 v{KS+8*c+j}, v{P+10*c+j+2}, v{Sx+2*c}, v{KS+8*c+j}')
    p('s_waitcnt lgkmcnt(0)')
    for c in range(4):
        for j in range(8):
            if c & 1: p(f'v_and_b32 v{P+8*c+j}, 0xffff0000, v{Vv+2*j+(c>>1)}')
            else: p(f'v_lshlrev_b32 v{P+8*c+j}, 16, v{Vv+2*j+(c>>1)}')
        for j in range(0, 8, 2):
            p(f'v_pk_mul_f32 {vr(KS+8*c+j,2)}, {vr(KS+8*c+j,2)}, {vr(P+8*c+j,2)}')
        for q in range(4):
            p(f'v_cvt_pk_bf16_f32 v{OUT+4*c+q}, v{KS+8*c+7-2*q}, v{KS+8*c+6-2*q}')
        so = '0' if c == 0 else f's{11+c}'
        p(f'buffer_store_dwordx4 {vr(OUT+4*c,4)}, v6, s[52:55], {so} offen{sc}')

HD, HP, HT = 144, 160, 164
QR, XS = 180, 196
vHa, vXa, vEa, vZw, vZr, vQo, vOo, vLb, vXw = 212, 216, 217, 218, 219, 220, 221, 222, 226

def a2_addr(p):
    srd(p, 56, P_H, SZ_A)
    p('s_lshl_b32 s15, s6, 3')
    p(f's_add_u32 s15, s15, s{sW}')
    p('s_lshl_b32 s60, s15, 12')
    p('v_lshlrev_b32 v223, 4, v1')
    p('v_add_u32 v224, s60, v223')
    p('s_lshr_b32 s61, s15, 1')
    p('s_lshl_b32 s61, s61, 2')
    p(f's_load_dword s62, s[{P_D}:{P_D+1}], s61')
    p(f's_mul_i32 s63, s{sW}, {HS}')
    p(f's_mul_i32 s67, s{sW}, {XS_}')
    p(f's_add_u32 s67, s67, {XB}')
    p(f'v_add_u32 v{vLb}, s63, v223')
    p(f'v_add_u32 v{vXw}, s67, v223')
    p('v_lshlrev_b32 v227, 3, v1')
    p('v_add_u32 v225, s67, v227')
    p('v_add_u32 v227, s63, v227')
    p('v_and_b32 v228, 15, v1')
    p('v_lshrrev_b32 v229, 4, v1')
    p('v_and_b32 v230, 1, v1')
    p('v_cmp_eq_u32 vcc, 1, v230')
    p(f'v_mov_b32 v231, {H1}')
    p('v_lshlrev_b32 v230, 5, v228')
    p('v_cndmask_b32 v231, v231, 2, vcc')
    p('v_lshl_add_u32 v231, v228, 1, v231')
    p('v_lshl_add_u32 v231, v229, 4, v231')
    p(f'v_add_u32 v{vHa}, s63, v231')
    for i in range(1, 4):
        p(f'v_add_u32 v{vHa+i}, {1024*i}, v{vHa}')
    p('v_sub_u32 v231, 480, v230')
    p('v_lshl_add_u32 v231, v229, 4, v231')
    p(f'v_add_u32 v{vXa}, s67, v231')
    p('v_sub_u32 v231, 504, v230')
    p('v_lshlrev_b32 v232, 3, v229')
    p('v_sub_u32 v231, v231, v232')
    p(f'v_add_u32 v{vEa}, s67, v231')
    p('v_add_u32 v231, v230, v232')
    p(f'v_add_u32 v{vZw}, s63, v231')
    p('v_bfe_u32 v231, v1, 2, 2')
    p(f'v_mul_u32_u24 v231, {HS}, v231')
    p('v_lshl_add_u32 v231, v229, 5, v231')
    p('v_and_b32 v232, 3, v1')
    p('v_lshl_add_u32 v231, v232, 3, v231')
    p(f's_lshl_b32 s64, s{sW}, 9')
    p(f'v_add_u32 v{vZr}, s64, v231')
    p(f's_lshl_b32 s64, s{sW}, 8')
    p('v_add_u32 v231, s64, v1')
    p('s_lshl_b32 s65, s6, 4')
    p(f'v_mul_u32_u24 v{vQo}, 1152, v231')
    p(f'v_add_u32 v{vQo}, s65, v{vQo}')
    p(f'v_mul_u32_u24 v{vOo}, 2304, v231')
    p(f'v_add_u32 v{vOo}, s65, v{vOo}')
    p('s_add_u32 s68, s6, 144')
    p('s_and_b32 s9, s68, 0xf8')
    p(f's_mul_i32 s68, s68, {FLS}')
    p(f's_mul_i32 s9, s9, {FLS}')
    p(f'v_mul_u32_u24 v233, {FLS}, v1')
    p('v_add_u32 v233, s9, v233')
    p('s_mov_b32 s66, 0xff')
    p('v_mov_b32 v228, 0')
    p('v_mov_b32 v229, 0')

def a2_hstage(p):
    p('s_waitcnt vmcnt(5)')
    for i in range(4):
        p(f'ds_read_b128 {vr(HD+4*i,4)}, v{vLb} offset:{32+1024*i}')
        p(f'ds_read_b32 v{HP+i}, v{vLb} offset:{28+1024*i}')
    for i in range(4):
        p(f's_waitcnt lgkmcnt({6-2*i if i < 3 else 0})' if i == 0 else f's_waitcnt lgkmcnt({6-2*i+i})')
        p(f'v_alignbit_b32 v{HT+4*i}, v{HD+4*i}, v{HP+i}, 16')
        for d in range(1, 4):
            p(f'v_alignbit_b32 v{HT+4*i+d}, v{HD+4*i+d}, v{HD+4*i+d-1}, 16')
        p(f'ds_write_b128 v{vLb}, {vr(HT+4*i,4)} offset:{H1+28+1024*i}')

def a2_qloads(p):
    srd(p, 40, P_Q, SZ_A)
    for j in range(4):
        p(f's_mov_b32 s65, {64*1152*j}')
        p(f'buffer_load_dwordx4 {vr(QR+4*j,4)}, v{vQo}, s[40:43], s65 offen')
    return 4

def a2_main(p, k, sc, qlater):
    srd(p, 52, P_WS, SZ_A, WS_XR)
    for i in range(4):
        p(f'buffer_load_dwordx4 {vr(XS+4*i,4)}, v224, s[52:55], 0 offen offset:{1024*i}{sc}')
    p('s_mov_b32 exec_hi, 0x0fffffff')
    p('ds_write_b64 v225, v[228:229] offset:4096')
    p('s_mov_b32 exec_hi, -1')
    FA = [10, 74]; FB = [42, 106]; ACC = 138
    def a_reads(st, b):
        r = []
        for a in range(8):
            o = 128 * (a & 1) + 16 * b
            r.append(f'ds_read2_b32 {vr(FA[st]+4*a,2)}, v{vHa+(a>>1)} offset0:{o} offset1:{o+1}')
            r.append(f'ds_read2_b32 {vr(FA[st]+4*a+2,2)}, v{vHa+(a>>1)} offset0:{o+2} offset1:{o+3}')
        return r
    def b_reads(st, b):
        return [f'ds_read_b128 {vr(FB[st]+4*e,4)}, v{vXa} offset:{64*(56-8*e+b)}' for e in range(8)]
    def reads(st, b):
        A, B = a_reads(st, b), b_reads(st, b)
        out = []
        for i in range(8):
            out += [B[i], A[2*i], A[2*i+1]]
        return out
    def mfmas(st):
        out = []
        for s_ in range(8):
            for a in range(8):
                for e in range(8):
                    if a + e <= 7 and max(a, e) == s_:
                        n = a + e
                        out.append(f'v_mfma_f32_16x16x32_bf16 {vr(ACC+4*n,4)}, {vr(FA[st]+4*a,4)}, {vr(FB[st]+4*e,4)}, {vr(ACC+4*n,4)}')
        return out
    for i in range(32):
        p(f'v_mov_b32 v{ACC+i}, 0')
    p('s_waitcnt lgkmcnt(0)')
    for x in a_reads(0, 0): p(x)
    for i in range(4):
        p(f's_waitcnt vmcnt({3-i})')
        p(f'ds_write_b128 v{vXw}, {vr(XS+4*i,4)} offset:{1024*i}')
    p('s_waitcnt lgkmcnt(0)')
    stamp(p, 13)
    for x in b_reads(0, 0): p(x)
    p('s_mov_b32 s64, 0')
    p.label(f'L_a2loop_{k}')
    p('s_waitcnt lgkmcnt(0)')
    for x in interleave(mfmas(0), reads(1, 1), lead=1, frac=FR): p(x)
    p('s_waitcnt lgkmcnt(0)')
    for x in interleave(mfmas(1), reads(0, 2), lead=1, frac=FR): p(x)
    p('s_cmp_lg_u32 s64, 0')
    p(f's_cbranch_scc1 L_a2nq_{k}')
    a2_qloads(p)
    p.label(f'L_a2nq_{k}')
    for i in range(4):
        p(f'v_add_u32 v{vHa+i}, 128, v{vHa+i}')
    p(f'v_add_u32 v{vXa}, 128, v{vXa}')
    p('s_add_u32 s64, s64, 1')
    p('s_cmp_lt_u32 s64, 4')
    p(f's_cbranch_scc1 L_a2loop_{k}')
    KV = 10
    p('s_waitcnt lgkmcnt(0)')
    stamp(p, 14)
    for n in range(8):
        p(f'ds_read_b64 {vr(KV+2*n,2)}, v{vEa} offset:{512*(7-n)}')
    p('s_and_b32 s61, s15, 1')
    p('s_lshl_b32 s61, s61, 4')
    p('s_lshr_b32 s62, s62, s61')
    p('s_lshl_b32 s62, s62, 16')
    T = 42
    for n in range(8):
        p(f's_waitcnt lgkmcnt({7-n})' if n < 8 else '')
        d0, d1 = KV + 2*n, KV + 2*n + 1
        t = T + 4*n
        p(f'v_and_b32 v{t}, 0xffff0000, v{d1}')
        p(f'v_lshlrev_b32 v{t+1}, 16, v{d1}')
        p(f'v_and_b32 v{t+2}, 0xffff0000, v{d0}')
        p(f'v_lshlrev_b32 v{t+3}, 16, v{d0}')
        for rr in range(4):
            p(f'v_fmac_f32 v{ACC+4*n+rr}, s62, v{t+rr}')
        p(f'v_cvt_pk_bf16_f32 v{t}, v{ACC+4*n}, v{ACC+4*n+1}')
        p(f'v_cvt_pk_bf16_f32 v{t+1}, v{ACC+4*n+2}, v{ACC+4*n+3}')
    for n in range(8):
        p(f'ds_write_b64 v{vZw}, {vr(T+4*n,2)} offset:{512*n}')
    srd(p, 44, P_OUT, SZ_OUT)
    p('s_waitcnt lgkmcnt(0)')
    stamp(p, 15)
    p('s_barrier')
    stamp(p, 16)
    Z = 74
    for j in range(4):
        p(f'ds_read_b64_tr_b16 {vr(Z+4*j,2)}, v{vZr} offset:{128*j}')
        p(f'ds_read_b64_tr_b16 {vr(Z+4*j+2,2)}, v{vZr} offset:{4*HS+128*j}')
    p('s_waitcnt vmcnt(0)')
    stamp(p, 17)
    U = 106
    for j in range(4):
        p(f's_waitcnt lgkmcnt({6-2*j})')
        for d in range(4):
            z, q = Z + 4*j + d, QR + 4*j + d
            p(f'v_lshlrev_b32 v{U}, 16, v{z}')
            p(f'v_lshlrev_b32 v{U+1}, 16, v{q}')
            p(f'v_and_b32 v{U+2}, 0xffff0000, v{z}')
            p(f'v_and_b32 v{U+3}, 0xffff0000, v{q}')
            p(f'v_mul_f32 v{U}, v{U}, v{U+1}')
            p(f'v_mul_f32 v{U+2}, v{U+2}, v{U+3}')
            p(f'v_cvt_pk_bf16_f32 v{z}, v{U}, v{U+2}')
            U = 106 + (U - 106 + 4) % 16
        p(f's_mov_b32 s64, {64*2304*j}')
        p(f'buffer_store_dwordx4 {vr(Z+4*j,4)}, v{vOo}, s[44:47], s64 offen{OUTA}')

WPS = 1056
WOFF = 16384
STG = WOFF + 32 * WPS
WOB = 0
KQS = 304
KQB = 73728
VTB = KQB + 128 * KQS
VP = 73 * 144
OB = VTB + 2 * VP
SCR = OB + 18432
RED = KQB
assert SCR + 1024 <= LDS_BYTES and 3 * STG <= SCR
ACCB = 64
SET = [(128, 144), (160, 176)]
vD = [2, 3, 4, 4, 4, 4]
vXb0, vXb1, vWb = 8, 9, 10
vXa0, vXa1, vWa = 11, 12, 13
vKQ, vVT, vWo = 14, 15, 16
vQm = 17
vBias, vBias0 = 24, 28
vTmp = 33
vKf, vV0, vV1, vOw = 5, 6, 7, 21
vOs = [21, 22, 23]
vWoL = 32
vG = 56
sB = [84, 85, 86, 87, 88, 89]
sO = [74, 75, 76, 77, 78, 79]
sDst, sStage, sNext, sChunk = 80, 81, 82, 83
SRDx, SRDw = 40, 44

def b_decode(p):
    p('s_and_b32 s6, s4, 1')
    p('s_mul_i32 s6, s6, 9')
    p('s_lshr_b32 s8, s5, 1')
    p('s_add_u32 s6, s6, s8')
    p('s_and_b32 s7, s4, 6')
    p('s_and_b32 s8, s5, 1')
    p('s_add_u32 s7, s7, s8')
    p('s_mul_i32 s8, s6, 114')

def b1_dma_addr(p):
    t = vTmp
    p(f's_and_b32 s9, s{sW}, 3')
    p('s_lshl_b32 s9, s9, 5')
    p(f's_lshr_b32 s10, s{sW}, 2')
    p('s_add_u32 s9, s9, s10')
    p('s_add_u32 s9, s9, s8')
    p(f'v_lshrrev_b32 v{t}, 3, v1')
    p(f'v_lshl_add_u32 v{t+1}, v{t}, 1, s9')
    p(f'v_mul_u32_u24 v{t+1}, 1152, v{t+1}')
    p(f'v_lshrrev_b32 v{t+2}, 4, v1')
    p(f'v_and_b32 v{t+3}, 7, v1')
    p(f'v_xor_b32 v{t+2}, v{t+2}, v{t+3}')
    p(f'v_lshl_add_u32 v2, v{t+2}, 4, v{t+1}')
    p(f'v_xor_b32 v3, 64, v2')
    p(f'v_add_u32 v3, {16*1152}, v3')
    p('v_cmp_le_u32 vcc, 27, v1')
    p(f'v_subrev_u32 v{t}, 27, v1')
    p(f'v_mov_b32 v{t+1}, {4*3456}')
    p(f'v_cndmask_b32 v{t}, v1, v{t}, vcc')
    p(f'v_cndmask_b32 v{t+1}, 0, v{t+1}, vcc')
    p(f'v_lshl_add_u32 v{t+1}, v{t}, 4, v{t+1}')
    p(f'v_cmp_gt_u32 vcc, 9, v{t}')
    p(f'v_cmp_le_u32 s[10:11], 18, v{t}')
    p(f'v_mov_b32 v{t+2}, -144')
    p(f'v_mov_b32 v{t+3}, 1152')
    p(f'v_cndmask_b32 v{t+2}, v{t+2}, v{t+3}, vcc')
    p(f'v_mov_b32 v{t+3}, 2016')
    p('v_cmp_le_u32 vcc, 54, v1')
    p(f'v_cndmask_b32 v{t+2}, v{t+2}, v{t+3}, s[10:11]')
    p('s_mul_i32 s10, s7, 144')
    p(f'v_mov_b32 v{t+3}, {OOB}')
    p(f'v_add3_u32 v4, v{t+1}, v{t+2}, s10')
    p(f'v_cndmask_b32 v4, v4, v{t+3}, vcc')
    p(f's_lshl_b32 s{sB[0]}, s{sW}, 11')
    p(f's_add_u32 s{sB[1]}, s{sB[0]}, 1024')
    p(f's_mul_i32 s{sB[2]}, s{sW}, {4*WPS}')
    p(f's_add_u32 s{sB[2]}, s{sB[2]}, {WOFF}')
    for n in range(1, 4): p(f's_add_u32 s{sB[2+n]}, s{sB[2]}, {WPS*n}')
    p(f's_mov_b32 s{sO[0]}, 0')
    p(f's_mov_b32 s{sO[1]}, 0')
    p(f's_mul_i32 s{sO[2]}, s{sW}, {8*3456}')
    for n in range(1, 4): p(f's_add_u32 s{sO[2+n]}, s{sO[2]}, {3456*n}')
    p(f's_mov_b32 s{sDst}, 0')

def dma_slot(i):
    srd_ = SRDx if i < 2 else SRDw
    return [f's_add_u32 m0, s{sB[i]}, s{sDst}', f'buffer_load_dwordx4 v{vD[i]}, s[{srd_}:{srd_+3}], s{sO[i]} offen lds']

def dma_advance(lo=0, hi=6):
    return [f's_add_u32 s{sO[i]}, s{sO[i]}, {128 if i < 2 else 221184}' for i in range(lo, hi)]

def b1_consts():
    p = Prog()
    t = vTmp
    c, g = t, t + 1
    p(f'v_and_b32 v{c}, 15, v1')
    p(f'v_lshrrev_b32 v{g}, 4, v1')
    p(f'v_mov_b32 v{vG}, v{g}')
    p(f's_and_b32 s14, s{sW}, 1')
    p(f's_lshr_b32 s15, s{sW}, 1')
    p(f'v_lshrrev_b32 v{t+2}, 1, v{c}')
    p(f'v_xor_b32 v{t+2}, v{t+2}, v{g}')
    p(f'v_lshlrev_b32 v{t+2}, 4, v{t+2}')
    p(f'v_lshl_add_u32 v{t+2}, v{c}, 7, v{t+2}')
    p('s_lshl_b32 s9, s14, 13')
    p(f'v_add_u32 v{vXb0}, s9, v{t+2}')
    p(f'v_xor_b32 v{vXb1}, 64, v{vXb0}')
    p(f'v_lshrrev_b32 v{t+2}, 2, v1')
    p(f'v_mul_u32_u24 v{t+2}, {WPS}, v{t+2}')
    p(f'v_and_b32 v{t+3}, 3, v1')
    p(f'v_lshl_add_u32 v{t+2}, v{t+3}, 3, v{t+2}')
    p('s_lshl_b32 s9, s15, 2')
    p('s_mul_i32 s10, s15, 3')
    p('s_add_u32 s10, s10, 2')
    p('s_cmp_lt_u32 s15, 2')
    p('s_cselect_b32 s70, s9, s10')
    p('s_lshl_b32 s9, s70, 5')
    p(f's_add_u32 s10, s9, {WOFF}')
    p(f'v_add_u32 v{vWb}, s10, v{t+2}')
    p(f'v_mov_b32 v{vXa1}, v{vXb1}')
    p(f'v_mov_b32 v{vWa}, v{vWb}')
    for i in range(64):
        p(f'v_mov_b32 v{ACCB+i}, 0')
    p(f's_mul_i32 s10, s14, {64*KQS}')
    p(f's_add_u32 s10, s10, {KQB}')
    p('s_add_u32 s9, s9, s10')
    p(f'v_mul_u32_u24 v{t+2}, {KQS}, v{c}')
    p(f'v_lshl_add_u32 v{t+3}, v{g}, 3, v{t+2}')
    p(f'v_add_u32 v{vKQ}, s9, v{t+3}')
    p('s_lshl_b32 s9, s15, 5')
    p('s_add_u32 s9, s9, s10')
    p(f'v_lshl_add_u32 v{t+3}, v{g}, 4, v{t+2}')
    p(f'v_add_u32 v{vKf}, s9, v{t+3}')
    p(f'v_mul_u32_u24 v{t+2}, 144, v{c}')
    p(f'v_lshl_add_u32 v{t+2}, v{g}, 3, v{t+2}')
    p(f's_mul_i32 s9, s14, {VP}')
    p(f's_add_u32 s9, s9, {VTB}')
    p('s_mul_i32 s10, s70, 2304')
    p('s_add_u32 s10, s10, s9')
    p(f's_sub_u32 s10, s10, {9*2304}')
    p(f'v_add_u32 v{vVT}, s10, v{t+2}')
    p('s_mul_i32 s10, s15, 2592')
    p('s_add_u32 s10, s10, s9')
    p(f'v_add_u32 v{vV0}, s10, v{t+2}')
    p(f'v_and_b32 v{t+3}, 2, v1')
    p(f'v_cmp_eq_u32 vcc, 0, v{t+3}')
    p(f'v_and_b32 v{t+3}, 1, v1')
    p(f'v_mul_u32_u24 v{t+3}, 144, v{t+3}')
    p(f's_add_u32 s10, s10, {16*144}')
    p(f'v_add_u32 v{t+3}, s10, v{t+3}')
    p(f's_add_u32 s9, s9, {72*144}')
    p(f'v_mov_b32 v{t+4}, s9')
    p(f'v_cndmask_b32 v{t+3}, v{t+4}, v{t+3}, vcc')
    p(f'v_lshl_add_u32 v{vV1}, v{g}, 3, v{t+3}')
    p('s_mul_i32 s9, s6, 57')
    p('s_cmp_eq_u32 s6, 0')
    p('s_cselect_b32 s12, 0, 7')
    p('s_mul_i32 s10, s14, 18432')
    p('s_lshl_b32 s11, s15, 12')
    p('s_add_u32 s11, s11, s10')
    p('s_lshl_b32 s13, s7, 8')
    p('s_add_u32 s11, s11, s13')
    p(f'v_and_b32 v{t+3}, 31, v1')
    p(f'v_cmp_gt_u32 vcc, s12, v{t+3}')
    p(f'v_add_u32 v{t+3}, s9, v{t+3}')
    p(f'v_lshrrev_b32 v{t+4}, 4, v{t+3}')
    p(f'v_mul_u32_u24 v{t+4}, 36864, v{t+4}')
    p(f'v_and_b32 v{t+3}, 15, v{t+3}')
    p(f'v_lshl_add_u32 v{t+4}, v{t+3}, 4, v{t+4}')
    p(f'v_lshrrev_b32 v{t+3}, 5, v1')
    p(f'v_lshl_add_u32 v{t+4}, v{t+3}, 11, v{t+4}')
    p(f'v_add_u32 v{vOs[0]}, s11, v{t+4}')
    p(f'v_add_u32 v{vOs[1]}, {2*36864}, v{vOs[0]}')
    p(f'v_mov_b32 v{t+5}, {OOB}')
    p(f'v_cndmask_b32 v{vOs[0]}, v{vOs[0]}, v{t+5}, vcc')
    p('v_cmp_gt_u32 vcc, s12, v1')
    p(f'v_add_u32 v{t+3}, s9, v1')
    p(f'v_lshrrev_b32 v{t+4}, 4, v{t+3}')
    p(f'v_mul_u32_u24 v{t+4}, 36864, v{t+4}')
    p(f'v_and_b32 v{t+3}, 15, v{t+3}')
    p(f'v_lshl_add_u32 v{t+4}, v{t+3}, 4, v{t+4}')
    p('s_add_u32 s10, s10, s13')
    p('s_lshl_b32 s11, s15, 2')
    p('s_add_u32 s10, s10, s11')
    p(f's_add_u32 s10, s10, {64*256}')
    p(f'v_add_u32 v{vOs[2]}, s10, v{t+4}')
    p(f'v_cndmask_b32 v{vOs[2]}, v{vOs[2]}, v{t+5}, vcc')
    p(f'v_lshlrev_b32 v{t+2}, 2, v{g}')
    p(f'v_subrev_u32 v{t+3}, s15, v{t+2}')
    for i in range(4):
        p(f'v_add_u32 v{t+4+i}, {i}, v{t+3}')
    for i in range(4):
        p(f'v_cmp_gt_u32 s[{10+2*(i&1)}:{11+2*(i&1)}], 9, v{t+4+i}')
        if i & 1:
            p('s_nop 0')
            p(f'v_cndmask_b32 v{vQm+i-1}, 0, -1, s[10:11]')
            p(f'v_cndmask_b32 v{vQm+i}, 0, -1, s[12:13]')
    p(f'v_sub_u32 v{t+2}, v{c}, v{t+2}')
    p(f'v_cmp_ge_i32 s[72:73], -6, v{t+2}')
    p(f'v_mov_b32 v{t+5}, 0xf149f2ca')
    for rr in range(4):
        p(f'v_subrev_u32 v{t+3}, {rr}, v{t+2}')
        p(f'v_and_b32 v{t+4}, 8, v{t+3}')
        p(f'v_cmp_ge_u32 s[10:11], 7, v{t+3}')
        p(f'v_cmp_eq_u32 vcc, 0, v{t+4}')
        p('s_nop 0')
        p(f'v_cndmask_b32 v{vBias0+rr}, v{t+5}, 0, s[10:11]')
        p(f'v_cndmask_b32 v{vBias+rr}, v{t+5}, 0, vcc')
    p('s_cmp_ge_u32 s5, 9')
    p('s_cselect_b32 s9, 1, 0')
    p('s_lshl_b32 s66, s4, 1')
    p('s_add_u32 s66, s66, s9')
    p('s_mul_i32 s9, s9, 9')
    p('s_sub_u32 s67, s5, s9')
    p(f'v_lshrrev_b32 v{t}, 3, v1')
    p(f'v_mul_u32_u24 v{t}, 1152, v{t}')
    p(f'v_bfe_u32 v{t+1}, v1, 4, 1')
    p(f'v_lshlrev_b32 v{t+1}, 1, v{t+1}')
    p(f'v_and_b32 v{t+2}, 7, v1')
    p(f'v_xor_b32 v{t+1}, v{t+1}, v{t+2}')
    p('s_lshl_b32 s9, s14, 2')
    p(f'v_xor_b32 v{t+1}, s9, v{t+1}')
    p('s_lshl_b32 s9, s67, 7')
    p(f'v_add_u32 v{t}, s9, v{t}')
    p(f'v_lshl_add_u32 v{vWo}, v{t+1}, 4, v{t}')
    p(f'v_lshrrev_b32 v{t}, 4, v1')
    p(f'v_mul_u32_u24 v{t}, {16*1152}, v{t}')
    p(f'v_add_u32 v{t}, {16*1152}, v{t}')
    p(f'v_add_u32 v{vWoL}, v{vWo}, v{t}')
    b2_addr(p)
    return glue_scc(p.lines)

def b1_variant(p, k, var):
    types = [['kq']*4, ['kq', 'v', 'v'], ['v']*3][var]
    nT = len(types)
    def reads(st, ks, xa):
        X, W = SET[st]
        r = [f'ds_read_b128 {vr(X+4*t,4)}, v{xa} offset:{2048*t}' for t in range(4)]
        for j in range(nT):
            for hf in range(2):
                r.append(f'ds_read_b64_tr_b16 {vr(W+4*j+2*hf,2)}, v{vWa} offset:{16*WPS*ks+432*hf+32*j}')
        return r
    def mfmas(st):
        X, W = SET[st]
        out = []
        for j in range(nT):
            for t in range(4):
                a = vr(ACCB+16*j+4*t, 4)
                if types[j] == 'kq': out.append(f'v_mfma_f32_16x16x32_bf16 {a}, {vr(W+4*j,4)}, {vr(X+4*t,4)}, {a}')
                else: out.append(f'v_mfma_f32_16x16x32_bf16 {a}, {vr(X+4*t,4)}, {vr(W+4*j,4)}, {a}')
        return out
    L = f'{k}_{var}'
    X_ = os.environ.get('X', '')
    global dma_slot
    ds0 = dma_slot
    if 'd' in X_: dma_slot = lambda i: []
    if 'r' in X_: reads = lambda st, ks, xa: []
    if 'm' in X_: mfmas = lambda st: ['s_nop 0'] * 4
    for x in reads(0, 0, vXb0): p(x)
    for x in dma_slot(0) + dma_slot(1) + dma_slot(2): p(x)
    if PFB and var < 2 and PF2POS == 'loop':
        p(f's_cmp_lt_u32 s{sW}, {PFB-1}')
        p(f's_cbranch_scc1 L_b1loop_{L}')
        for x in pf_loads(246, 247, 60, 61, 248): p(x)
    p.label(f'L_b1loop_{L}')
    if PRIO == 2: p(f's_setprio {1 if var == 0 else 0}')
    if PRIO == 3: p(f's_setprio {0 if var == 0 else 1}')
    p('s_waitcnt lgkmcnt(0)')
    sec = interleave(reads(1, 1, vXa1), dma_slot(3) + dma_slot(4) + dma_slot(5))
    mf = mfmas(0)
    nh = len(mf) - 4
    for x in interleave(mf[:nh], sec, lead=1, frac=FR2): p(x)
    p(f's_cmp_ge_u32 s{sChunk}, 6')
    p(f's_cbranch_scc1 L_b1sp_{L}')
    upd = [f's_mov_b32 s{sDst}, s{sStage}'] + dma_advance()
    for x in interleave(mf[nh:nh+2], upd): p(x)
    p.label(f'L_b1mid_{L}')
    upd = [f'v_add_u32 v{vXa0}, s{sNext}, v{vXb0}', f'v_add_u32 v{vXa1}, s{sNext}, v{vXb1}', f's_mov_b32 s{sStage}, s{sNext}', f's_add_u32 s{sChunk}, s{sChunk}, 1']
    for x in interleave(mf[nh+2:], upd): p(x)
    p('s_waitcnt vmcnt(6) lgkmcnt(0)')
    p('s_barrier')
    if PROF == 2:
        p('s_memtime s[96:97]')
        p(f's_add_u32 m0, s{sChunk}, 39')
        p('s_waitcnt lgkmcnt(0)')
        p('v_writelane_b32 v253, s96, m0')
    mf = mfmas(1)
    if PRIO == 2: p(f's_setprio {0 if var == 0 else 1}')
    if PRIO == 3: p(f's_setprio {1 if var == 0 else 0}')
    p(mf[0])
    p(f'v_add_u32 v{vWa}, s{sNext}, v{vWb}')
    sec = interleave(reads(0, 0, vXa0), dma_slot(0) + dma_slot(1) + dma_slot(2))
    sec.append(f's_add_u32 s{sNext}, s{sStage}, {STG}\ns_cmp_eq_u32 s{sNext}, {3*STG}\ns_cselect_b32 s{sNext}, 0, s{sNext}')
    for x in interleave(mf[1:-1], sec, lead=1, frac=FR): p(x)
    p(f's_cmp_lt_u32 s{sChunk}, 9')
    p(mf[-1])
    p(f's_cbranch_scc1 L_b1loop_{L}')
    dma_slot = ds0
    stamp(p, 2, f'b1b_{L}')
    Z = SET[0][0]
    p('s_waitcnt lgkmcnt(0)')
    if var == 0:
        p(f'v_lshrrev_b32 v{Z}, 5, v1')
        p(f'v_mul_u32_u24 v{Z}, {VP}, v{Z}')
        p(f'v_and_b32 v{Z+1}, 31, v1')
        p(f'v_lshl_add_u32 v{Z}, v{Z+1}, 2, v{Z}')
        p(f'v_add_u32 v{Z}, {VTB+72*144}, v{Z}')
        p(f'v_mov_b32 v{Z+1}, 0x3f803f80')
        p(f'ds_write_b32 v{Z}, v{Z+1}')
    T = Z + 8
    u = 0
    for j in range(nT):
        if var == 2 and j == 2:
            p('s_mov_b32 exec_lo, 0x00ff00ff')
            p('s_mov_b32 exec_hi, 0x00ff00ff')
        for t in range(4):
            a = ACCB + 16*j + 4*t
            d = T + 2*(u % 8); u += 1
            p(f'v_cvt_pk_bf16_f32 v{d}, v{a}, v{a+1}')
            p(f'v_cvt_pk_bf16_f32 v{d+1}, v{a+2}, v{a+3}')
            if types[j] == 'kq':
                p(f'ds_write_b64 v{vKQ}, {vr(d,2)} offset:{16*KQS*t+32*j}')
            else:
                p(f'ds_write_b64 v{vVT}, {vr(d,2)} offset:{2304*j+32*t}')
    if var == 2: p('s_mov_b64 exec, -1')
    p(f's_branch L_attn_{k}')
    p.label(f'L_b1sp_{L}')
    for x in mfmas(0)[nh:nh+2]: p(x)
    p(f's_cmp_eq_u32 s{sChunk}, 7')
    p(f's_cbranch_scc1 L_b1sp7_{L}')
    p(f's_cmp_eq_u32 s{sChunk}, 8')
    p(f's_cbranch_scc1 L_b1sp8_{L}')
    for r in (SRDx, SRDw):
        p(f's_mov_b32 s{r}, s{P_WO}')
        p(f's_and_b32 s{r+1}, s{P_WO+1}, 0xffff')
        p(f's_mov_b32 s{r+2}, {SZ_WO}')
    for v in (2, 3, 4): p(f'v_mov_b32 v{v}, v{vWo}')
    nonce_load(p)
    p(f's_mov_b32 s{sDst}, {WOB}')
    p(f's_lshl_b32 s{sB[0]}, s{sW}, 10')
    p(f's_mul_i32 s{sO[0]}, s{sW}, {72*1152}')
    for i in range(1, 6):
        p(f's_add_u32 s{sB[i]}, s{sB[0]}, {8192*i}')
        p(f's_add_u32 s{sO[i]}, s{sO[0]}, {(18*(i>>1)+8*(i&1))*1152}')
    p(f's_branch L_b1mid_{L}')
    p.label(f'L_b1sp7_{L}')
    p(f'v_mov_b32 v4, v{vWoL}')
    for i in range(3):
        p(f's_add_u32 s{sB[i]}, s{sB[i]}, {8192*6}')
        p(f's_add_u32 s{sO[i]}, s{sO[i]}, {54*1152}' if i < 2 else f's_sub_u32 s{sO[i]}, s{sO[i]}, {18*1152}')
        p(f's_mov_b32 s{sB[3+i]}, {SCR-WOB}')
        p(f's_mov_b32 s{sO[3+i]}, {OOB}')
    p(f's_branch L_b1mid_{L}')
    p.label(f'L_b1sp8_{L}')
    for i in range(3):
        p(f's_mov_b32 s{sB[i]}, {SCR-WOB}')
        p(f's_mov_b32 s{sO[i]}, {OOB}')
    p(f's_branch L_b1mid_{L}')

def attention(p, k, sc):
    KF, QF, V0, V1 = 64, 80, 96, 106
    S1, S0 = 116, 132
    p.label(f'L_attn_{k}')
    if PRIO >= 2: p('s_setprio 0')
    for i in range(2):
        p(f'v_mov_b32 v{V0+i}, 0')
        p(f'v_mov_b32 v{V1+i}, 0')
    p('s_mov_b32 s90, 0x3eae1a93')
    p('s_mov_b32 s91, 0x3eae1a93')
    srd(p, 52, P_WS, SZ_A, WS_O)
    p(f'v_cmp_eq_u32 s[10:11], 1, v{vG}')
    p(f'v_cmp_eq_u32 s[12:13], 2, v{vG}')
    p(f'v_cmp_eq_u32 s[74:75], 3, v{vG}')
    p('s_waitcnt lgkmcnt(0)')
    stamp(p, 3)
    p('s_barrier')
    stamp(p, 4)
    for t in range(4):
        p(f'ds_read_b128 {vr(QF+4*t,4)}, v{vKf} offset:{144+16*KQS*t}')
        p(f'ds_read_b128 {vr(KF+4*t,4)}, v{vKf} offset:{16*KQS*t}')
    for t in range(4):
        p(f'ds_read_b64 {vr(V0+2+2*t,2)}, v{vV0} offset:{32*t}')
        p(f'ds_read_b64 {vr(V1+2+2*t,2)}, v{vV1} offset:{32*t}')
    for t in range(4):
        p(f's_waitcnt lgkmcnt({15-2*t})')
        for i in range(4): p(f'v_and_b32 v{QF+4*t+i}, v{QF+4*t+i}, v{vQm+i}')
    for t in range(4):
        if t == 0: p('s_waitcnt lgkmcnt(8)')
        p(f'v_mfma_f32_16x16x32_bf16 {vr(S1+4*t,4)}, {vr(KF+4*t,4)}, {vr(QF+4*t,4)}, 0')
        if t: p(f'v_mfma_f32_16x16x32_bf16 {vr(S0+4*t,4)}, {vr(KF+4*t-4,4)}, {vr(QF+4*t,4)}, 0')
    stamp(p, 5)
    PF = 156
    M = lambda t: 148 + 2 * t
    M2 = lambda t: 149 + 2 * t
    BC = 'op_sel:[0,0] op_sel_hi:[1,0]'
    for t in range(4):
        for rr in range(4):
            if t: p(f'v_cndmask_b32 v{S1+4*t+rr}, v{S1+4*t+rr}, v{S0+4*t+rr}, s[72:73]')
        for rr in (0, 2):
            p(f'v_pk_fma_f32 {vr(S1+4*t+rr,2)}, {vr(S1+4*t+rr,2)}, s[90:91], {vr((vBias if t else vBias0)+rr,2)}')
        p(f'v_max3_f32 v{M(t)}, v{S1+4*t}, v{S1+4*t+1}, v{S1+4*t+2}')
        p(f'v_max_f32 v{M(t)}, v{M(t)}, v{S1+4*t+3}')
        p(f'v_mov_b32 v{M2(t)}, v{M(t)}')
    for t in range(4): p(f'v_permlane32_swap_b32 v{M(t)}, v{M2(t)}')
    for t in range(4): p(f'v_max_f32 v{M(t)}, v{M(t)}, v{M2(t)}')
    for t in range(4): p(f'v_mov_b32 v{M2(t)}, v{M(t)}')
    for t in range(4): p(f'v_permlane16_swap_b32 v{M(t)}, v{M2(t)}')
    for t in range(4): p(f'v_max_f32 v{M(t)}, v{M(t)}, v{M2(t)}')
    for t in range(4):
        for rr in (0, 2): p(f'v_pk_add_f32 {vr(S1+4*t+rr,2)}, {vr(S1+4*t+rr,2)}, {vr(M(t),2)} {BC} neg_lo:[0,1] neg_hi:[0,1]')
    p('s_waitcnt lgkmcnt(0)')
    stamp(p, 6)
    O0, O1 = 64, 80
    def pv(t):
        p(f'v_mfma_f32_16x16x32_bf16 {vr(O1+4*t,4)}, {vr(V1+2*t,4)}, {vr(PF+4*t,4)}, 0')
        p(f'v_mfma_f32_16x16x32_bf16 {vr(O0+4*t,4)}, {vr(V0+2*t,4)}, {vr(PF+4*t,4)}, 0')
    for rr in range(4): p(f'v_exp_f32 v{S1+rr}, v{S1+rr}')
    for t in range(4):
        if t < 3:
            for rr in range(4): p(f'v_exp_f32 v{S1+4*t+4+rr}, v{S1+4*t+4+rr}')
        p(f'v_cvt_pk_bf16_f32 v{S0+2*(t&1)}, v{S1+4*t}, v{S1+4*t+1}')
        p(f'v_cvt_pk_bf16_f32 v{S0+2*(t&1)+1}, v{S1+4*t+2}, v{S1+4*t+3}')
        if t: pv(t - 1)
        for i in range(2):
            p(f'v_cndmask_b32 v{PF+4*t+i}, 0, v{S0+2*(t&1)+i}, s[72:73]')
            p(f'v_cndmask_b32 v{PF+4*t+2+i}, v{S0+2*(t&1)+i}, 0, s[72:73]')
    PO, PE = 116, 124
    def fin(u):
        for rr in (0, 2): p(f'v_pk_mul_f32 {vr(O0+4*u+rr,2)}, {vr(O0+4*u+rr,2)}, {vr(M(u),2)} {BC}')
        p(f'v_pk_mul_f32 {vr(O1+4*u,2)}, {vr(O1+4*u,2)}, {vr(M(u),2)} {BC}')
        p(f'v_cvt_pk_bf16_f32 v{PO+2*u}, v{O0+4*u}, v{O0+4*u+1}')
        p(f'v_cvt_pk_bf16_f32 v{PO+2*u+1}, v{O0+4*u+2}, v{O0+4*u+3}')
        p(f'v_cvt_pk_bf16_f32 v{PE+u}, v{O1+4*u}, v{O1+4*u+1}')
    def sto(i):
        p(f'v_permlane16_swap_b32 v{PO+4*i}, v{PO+4*i+2}')
        p(f'v_permlane16_swap_b32 v{PO+4*i+1}, v{PO+4*i+3}')
        p(f'buffer_store_dwordx4 {vr(PO+4*i,4)}, v{vOs[i]}, s[52:55], 0 offen{sc}')
    p(f'v_rcp_f32 v{M(0)}, v{O1+2}')
    pv(3)
    p(f'v_rcp_f32 v{M(1)}, v{O1+6}')
    fin(0)
    p(f'v_rcp_f32 v{M(2)}, v{O1+10}')
    fin(1)
    p(f'v_rcp_f32 v{M(3)}, v{O1+14}')
    p(f'v_cndmask_b32 v{PE}, v{PE}, v{PE+1}, s[10:11]')
    sto(0)
    fin(2)
    fin(3)
    p(f'v_cndmask_b32 v{PE}, v{PE}, v{PE+2}, s[12:13]')
    p(f'v_cndmask_b32 v{PE}, v{PE}, v{PE+3}, s[74:75]')
    sto(1)
    p(f'buffer_store_dword v{PE}, v{vOs[2]}, s[52:55], 0 offen{sc}')

def b2_addr(p):
    t = 58
    p(f'v_lshrrev_b32 v{t}, 4, v1')
    p(f'v_bfe_u32 v{t+1}, v1, 2, 2')
    p(f'v_lshl_add_u32 v{t+2}, v{t}, 3, v{t+1}')
    p(f'v_lshlrev_b32 v{t+2}, 7, v{t+2}')
    p(f'v_and_b32 v{t+3}, 3, v1')
    p(f'v_lshl_add_u32 v{t+2}, v{t+3}, 3, v{t+2}')
    p(f'v_and_b32 v{t+3}, 1, v{t}')
    p(f'v_lshlrev_b32 v{t+3}, 1, v{t+3}')
    p(f'v_lshrrev_b32 v{t+1}, 1, v{t+1}')
    p(f'v_or_b32 v{t+3}, v{t+3}, v{t+1}')
    p(f'v_lshl_add_u32 v{t+2}, v{t+3}, 5, v{t+2}')
    p(f'v_add_u32 v42, {WOB}, v{t+2}')
    for m in range(1, 4): p(f'v_xor_b32 v{42+m}, {32*m}, v42')
    for m in range(4): p(f'v_add_u32 v{38+m+8+4}, 49152, v{42+m}')
    p('v_lshlrev_b32 v46, 4, v1')
    p('s_lshl_b32 s9, s66, 3')
    p(f's_add_u32 s9, s9, s{sW}')
    p('s_mul_i32 s64, s9, 18432')
    p('s_lshr_b32 s10, s9, 1')
    p('s_lshl_b32 s69, s10, 5')
    p('s_add_u32 s10, s69, s14')
    p(f'v_and_b32 v{t+1}, 15, v1')
    p(f'v_lshl_add_u32 v{t+1}, v{t+1}, 1, s10')
    p(f'v_mul_u32_u24 v{t+1}, 2304, v{t+1}')
    p(f'v_and_b32 v{t+2}, 1, v{t}')
    p(f'v_lshl_add_u32 v{t+1}, v{t+2}, 5, v{t+1}')
    p(f'v_lshrrev_b32 v{t+2}, 1, v{t}')
    p(f'v_lshl_add_u32 v{t+1}, v{t+2}, 4, v{t+1}')
    p('s_lshl_b32 s9, s67, 7')
    p('s_add_u32 s9, s9, 1152')
    p(f'v_add_u32 v49, s9, v{t+1}')
    p('s_add_u32 s10, s69, 17')
    p('s_mul_i32 s10, s10, 575')
    p('s_lshr_b32 s10, s10, 16')
    p('s_max_u32 s9, s69, 14')
    p('s_sub_u32 s9, s9, 14')
    p('s_mul_i32 s9, s9, 575')
    p('s_lshr_b32 s9, s9, 16')
    p('v_cmp_gt_u32 vcc, 8, v1')
    p('v_mov_b32 v47, s10')
    p('v_mov_b32 v48, s9')
    p('v_cndmask_b32 v47, v47, v48, vcc')
    p('v_and_b32 v48, 7, v1')
    p('v_lshl_add_u32 v47, v47, 3, v48')
    p(f'v_mul_u32_u24 v47, {FLS}, v47')

NSL = 6
def wreads(ks):
    r = []
    base = 136 + 16 * (ks % NSL)
    for m in range(4):
        for hf in range(2):
            a, o = (42 + m, 4096 * ks) if ks < 12 else (50 + m, 4096 * (ks - 12))
            r.append(f'ds_read_b64_tr_b16 {vr(base+4*m+2*hf,2)}, v{a} offset:{o+512*hf}')
    return r

def b2_main(p, k, sc):
    OF, AC = 64, 232
    def oload(ks):
        return [f's_add_u32 s65, s64, {4096*(ks//4)}'] * (ks % 4 == 0) + [f'buffer_load_dwordx4 {vr(OF+4*ks,4)}, v46, s[52:55], s65 offen offset:{1024*(ks%4)}{sc}']
    LEAD = B2LEAD
    for ks in range(LEAD):
        for x in oload(ks): p(x)
    srd(p, 56, P_OUT, SZ_OUT)
    for ks in range(18):
        issued = min(18, LEAD + ks)
        p(f's_waitcnt vmcnt({issued-ks-1}) lgkmcnt({min(15, 8*(min(17, ks+NSL-2)-ks))})')
        if ks == 0: stamp(p, 13)
        mf = []
        for m in range(4):
            a = vr(AC+4*m, 4)
            mf.append(f'v_mfma_f32_16x16x32_bf16 {a}, {vr(136+16*(ks%NSL)+4*m,4)}, {vr(OF+4*ks,4)}, {a if ks else 0}')
        sec = (oload(ks+LEAD) if ks + LEAD < 18 else []) + (wreads(ks+NSL-1) if ks + NSL - 1 < 18 else [])
        for x in interleave(mf, sec, lead=1): p(x)
    stamp(p, 14)
    D = 64
    for m in range(4):
        p(f'v_cvt_pk_bf16_f32 v{D+2*m}, v{AC+4*m}, v{AC+4*m+1}')
        p(f'v_cvt_pk_bf16_f32 v{D+2*m+1}, v{AC+4*m+2}, v{AC+4*m+3}')
    for mp in range(2):
        p(f'v_permlane16_swap_b32 v{D+4*mp}, v{D+4*mp+2}')
        p(f'v_permlane16_swap_b32 v{D+4*mp+1}, v{D+4*mp+3}')
    for mp in range(2):
        p(f'buffer_store_dwordx4 {vr(D+4*mp,4)}, v49, s[56:59], 0 offen offset:{64*mp}{OUTB}')

def signal_and_wait(p, k, who, sFlagOff, vPoll, sMask, perwave, pre=()):
    p('s_waitcnt vmcnt(0)')
    stamp(p, 9)
    p('s_barrier')
    stamp(p, 10)
    if not perwave:
        p(f's_cmp_lg_u32 s{sW}, 0')
        p(f's_cbranch_scc1 L_w{who}_{k}')
    p('s_mov_b32 s11, 0')
    p.label(f'L_t{who}_{k}')
    p('v_cmp_eq_u32 vcc, 0, v242')
    p(f's_cbranch_vccz L_u{who}_{k}')
    nonce_load(p)
    p('s_waitcnt vmcnt(0)')
    p('s_add_u32 s11, s11, 1')
    p(f's_cmp_lt_u32 s11, {SPIN_MAX}')
    p(f's_cbranch_scc1 L_t{who}_{k}')
    p.label(f'L_u{who}_{k}')
    srd(p, 48, P_WS, 216*FLS, WS_FLAG)
    p(f'v_mov_b32 v241, s{sFlagOff}')
    p('s_mov_b64 exec, 1')
    if perwave:
        p(f's_cmp_lg_u32 s{sW}, 0')
        p(f's_cbranch_scc1 L_s{who}_{k}')
    p('buffer_store_dwordx2 v[242:243], v241, s[48:51], 0 offen sc1')
    stamp(p, 11)
    p.label(f'L_s{who}_{k}')
    if pre:
        p('s_mov_b64 exec, -1')
        for x in pre: p(x)
        p('s_mov_b32 exec_hi, 0')
    p(f's_mov_b32 exec_lo, {sMask}')
    p.label(f'L_p{who}_{k}')
    p(f'buffer_load_dwordx2 v[244:245], v{vPoll}, s[48:51], 0 offen sc1')
    p('s_waitcnt vmcnt(0)')
    p('v_cmp_ne_u64 vcc, v[244:245], v[242:243]')
    p(f's_cbranch_vccz L_d{who}_{k}')
    if SLEEP: p(f's_sleep {SLEEP}')
    p('s_add_u32 s11, s11, 1')
    p(f's_cmp_lt_u32 s11, {SPIN_MAX}')
    p(f's_cbranch_scc1 L_p{who}_{k}')
    p.label(f'L_d{who}_{k}')
    p('s_mov_b64 exec, -1')
    p.label(f'L_w{who}_{k}')
    if not perwave: p('s_barrier')
    stamp(p, 12)

def pf_addr(p, vi, vx, vw, t):
    p(f'v_mul_u32_u24 v{t}, 10382, v{vi}')
    p(f'v_lshrrev_b32 v{t}, 24, v{t}')
    p(f'v_mul_u32_u24 v{t+1}, 1616, v{t}')
    p(f'v_sub_u32 v{t+1}, v{vi}, v{t+1}')
    p(f'v_cmp_gt_u32 vcc, 1040, v{t+1}')
    p(f'v_mul_u32_u24 v{vx}, 1152, v{t+1}')
    p(f'v_lshl_add_u32 v{vx}, v{t}, 7, v{vx}')
    p(f'v_subrev_u32 v{t+1}, 1040, v{t+1}')
    p(f'v_and_b32 v{t+1}, 0x3ff, v{t+1}')
    p(f'v_mul_u32_u24 v{t+2}, 7282, v{t+1}')
    p(f'v_lshrrev_b32 v{t+2}, 16, v{t+2}')
    p(f'v_mul_u32_u24 v{t+3}, 9, v{t+2}')
    p(f'v_sub_u32 v{t+1}, v{t+1}, v{t+3}')
    p(f'v_lshl_add_u32 v{t+2}, v{t}, 6, v{t+2}')
    p(f'v_mul_u32_u24 v{t+2}, 3456, v{t+2}')
    p(f'v_mul_u32_u24 v{t+3}, 171, v{t+1}')
    p(f'v_lshrrev_b32 v{t+3}, 9, v{t+3}')
    p(f'v_mul_u32_u24 v{t+3}, 768, v{t+3}')
    p(f'v_lshl_add_u32 v{t+3}, v{t+1}, 7, v{t+3}')
    p(f'v_add_u32 v{vw}, v{t+2}, v{t+3}')
    p(f'v_mov_b32 v{t}, {OOB}')
    p(f'v_cndmask_b32 v{vx}, v{t}, v{vx}, vcc')
    p(f'v_cndmask_b32 v{vw}, v{vw}, v{t}, vcc')

def pf_first_addr(p, sub, vi, vx, vw, t):
    p(f's_sub_u32 s9, s5, {sub}')
    p('s_lshl_b32 s9, s9, 3')
    p(f's_add_u32 s9, s9, s{sW}')
    p(f's_mul_i32 s9, s9, {PFL}')
    p(f'v_cmp_gt_u32 vcc, {PFL}, v1')
    p(f'v_add_u32 v{vi}, s9, v1')
    p(f'v_mov_b32 v{t}, 15616')
    p(f'v_cndmask_b32 v{vi}, v{t}, v{vi}, vcc')
    pf_addr(p, vi, vx, vw, t)
    pf_bases(p, 60, 61)

def pf_bases(p, sx, sw):
    p(f's_lshr_b32 s{sw}, s4, 1')
    p(f's_mul_i32 s{sw}, s{sw}, 288')
    p(f's_and_b32 s{sw}, s{sw}, 0xffffff80')
    p(f's_and_b32 s{sx}, s4, 1')
    p(f's_mul_i32 s{sx}, s{sx}, {1026*1152}')

def pf_loads(vx, vw, sx, sw, d):
    return [f'buffer_load_dword v{d}, v{vx}, s[40:43], s{sx} offen{nt("p")}', f'buffer_load_dword v{d+1}, v{vw}, s[44:47], s{sw} offen{nt("p")}']

def role_b(p, k):
    if os.environ.get('NOB'):
        p('s_endpgm'); return
    b_decode(p)
    b1_dma_addr(p)
    if PFB:
        pf_first_addr(p, 0, 60, 246, 247, vTmp)
    p('s_waitcnt lgkmcnt(0)')
    prof_srd(p)
    stamp_begin(p)
    srd(p, SRDx, P_X, SZ_A)
    srd(p, SRDw, P_W, SZ_W)
    c0 = []; c1 = []
    for i in range(6): c0 += dma_slot(i)
    c0.append('\n'.join(dma_advance() + [f's_add_u32 s{sDst}, s{sDst}, {STG}']))
    if PFB:
        for x in pf_loads(246, 247, 60, 61, 248): p(x)
    for x in c0: p(x)
    stamp(p, 20)
    for x in interleave(b1_consts() + ['PF2'], c0, frac=0.5):
        if x != 'PF2': p(x)
    if PFB and PF2POS == 'pro':
        p(f's_cmp_lt_u32 s{sW}, {PFB-1}')
        p(f's_cbranch_scc1 L_pf2_{k}')
        for x in pf_loads(246, 247, 60, 61, 248): p(x)
        p.label(f'L_pf2_{k}')
    stamp(p, 21)
    if PRIO == 1:
        p(f's_cmp_lt_u32 s{sW}, 4')
        p(f's_cbranch_scc1 L_prio_{k}')
        p('s_setprio 1')
        p.label(f'L_prio_{k}')
    p(f's_mov_b32 s{sChunk}, 0')
    p(f's_mov_b32 s{sStage}, 0')
    p(f's_mov_b32 s{sNext}, {STG}')
    p('s_waitcnt vmcnt(6)')
    p('s_barrier')
    stamp(p, 1, f'b1a_{k}')
    p(f's_cmp_ge_u32 s{sW}, 6')
    p(f's_cbranch_scc1 L_var2_{k}')
    p(f's_cmp_ge_u32 s{sW}, 4')
    p(f's_cbranch_scc1 L_var1_{k}')
    b1_variant(p, k, 0)
    p.label(f'L_var1_{k}')
    b1_variant(p, k, 1)
    p.label(f'L_var2_{k}')
    b1_variant(p, k, 2)
    attention(p, k, ' sc1')
    p('s_lshl_b32 s13, s6, 3')
    p('s_add_u32 s13, s13, s7')
    p(f's_mul_i32 s13, s13, {FLS}')
    stamp(p, 8)
    signal_and_wait(p, k, 'b', 13, 47, 0xffff, True, sum((wreads(i) for i in range(NSL-1)), []))
    b2_main(p, k, ' sc1')
    stamp_end(p, 30, (0, 2, [61, 1, 2, 8, 9, 12, 30, 63]))
    p('s_endpgm')

def role_a(p, k):
    if os.environ.get('NOA'):
        p('s_endpgm'); return
    a_decode(p)
    a1_addr(p)
    p('s_waitcnt lgkmcnt(0)')
    prof_srd(p)
    stamp_begin(p)
    if ADELAY: a2_addr(p)
    a1_loads(p, k)
    a1_compute(p, ' sc1')
    stamp(p, 2)
    a2_hstage(p)
    stamp(p, 3)
    signal_and_wait(p, k, 'a', 68, 233, 0xff, PWA)
    a2_main(p, k, ' sc1', True)
    stamp_end(p, 30, (144, 10, [61, 1, 12, 14, 30, 63]))
    p('s_endpgm')

def role_c(p, k):
    p('s_sub_u32 s6, s5, 27')
    p('s_lshl_b32 s6, s6, 3')
    p(f's_add_u32 s6, s6, s{sW}')
    p('s_lshl_b32 s7, s6, 6')
    p('v_add_u32 v2, s7, v1')
    p('s_getpc_b64 s[8:9]')
    p.label(f'L_pc_{k}')
    p(f's_sub_u32 s8, s8, L_pc_{k}-{NAME}_kernel')
    p('s_subb_u32 s9, s9, 0')
    p('v_lshlrev_b32 v3, 7, v2')
    p(f'v_cmp_gt_u32 vcc, L_end_{k}-{NAME}_kernel, v3')
    p('v_mov_b32 v5, s9')
    p('v_add_co_u32 v4, s[10:11], s8, v3')
    p('v_addc_co_u32 v5, s[10:11], 0, v5, s[10:11]')
    p('s_and_saveexec_b64 s[12:13], vcc')
    p(f's_cbranch_execz L_nc_{k}')
    p('global_load_dword v10, v[4:5], off')
    p.label(f'L_nc_{k}')
    p('s_mov_b64 exec, s[12:13]')
    p('s_waitcnt lgkmcnt(0)')
    prof_srd(p)
    stamp_begin(p)
    p('s_cmp_lg_u32 s2, 216')
    p(f's_cbranch_scc1 L_nl_{k}')
    p(f's_cmp_lg_u32 s{sW}, 0')
    p(f's_cbranch_scc1 L_nl_{k}')
    p('s_memrealtime s[60:61]')
    srd(p, 56, P_DBG, 256)
    p('s_waitcnt lgkmcnt(0)')
    p('s_or_b32 s60, s60, 1')
    p('v_mov_b32 v30, s60')
    p('v_mov_b32 v31, s61')
    p('v_mov_b32 v32, 0')
    p('s_mov_b64 exec, 1')
    p('buffer_store_dwordx2 v[30:31], v32, s[56:59], 0 offen sc1')
    p('s_mov_b64 exec, -1')
    if os.environ.get('DIAGT'):
        p.label('L_diag')
        p('s_memrealtime s[62:63]')
        p('s_waitcnt lgkmcnt(0)')
        p('s_sub_u32 s62, s62, s60')
        p(f's_cmp_lt_u32 s62, {os.environ["DIAGT"]}')
        p('s_cbranch_scc1 L_diag')
    p.label(f'L_nl_{k}')
    if os.environ.get('NOC'):
        p('s_endpgm'); return
    srd(p, 40, P_X, SZ_A)
    srd(p, 44, P_W, SZ_W)
    srd(p, 48, P_WO, SZ_WO)
    srd(p, 52, P_Q, SZ_A)
    d = 21
    pf_first_addr(p, 9, 6, 7, 8, 11)
    for x in pf_loads(7, 8, 60, 61, d): p(x)
    d += 2
    first = 23*8*PFL
    nb = -(-(14544-first)//2560)
    p(f's_and_b32 s9, s{sW}, 3')
    p('s_mul_i32 s9, s9, 5')
    p('s_add_u32 s9, s9, s5')
    p('s_sub_u32 s9, s9, 27')
    p('s_lshl_b32 s9, s9, 6')
    p(f's_lshr_b32 s10, s{sW}, 2')
    p(f's_mul_i32 s10, s10, {1280*nb}')
    p('s_add_u32 s9, s9, s10')
    for it in range(nb):
        p(f'v_add_u32 v6, s9, v1')
        p(f'v_add_u32 v6, {first+1280*it}, v6')
        pf_addr(p, 6, 7, 8, 11)
        for x in pf_loads(7, 8, 60, 61, d): p(x)
        d += 2
    stamp(p, 1)
    p('s_waitcnt vmcnt(0)')
    stamp(p, 2)
    p('s_mul_i32 s14, s4, 144')
    p('s_and_b32 s14, s14, 0xffffff80')
    for it in range(2):
        p(f'v_add_u32 v6, {2560*it}, v2')
        p('v_lshrrev_b32 v7, 1, v6')
        p('v_mul_u32_u24 v7, 1152, v7')
        p('v_and_b32 v8, 1, v6')
        p('v_lshl_add_u32 v7, v8, 7, v7')
        p(f'buffer_load_dword v{d}, v7, s[52:55], s14 offen{nt("q")}'); d += 1
    for it in range(3):
        p(f'v_add_u32 v6, {2560*it}, v2')
        p('v_lshlrev_b32 v6, 7, v6')
        p(f'buffer_load_dword v{d}, v6, s[48:51], 0 offen{nt("o")}'); d += 1
    stamp(p, 3)
    p('s_waitcnt vmcnt(0)')
    stamp_end(p, 30)

def kernel_mega(p):
    k = 'm'
    if PROF: p('s_memtime s[100:101]')
    p(f's_cmp_ge_u32 s2, {GRID}')
    p(f's_cbranch_scc1 L_end_{k}')
    p('s_load_dwordx16 s[16:31], s[0:1], 0')
    p('s_load_dwordx8 s[32:39], s[0:1], 64')
    p('v_lshrrev_b32 v2, 6, v0')
    p('v_and_b32 v1, 63, v0')
    p(f'v_readfirstlane_b32 s{sW}, v2')
    p('s_and_b32 s4, s2, 7')
    p('s_lshr_b32 s5, s2, 3')
    p('s_cmp_ge_u32 s5, 27')
    p(f's_cbranch_scc1 L_roleC_{k}')
    p('s_cmp_ge_u32 s5, 18')
    p(f's_cbranch_scc1 L_roleA_{k}')
    role_b(p, k)
    p.label(f'L_roleA_{k}')
    role_a(p, k)
    p.label(f'L_roleC_{k}')
    role_c(p, k)
    p.label(f'L_end_{k}')
    p('s_endpgm')

SPIN_MAX = 1 << 16
GRID = int(os.environ.get('GRID', '256'))

HEAD = open(os.path.join(os.path.dirname(os.path.abspath(__file__)), 'head.txt')).read()

def emit_kernel(name, fn):
    p = Prog()
    fn(p)
    lines, n = fix_hazards(p.lines, verbose=bool(os.environ.get('HZ')))
    sys.stderr.write(f'{name}: {len(lines)} lines, {n} nops inserted\n')
    body = '\n'.join(('' if l.endswith(':') else '    ') + l for l in lines)
    return f'''.text
.globl {name}
.p2align 8
.type {name},@function
{name}:
{body}
.section .rodata,"a"
.p2align 6
.amdhsa_kernel {name}
  .amdhsa_next_free_vgpr 256
  .amdhsa_next_free_sgpr 102
  .amdhsa_accum_offset 256
  .amdhsa_group_segment_fixed_size 0
  .amdhsa_kernarg_size 96
  .amdhsa_user_sgpr_count 2
  .amdhsa_user_sgpr_kernarg_segment_ptr 1
  .amdhsa_system_sgpr_workgroup_id_x 1
.end_amdhsa_kernel
'''

def main():
    out = HEAD
    out += f'; @launch grid=({GRID},1,1) block=(512,1,1) lds={LDS_BYTES}\n'
    out += '.amdgcn_target "amdgcn-amd-amdhsa--gfx950"\n'
    out += emit_kernel(NAME + '_kernel', kernel_mega)
    sys.stdout.write(out)

if __name__ == '__main__':
    main()
```

```python
import sys, os
sys.path.insert(0, os.path.dirname(os.path.abspath(__file__)))
from asmlib import Prog, fix_hazards

NAME = 'concat_heads__ssm_conv_h3__sliding_local_dilated__prompt'
MODE = os.environ.get('MODE', 'two')
PROF = int(os.environ.get('PROF', '0'))

FR = float(os.environ.get('FR', '0.7'))
FR2 = float(os.environ.get('FR2', '0.9'))
B2LEAD = int(os.environ.get('B2LEAD', '8'))
NT = os.environ.get('NT', 'a')
nt = lambda c: ' nt' if c in NT else ''
PFB = int(os.environ.get('PFB', '0'))
PWA = int(os.environ.get('PWA', '1'))
PRIO = int(os.environ.get('PRIO', '0'))
PF2POS = os.environ.get('PF2POS', 'none')
ADELAY = int(os.environ.get('ADELAY', '2'))
PFL = int(os.environ.get('PFL', '9'))
OUTA = os.environ.get('OUTA', '').replace('_', ' ')
OUTB = os.environ.get('OUTB', '').replace('_', ' ')
POLL2 = int(os.environ.get('POLL2', '0'))
NSIDE = int(os.environ.get('NSIDE', '0'))
SPOS = int(os.environ.get('SPOS', '0'))
SPOS2 = int(os.environ.get('SPOS2', '3'))
SZ_A = 2359296
SZ_W = 1990656
SZ_WO = 663552
SZ_OUT = 4718592
WS_XR = 0
WS_O = 0x240000
WS_FLAG = 0x480000
FLS = int(os.environ.get('FLS', '128'))
SLEEP = int(os.environ.get('SLEEP', '1'))
WS_PROF = 16 << 20
OOB = 0x80000000
NB, NA = 144, 72
NWG = NB + NA
LDS_BYTES = 163840

sW = 3
P_Q, P_K, P_V, P_SH, P_H, P_D, P_X, P_W, P_WO, P_OUT, P_DBG, P_WS = [16 + 2 * i for i in range(12)]

def srd(p, dst, ptr, size, off=0):
    if off:
        p(f's_add_u32 s{dst}, s{ptr}, {off}')
        p(f's_addc_u32 s{dst+1}, s{ptr+1}, 0')
        p(f's_and_b32 s{dst+1}, s{dst+1}, 0xffff')
    else:
        p(f's_mov_b32 s{dst}, s{ptr}')
        p(f's_and_b32 s{dst+1}, s{ptr+1}, 0xffff')
    p(f's_mov_b32 s{dst+2}, {size}')
    p(f's_mov_b32 s{dst+3}, 0x20000')

def vr(a, n):
    return f'v[{a}:{a+n-1}]' if n > 1 else f'v{a}'

def interleave(prim, sec, lead=0, frac=1.0):
    out = list(prim[:lead]); prim = prim[lead:]
    n, m = max(1, int(len(prim) * frac)), len(sec)
    j = 0
    for i, x in enumerate(prim):
        while j < m and j * n <= i * m:
            out.append(sec[j]); j += 1
        out.append(x)
    out += sec[j:]
    return out

def glue_scc(lines):
    out = []; i = 0
    while i < len(lines):
        if lines[i].startswith('s_cmp'):
            assert lines[i+1].startswith('s_cselect') or lines[i+1].startswith('s_cbranch'), lines[i:i+2]
            out.append(lines[i] + '\n' + lines[i+1]); i += 2
        else:
            assert not lines[i].startswith(('s_cselect', 's_addc', 's_subb')), lines[i]
            out.append(lines[i]); i += 1
    return out

def stamp(p, idx, uid=None):
    if not PROF: return
    p('s_memtime s[96:97]')
    p('s_waitcnt lgkmcnt(0)')
    p(f'v_writelane_b32 v253, s96, {idx}')

def stamp_begin(p):
    if not PROF: return
    p('v_mov_b32 v253, 0')
    p('s_memrealtime s[96:97]')
    p('s_waitcnt lgkmcnt(0)')
    p('v_writelane_b32 v253, s96, 62')
    p('v_writelane_b32 v253, s100, 61')
    stamp(p, 0)

def stamp_end(p, idx, dbg=None):
    if not PROF: return
    stamp(p, idx)
    p('s_memrealtime s[96:97]')
    p('s_waitcnt lgkmcnt(0)')
    p('v_writelane_b32 v253, s96, 63')
    if PROF == 3:
        if dbg:
            wg, base, lst = dbg
            uid = f'dbg{wg}'
            p(f's_cmp_lg_u32 s2, {wg}')
            p(f's_cbranch_scc1 L_{uid}')
            p(f's_cmp_lg_u32 s{sW}, 4')
            p(f's_cbranch_scc1 L_{uid}')
            p('v_readlane_b32 s98, v253, 0')
            p('v_readlane_b32 s99, v253, 62')
            p('v_mov_b32 v252, 0')
            for i, st in enumerate(lst):
                p(f'v_readlane_b32 s97, v253, {st}')
                p('s_nop 3')
                p(f's_sub_u32 s97, s97, {"s99" if st == 63 else "s98"}')
                p(f'v_writelane_b32 v252, s97, {i}')
            srd(p, 92, P_DBG, 256)
            p('v_lshlrev_b32 v254, 2, v1')
            p(f's_mov_b64 exec, {(1 << len(lst)) - 1}')
            p(f'buffer_store_dword v252, v254, s[92:95], 0 offen offset:{4*base}')
            p.label(f'L_{uid}')
        return
    p('s_lshl_b32 s98, s2, 3')
    p(f's_add_u32 s98, s98, s{sW}')
    p('s_lshl_b32 s98, s98, 8')
    p('v_lshl_add_u32 v254, v1, 2, s98')
    p('buffer_store_dword v253, v254, s[92:95], 0 offen')

def prologue(p, k):
    p(f's_cmp_ge_u32 s2, {NWG}')
    p(f's_cbranch_scc1 L_end_{k}')
    p('s_load_dwordx16 s[16:31], s[0:1], 0')
    p('s_load_dwordx8 s[32:39], s[0:1], 64')
    p('v_lshrrev_b32 v2, 6, v0')
    p('v_and_b32 v1, 63, v0')
    p(f'v_readfirstlane_b32 s{sW}, v2')
    p('s_and_b32 s4, s2, 7')
    p('s_lshr_b32 s5, s2, 3')
    p('s_cmp_ge_u32 s5, 18')
    p(f's_cbranch_scc1 L_roleA_{k}')

def prof_srd(p):
    if PROF:
        srd(p, 92, P_WS, 1 << 20, WS_PROF)

HS = 8384
H1 = 4164
XB = 8 * HS
XS_ = 4576
KB = XB
BS = 1088
VB = KB + 33 * BS
assert VB + 32 * BS <= LDS_BYTES

def a_decode(p):
    p('s_mul_i32 s6, s4, 9')
    p('s_add_u32 s6, s6, s5')
    p('s_sub_u32 s6, s6, 18')

def a1_addr(p):
    p('s_lshr_b32 s7, s6, 3')
    p('s_and_b32 s8, s6, 7')
    p('v_and_b32 v7, 7, v1')
    p('v_lshrrev_b32 v8, 3, v1')
    p('v_mul_u32_u24 v2, 1152, v8')
    p('v_lshl_add_u32 v2, v7, 4, v2')
    p('s_lshl_b32 s9, s7, 7')
    p('v_add_u32 v2, s9, v2')
    p(f's_mul_i32 s10, s8, {256*1152}')
    p(f's_mul_i32 s11, s{sW}, {8*1152}')
    p('s_add_u32 s11, s11, s10')
    p(f's_mul_i32 s12, s{sW}, {BS}')
    p(f's_add_u32 s12, s12, {KB+BS}')
    p(f's_sub_u32 s13, s10, {8*1152}')
    p('s_cmp_eq_u32 s8, 0')
    p(f's_cselect_b32 s13, {OOB}, s13')

def a1_loads(p, k):
    if ADELAY == 2:
        nonce_load(p)
        p('s_waitcnt vmcnt(0)')
    stamp(p, 20)
    srd(p, 40, P_K, SZ_A)
    srd(p, 44, P_V, SZ_A)
    for n in range(4):
        p(f's_add_u32 m0, s12, {8*BS*n}')
        p(f's_add_u32 s14, s11, {64*1152*n}')
        p(f'buffer_load_dwordx4 v2, s[40:43], s14 offen{nt("a")} lds')
        p(f's_add_u32 m0, s12, {8*BS*n+VB-KB-BS}')
        p('s_nop 0')
        p(f'buffer_load_dwordx4 v2, s[44:47], s14 offen{nt("a")} lds')
    p(f's_cmp_lg_u32 s{sW}, 7')
    p(f's_cbranch_scc1 L_nohalo_{k}')
    p(f's_mov_b32 m0, {KB}')
    p('s_nop 0')
    p('buffer_load_dwordx4 v2, s[40:43], s13 offen lds')
    p.label(f'L_nohalo_{k}')
    stamp(p, 21)
    p('s_lshl_b32 s8, s8, 8')
    p(f's_lshr_b32 s9, s{sW}, 1')
    p(f's_mul_i32 s10, s9, {8*BS}')
    p('s_lshl_b32 s9, s9, 6')
    p('s_add_u32 s8, s8, s9')
    p('s_lshl_b32 s7, s7, 6')
    p(f's_and_b32 s9, s{sW}, 1')
    p('s_lshl_b32 s11, s9, 6')
    p('s_add_u32 s10, s10, s11')
    p(f's_add_u32 s10, s10, {KB}')
    p('s_lshl_b32 s9, s9, 5')
    p('s_add_u32 s7, s7, s9')
    p(f'v_mul_u32_u24 v3, {BS}, v8')
    p('v_lshl_add_u32 v3, v7, 3, v3')
    p('v_add_u32 v3, s10, v3')
    p('v_lshlrev_b32 v9, 3, v8')
    p('v_add_u32 v9, s8, v9')
    p('v_lshlrev_b32 v7, 2, v7')
    p('v_add_u32 v7, s7, v7')
    p('v_lshlrev_b32 v5, 3, v7')
    srd(p, 48, P_SH, 4608)
    p('buffer_load_dwordx4 v[48:51], v5, s[48:51], 0 offen')
    p('buffer_load_dwordx4 v[52:55], v5, s[48:51], 0 offen offset:16')
    p('v_lshlrev_b32 v6, 12, v7')
    p('v_sub_u32 v8, 2040, v9')
    p('v_lshl_add_u32 v6, v8, 1, v6')

def nonce_load(p):
    srd(p, 48, P_DBG, 256)
    p('v_mov_b32 v241, 0')
    p('buffer_load_dwordx2 v[242:243], v241, s[48:51], 0 offen sc1')

def a1_compute(p, sc):
    K, Vv, Sx, P, KS, OUT = 10, 32, 48, 56, 96, 128
    srd(p, 52, P_WS, SZ_A, WS_XR)
    p('s_mov_b32 s10, 0x05040100')
    p('s_mov_b32 s11, 0x07060302')
    p('s_movk_i32 s12, 0x1000')
    p('s_movk_i32 s13, 0x2000')
    p('s_movk_i32 s14, 0x3000')
    if not ADELAY: a2_addr(p)
    stamp(p, 22)
    p('s_waitcnt vmcnt(0)')
    stamp(p, 23)
    p('s_barrier')
    stamp(p, 1)
    for i in range(11):
        p(f'ds_read_b64 {vr(K+2*i,2)}, v3 offset:{(5+i)*128 if i < 3 else BS+128*(i-3)}')
    for j in range(4):
        p(f'ds_read_b64 {vr(Vv+2*j,2)}, v3 offset:{VB-KB+128*j}')
    p('s_add_u32 m0, s63, 32')
    p('s_mov_b64 exec, 15')
    p('ds_write_b64 v227, v[228:229]')
    p(f'ds_write_b64 v227, v[228:229] offset:{H1-4}')
    p('s_mov_b64 exec, -1')
    for i in range(4):
        p(f'buffer_load_dwordx4 v223, s[56:59], s60 offen offset:{1024*i}{nt("a")} lds')
    nonce_load(p)
    for i in range(1, 11):
        if i in (1, 4, 7): p(f's_waitcnt lgkmcnt({max(0, 17-1-(i+2 if i < 7 else 10))})')
        for c in range(4):
            p(f'v_perm_b32 v{P+10*c+i-1}, v{K+2*(i-1)+(c>>1)}, v{K+2*i+(c>>1)}, s{10+(c&1)}')
    for j in range(4, 8):
        p(f'ds_read_b64 {vr(Vv+2*j,2)}, v3 offset:{VB-KB+128*j}')
    for j in range(8):
        for c in range(4):
            p(f'v_dot2_f32_bf16 v{KS+8*c+j}, v{P+10*c+j}, v{Sx+2*c+1}, 0')
    for j in range(8):
        for c in range(4):
            p(f'v_dot2_f32_bf16 v{KS+8*c+j}, v{P+10*c+j+2}, v{Sx+2*c}, v{KS+8*c+j}')
    p('s_waitcnt lgkmcnt(0)')
    for c in range(4):
        for j in range(8):
            if c & 1: p(f'v_and_b32 v{P+8*c+j}, 0xffff0000, v{Vv+2*j+(c>>1)}')
            else: p(f'v_lshlrev_b32 v{P+8*c+j}, 16, v{Vv+2*j+(c>>1)}')
        for j in range(0, 8, 2):
            p(f'v_pk_mul_f32 {vr(KS+8*c+j,2)}, {vr(KS+8*c+j,2)}, {vr(P+8*c+j,2)}')
        for q in range(4):
            p(f'v_cvt_pk_bf16_f32 v{OUT+4*c+q}, v{KS+8*c+7-2*q}, v{KS+8*c+6-2*q}')
        so = '0' if c == 0 else f's{11+c}'
        p(f'buffer_store_dwordx4 {vr(OUT+4*c,4)}, v6, s[52:55], {so} offen{sc}')

HD, HP, HT = 144, 160, 164
QR, XS = 180, 196
vHa, vXa, vEa, vZw, vZr, vQo, vOo, vLb, vXw = 212, 216, 217, 218, 219, 220, 221, 222, 226

def a2_addr(p):
    srd(p, 56, P_H, SZ_A)
    p('s_lshl_b32 s15, s6, 3')
    p(f's_add_u32 s15, s15, s{sW}')
    p('s_lshl_b32 s60, s15, 12')
    p('v_lshlrev_b32 v223, 4, v1')
    p('v_add_u32 v224, s60, v223')
    p('s_lshr_b32 s61, s15, 1')
    p('s_lshl_b32 s61, s61, 2')
    p(f's_load_dword s62, s[{P_D}:{P_D+1}], s61')
    p(f's_mul_i32 s63, s{sW}, {HS}')
    p(f's_mul_i32 s67, s{sW}, {XS_}')
    p(f's_add_u32 s67, s67, {XB}')
    p(f'v_add_u32 v{vLb}, s63, v223')
    p(f'v_add_u32 v{vXw}, s67, v223')
    p('v_lshlrev_b32 v227, 3, v1')
    p('v_add_u32 v225, s67, v227')
    p('v_add_u32 v227, s63, v227')
    p('v_and_b32 v228, 15, v1')
    p('v_lshrrev_b32 v229, 4, v1')
    p('v_and_b32 v230, 1, v1')
    p('v_cmp_eq_u32 vcc, 1, v230')
    p(f'v_mov_b32 v231, {H1}')
    p('v_lshlrev_b32 v230, 5, v228')
    p('v_cndmask_b32 v231, v231, 2, vcc')
    p('v_lshl_add_u32 v231, v228, 1, v231')
    p('v_lshl_add_u32 v231, v229, 4, v231')
    p(f'v_add_u32 v{vHa}, s63, v231')
    for i in range(1, 4):
        p(f'v_add_u32 v{vHa+i}, {1024*i}, v{vHa}')
    p('v_sub_u32 v231, 480, v230')
    p('v_lshl_add_u32 v231, v229, 4, v231')
    p(f'v_add_u32 v{vXa}, s67, v231')
    p('v_sub_u32 v231, 504, v230')
    p('v_lshlrev_b32 v232, 3, v229')
    p('v_sub_u32 v231, v231, v232')
    p(f'v_add_u32 v{vEa}, s67, v231')
    p('v_add_u32 v231, v230, v232')
    p(f'v_add_u32 v{vZw}, s63, v231')
    p('v_bfe_u32 v231, v1, 2, 2')
    p(f'v_mul_u32_u24 v231, {HS}, v231')
    p('v_lshl_add_u32 v231, v229, 5, v231')
    p('v_and_b32 v232, 3, v1')
    p('v_lshl_add_u32 v231, v232, 3, v231')
    p(f's_lshl_b32 s64, s{sW}, 9')
    p(f'v_add_u32 v{vZr}, s64, v231')
    p(f's_lshl_b32 s64, s{sW}, 8')
    p('v_add_u32 v231, s64, v1')
    p('s_lshl_b32 s65, s6, 4')
    p(f'v_mul_u32_u24 v{vQo}, 1152, v231')
    p(f'v_add_u32 v{vQo}, s65, v{vQo}')
    p(f'v_mul_u32_u24 v{vOo}, 2304, v231')
    p(f'v_add_u32 v{vOo}, s65, v{vOo}')
    p('s_add_u32 s68, s6, 144')
    p('s_and_b32 s9, s68, 0xf8')
    p(f's_mul_i32 s68, s68, {FLS}')
    p(f's_mul_i32 s9, s9, {FLS}')
    p(f'v_mul_u32_u24 v233, {FLS}, v1')
    p('v_add_u32 v233, s9, v233')
    p('s_mov_b32 s66, 0xff')
    p('v_mov_b32 v228, 0')
    p('v_mov_b32 v229, 0')

def a2_hstage(p):
    p('s_waitcnt vmcnt(4)')
    for i in range(4):
        p(f'ds_read_b128 {vr(HD+4*i,4)}, v{vLb} offset:{32+1024*i}')
        p(f'ds_read_b32 v{HP+i}, v{vLb} offset:{28+1024*i}')
    for i in range(4):
        p(f's_waitcnt lgkmcnt({6-2*i if i < 3 else 0})' if i == 0 else f's_waitcnt lgkmcnt({6-2*i+i})')
        p(f'v_alignbit_b32 v{HT+4*i}, v{HD+4*i}, v{HP+i}, 16')
        for d in range(1, 4):
            p(f'v_alignbit_b32 v{HT+4*i+d}, v{HD+4*i+d}, v{HD+4*i+d-1}, 16')
        p(f'ds_write_b128 v{vLb}, {vr(HT+4*i,4)} offset:{H1+28+1024*i}')

def a2_qloads(p):
    srd(p, 40, P_Q, SZ_A)
    for j in range(4):
        p(f's_mov_b32 s65, {64*1152*j}')
        p(f'buffer_load_dwordx4 {vr(QR+4*j,4)}, v{vQo}, s[40:43], s65 offen')
    return 4

def a2_main(p, k, sc, qlater):
    srd(p, 52, P_WS, SZ_A, WS_XR)
    for i in range(4):
        p(f'buffer_load_dwordx4 {vr(XS+4*i,4)}, v224, s[52:55], 0 offen offset:{1024*i}{sc}')
    p('s_mov_b32 exec_hi, 0x0fffffff')
    p('ds_write_b64 v225, v[228:229] offset:4096')
    p('s_mov_b32 exec_hi, -1')
    FA = [10, 74]; FB = [42, 106]; ACC = 138
    def a_reads(st, b):
        r = []
        for a in range(8):
            o = 128 * (a & 1) + 16 * b
            r.append(f'ds_read2_b32 {vr(FA[st]+4*a,2)}, v{vHa+(a>>1)} offset0:{o} offset1:{o+1}')
            r.append(f'ds_read2_b32 {vr(FA[st]+4*a+2,2)}, v{vHa+(a>>1)} offset0:{o+2} offset1:{o+3}')
        return r
    def b_reads(st, b):
        return [f'ds_read_b128 {vr(FB[st]+4*e,4)}, v{vXa} offset:{64*(56-8*e+b)}' for e in range(8)]
    def reads(st, b):
        A, B = a_reads(st, b), b_reads(st, b)
        out = []
        for i in range(8):
            out += [B[i], A[2*i], A[2*i+1]]
        return out
    def mfmas(st):
        out = []
        for s_ in range(8):
            for a in range(8):
                for e in range(8):
                    if a + e <= 7 and max(a, e) == s_:
                        n = a + e
                        out.append(f'v_mfma_f32_16x16x32_bf16 {vr(ACC+4*n,4)}, {vr(FA[st]+4*a,4)}, {vr(FB[st]+4*e,4)}, {vr(ACC+4*n,4)}')
        return out
    for i in range(32):
        p(f'v_mov_b32 v{ACC+i}, 0')
    p('s_waitcnt lgkmcnt(0)')
    for x in a_reads(0, 0): p(x)
    for i in range(4):
        p(f's_waitcnt vmcnt({3-i})')
        p(f'ds_write_b128 v{vXw}, {vr(XS+4*i,4)} offset:{1024*i}')
    p('s_waitcnt lgkmcnt(0)')
    stamp(p, 13)
    for x in b_reads(0, 0): p(x)
    p('s_mov_b32 s64, 0')
    p.label(f'L_a2loop_{k}')
    p('s_waitcnt lgkmcnt(0)')
    for x in interleave(mfmas(0), reads(1, 1), lead=1, frac=FR): p(x)
    p('s_waitcnt lgkmcnt(0)')
    for x in interleave(mfmas(1), reads(0, 2), lead=1, frac=FR): p(x)
    p('s_cmp_lg_u32 s64, 0')
    p(f's_cbranch_scc1 L_a2nq_{k}')
    a2_qloads(p)
    p.label(f'L_a2nq_{k}')
    for i in range(4):
        p(f'v_add_u32 v{vHa+i}, 128, v{vHa+i}')
    p(f'v_add_u32 v{vXa}, 128, v{vXa}')
    p('s_add_u32 s64, s64, 1')
    p('s_cmp_lt_u32 s64, 4')
    p(f's_cbranch_scc1 L_a2loop_{k}')
    KV = 10
    p('s_waitcnt lgkmcnt(0)')
    stamp(p, 14)
    for n in range(8):
        p(f'ds_read_b64 {vr(KV+2*n,2)}, v{vEa} offset:{512*(7-n)}')
    p('s_and_b32 s61, s15, 1')
    p('s_lshl_b32 s61, s61, 4')
    p('s_lshr_b32 s62, s62, s61')
    p('s_lshl_b32 s62, s62, 16')
    T = 42
    for n in range(8):
        p(f's_waitcnt lgkmcnt({7-n})' if n < 8 else '')
        d0, d1 = KV + 2*n, KV + 2*n + 1
        t = T + 4*n
        p(f'v_and_b32 v{t}, 0xffff0000, v{d1}')
        p(f'v_lshlrev_b32 v{t+1}, 16, v{d1}')
        p(f'v_and_b32 v{t+2}, 0xffff0000, v{d0}')
        p(f'v_lshlrev_b32 v{t+3}, 16, v{d0}')
        for rr in range(4):
            p(f'v_fmac_f32 v{ACC+4*n+rr}, s62, v{t+rr}')
        p(f'v_cvt_pk_bf16_f32 v{t}, v{ACC+4*n}, v{ACC+4*n+1}')
        p(f'v_cvt_pk_bf16_f32 v{t+1}, v{ACC+4*n+2}, v{ACC+4*n+3}')
    for n in range(8):
        p(f'ds_write_b64 v{vZw}, {vr(T+4*n,2)} offset:{512*n}')
    srd(p, 44, P_OUT, SZ_OUT)
    p('s_waitcnt lgkmcnt(0)')
    stamp(p, 15)
    p('s_barrier')
    stamp(p, 16)
    Z = 74
    for j in range(4):
        p(f'ds_read_b64_tr_b16 {vr(Z+4*j,2)}, v{vZr} offset:{128*j}')
        p(f'ds_read_b64_tr_b16 {vr(Z+4*j+2,2)}, v{vZr} offset:{4*HS+128*j}')
    p('s_waitcnt vmcnt(0)')
    stamp(p, 17)
    U = 106
    for j in range(4):
        p(f's_waitcnt lgkmcnt({6-2*j})')
        for d in range(4):
            z, q = Z + 4*j + d, QR + 4*j + d
            p(f'v_lshlrev_b32 v{U}, 16, v{z}')
            p(f'v_lshlrev_b32 v{U+1}, 16, v{q}')
            p(f'v_and_b32 v{U+2}, 0xffff0000, v{z}')
            p(f'v_and_b32 v{U+3}, 0xffff0000, v{q}')
            p(f'v_mul_f32 v{U}, v{U}, v{U+1}')
            p(f'v_mul_f32 v{U+2}, v{U+2}, v{U+3}')
            p(f'v_cvt_pk_bf16_f32 v{z}, v{U}, v{U+2}')
            U = 106 + (U - 106 + 4) % 16
        p(f's_mov_b32 s64, {64*2304*j}')
        p(f'buffer_store_dwordx4 {vr(Z+4*j,4)}, v{vOo}, s[44:47], s64 offen{OUTA}')

WPS = 1056
WOFF = 16384
STG = WOFF + 32 * WPS
WOB = 0
KQS = 352
KQB = 73728
VTB = KQB + 128 * KQS
VS = 136
VP = 73 * VS
SCR = 152096
assert VTB + 2 * VP <= SCR
RED = KQB
assert SCR + 1024 <= LDS_BYTES and 3 * STG <= SCR
ACCB = 64
SET = [(128, 144), (160, 176)]
vD = [2, 3, 4, 4, 4, 4]
vXb0, vXb1, vWb = 8, 9, 10
vXa0, vXa1, vWa = 11, 12, 13
vKQ, vVT, vWo = 14, 15, 16
vQm = 17
vBias, vBias0 = 24, 28
vTmp = 33
vKf, vV0, vV1, vOw = 5, 6, 7, 21
vOs = [21, 22, 23]
vWoL = 32
vG = 56
vVTl = 57
vKQ1, vKz = 54, 55
sB = [84, 85, 86, 87, 88, 89]
sO = [74, 75, 76, 77, 78, 79]
sDst, sStage, sNext, sChunk = 80, 81, 82, 83
SRDx, SRDw = 40, 44

def b_decode(p):
    p('s_and_b32 s6, s4, 1')
    p('s_mul_i32 s6, s6, 9')
    p('s_lshr_b32 s8, s5, 1')
    p('s_add_u32 s6, s6, s8')
    p('s_and_b32 s7, s4, 6')
    p('s_and_b32 s8, s5, 1')
    p('s_add_u32 s7, s7, s8')
    p('s_mul_i32 s8, s6, 114')

def b1_dma_addr(p):
    t = vTmp
    p(f's_and_b32 s9, s{sW}, 3')
    p('s_lshl_b32 s9, s9, 5')
    p(f's_lshr_b32 s10, s{sW}, 2')
    p('s_add_u32 s9, s9, s10')
    p('s_add_u32 s9, s9, s8')
    p(f'v_lshrrev_b32 v{t}, 3, v1')
    p(f'v_lshl_add_u32 v{t+1}, v{t}, 1, s9')
    p(f'v_mul_u32_u24 v{t+1}, 1152, v{t+1}')
    p(f'v_lshrrev_b32 v{t+2}, 4, v1')
    p(f'v_and_b32 v{t+3}, 7, v1')
    p(f'v_xor_b32 v{t+2}, v{t+2}, v{t+3}')
    p(f'v_lshl_add_u32 v2, v{t+2}, 4, v{t+1}')
    p(f'v_xor_b32 v3, 64, v2')
    p(f'v_add_u32 v3, {16*1152}, v3')
    p('v_cmp_le_u32 vcc, 27, v1')
    p(f'v_subrev_u32 v{t}, 27, v1')
    p(f'v_mov_b32 v{t+1}, {4*3456}')
    p(f'v_cndmask_b32 v{t}, v1, v{t}, vcc')
    p(f'v_cndmask_b32 v{t+1}, 0, v{t+1}, vcc')
    p(f'v_lshl_add_u32 v{t+1}, v{t}, 4, v{t+1}')
    p(f'v_cmp_gt_u32 vcc, 9, v{t}')
    p(f'v_cmp_le_u32 s[10:11], 18, v{t}')
    p(f'v_mov_b32 v{t+2}, -144')
    p(f'v_mov_b32 v{t+3}, 1152')
    p(f'v_cndmask_b32 v{t+2}, v{t+2}, v{t+3}, vcc')
    p(f'v_mov_b32 v{t+3}, 2016')
    p('v_cmp_le_u32 vcc, 54, v1')
    p(f'v_cndmask_b32 v{t+2}, v{t+2}, v{t+3}, s[10:11]')
    p('s_mul_i32 s10, s7, 144')
    p(f'v_mov_b32 v{t+3}, {OOB}')
    p(f'v_add3_u32 v4, v{t+1}, v{t+2}, s10')
    p(f'v_cndmask_b32 v4, v4, v{t+3}, vcc')
    p(f's_lshl_b32 s{sB[0]}, s{sW}, 11')
    p(f's_add_u32 s{sB[1]}, s{sB[0]}, 1024')
    p(f's_mul_i32 s{sB[2]}, s{sW}, {4*WPS}')
    p(f's_add_u32 s{sB[2]}, s{sB[2]}, {WOFF}')
    for n in range(1, 4): p(f's_add_u32 s{sB[2+n]}, s{sB[2]}, {WPS*n}')
    p(f's_mov_b32 s{sO[0]}, 0')
    p(f's_mov_b32 s{sO[1]}, 0')
    p(f's_mul_i32 s{sO[2]}, s{sW}, {8*3456}')
    for n in range(1, 4): p(f's_add_u32 s{sO[2+n]}, s{sO[2]}, {3456*n}')
    p(f's_mov_b32 s{sDst}, 0')

def dma_slot(i):
    srd_ = SRDx if i < 2 else SRDw
    return [f's_add_u32 m0, s{sB[i]}, s{sDst}', f'buffer_load_dwordx4 v{vD[i]}, s[{srd_}:{srd_+3}], s{sO[i]} offen lds']

def dma_advance(lo=0, hi=6):
    return [f's_add_u32 s{sO[i]}, s{sO[i]}, {128 if i < 2 else 221184}' for i in range(lo, hi)]

def b1_consts():
    p = Prog()
    t = vTmp
    c, g = t, t + 1
    p(f'v_and_b32 v{c}, 15, v1')
    p(f'v_lshrrev_b32 v{g}, 4, v1')
    p(f'v_mov_b32 v{vG}, v{g}')
    p(f's_and_b32 s14, s{sW}, 1')
    p(f's_lshr_b32 s15, s{sW}, 1')
    p(f'v_lshrrev_b32 v{t+2}, 1, v{c}')
    p(f'v_xor_b32 v{t+2}, v{t+2}, v{g}')
    p(f'v_lshlrev_b32 v{t+2}, 4, v{t+2}')
    p(f'v_lshl_add_u32 v{t+2}, v{c}, 7, v{t+2}')
    p('s_lshl_b32 s9, s14, 13')
    p(f'v_add_u32 v{vXb0}, s9, v{t+2}')
    p(f'v_xor_b32 v{vXb1}, 64, v{vXb0}')
    p(f'v_lshrrev_b32 v{t+2}, 2, v1')
    p(f'v_mul_u32_u24 v{t+2}, {WPS}, v{t+2}')
    p(f'v_and_b32 v{t+3}, 3, v1')
    p(f'v_lshl_add_u32 v{t+2}, v{t+3}, 3, v{t+2}')
    p('s_lshl_b32 s9, s15, 2')
    p('s_mul_i32 s10, s15, 3')
    p('s_add_u32 s10, s10, 2')
    p('s_cmp_lt_u32 s15, 2')
    p('s_cselect_b32 s70, s9, s10')
    p('s_lshl_b32 s9, s70, 5')
    p(f's_add_u32 s10, s9, {WOFF}')
    p(f'v_add_u32 v{vWb}, s10, v{t+2}')
    p(f'v_mov_b32 v{vXa1}, v{vXb1}')
    p(f'v_mov_b32 v{vWa}, v{vWb}')
    p('; SPLIT')
    p(f's_mul_i32 s10, s14, {64*KQS}')
    p(f's_add_u32 s10, s10, {KQB}')
    p('s_add_u32 s9, s9, s10')
    p(f'v_bfe_u32 v{t+4}, v1, 2, 1')
    p(f'v_and_b32 v{t+2}, 31, v1')
    p(f'v_mul_u32_u24 v{t+2}, {KQS}, v{t+2}')
    p(f'v_add_u32 v{t+2}, s9, v{t+2}')
    p('s_cmp_eq_u32 s15, 2')
    p('s_cselect_b32 s11, 1, 0')
    p('s_cmp_lg_u32 s15, 0')
    p('s_cselect_b32 s12, 1, 0')
    p('s_cmp_lg_u32 s15, 0')
    p('s_cselect_b32 s13, 2, 1')
    p('v_cmp_gt_u32 vcc, 32, v1')
    p(f'v_xor_b32 v{t+3}, s13, v{t+4}')
    p(f'v_xor_b32 v{t+5}, s11, v{t+4}')
    p(f'v_cndmask_b32 v{t+5}, v{t+3}, v{t+5}, vcc')
    p(f'v_lshl_add_u32 v{vKQ}, v{t+5}, 4, v{t+2}')
    p(f'v_xor_b32 v{t+5}, s12, v{t+4}')
    p(f'v_cndmask_b32 v{t+5}, v{t+3}, v{t+5}, vcc')
    p(f'v_lshl_add_u32 v{vKQ1}, v{t+5}, 4, v{t+2}')
    p('s_lshl_b32 s9, s15, 5')
    p('s_add_u32 s9, s9, s10')
    p(f'v_mul_u32_u24 v{t+2}, {KQS}, v{c}')
    p(f'v_xor_b32 v{t+3}, v{g}, v{t+4}')
    p(f'v_lshl_add_u32 v{t+3}, v{t+3}, 4, v{t+2}')
    p(f'v_add_u32 v{vKf}, s9, v{t+3}')
    p(f'v_and_b32 v{t+2}, 127, v0')
    p(f'v_mul_u32_u24 v{t+2}, {KQS}, v{t+2}')
    p(f'v_xor_b32 v{t+3}, 9, v{t+4}')
    p(f'v_lshl_add_u32 v{t+2}, v{t+3}, 4, v{t+2}')
    p(f'v_add_u32 v{vKz}, {KQB}, v{t+2}')
    p(f'v_mul_u32_u24 v{t+2}, {VS}, v{c}')
    p(f'v_lshl_add_u32 v{t+2}, v{g}, 3, v{t+2}')
    p(f's_mul_i32 s9, s14, {VP}')
    p(f's_add_u32 s9, s9, {VTB}')
    p(f's_mul_i32 s10, s70, {16*VS}')
    p('s_add_u32 s10, s10, s9')
    p(f's_sub_u32 s10, s10, {9*16*VS}')
    p(f'v_add_u32 v{vVT}, s10, v{t+2}')
    p(f'v_cmp_gt_u32 vcc, 8, v{c}')
    p(f'v_add_u32 v{vVTl}, {2*16*VS}, v{vVT}')
    p(f'v_lshlrev_b32 v{t+3}, 3, v1')
    p(f'v_add_u32 v{t+3}, {SCR}, v{t+3}')
    p(f'v_cndmask_b32 v{vVTl}, v{t+3}, v{vVTl}, vcc')
    p(f's_mul_i32 s10, s15, {18*VS}')
    p('s_add_u32 s10, s10, s9')
    p(f'v_add_u32 v{vV0}, s10, v{t+2}')
    p(f'v_and_b32 v{t+3}, 2, v1')
    p(f'v_cmp_eq_u32 vcc, 0, v{t+3}')
    p(f'v_and_b32 v{t+3}, 1, v1')
    p(f'v_mul_u32_u24 v{t+3}, {VS}, v{t+3}')
    p(f's_add_u32 s10, s10, {16*VS}')
    p(f'v_add_u32 v{t+3}, s10, v{t+3}')
    p(f's_add_u32 s9, s9, {72*VS}')
    p(f'v_mov_b32 v{t+4}, s9')
    p(f'v_cndmask_b32 v{t+3}, v{t+4}, v{t+3}, vcc')
    p(f'v_lshl_add_u32 v{vV1}, v{g}, 3, v{t+3}')
    p('s_mul_i32 s9, s6, 57')
    p('s_cmp_eq_u32 s6, 0')
    p('s_cselect_b32 s12, 0, 7')
    p('s_mul_i32 s10, s14, 18432')
    p('s_lshl_b32 s11, s15, 12')
    p('s_add_u32 s11, s11, s10')
    p('s_lshl_b32 s13, s7, 8')
    p('s_add_u32 s11, s11, s13')
    p(f'v_and_b32 v{t+3}, 31, v1')
    p(f'v_cmp_gt_u32 vcc, s12, v{t+3}')
    p(f'v_add_u32 v{t+3}, s9, v{t+3}')
    p(f'v_lshrrev_b32 v{t+4}, 4, v{t+3}')
    p(f'v_mul_u32_u24 v{t+4}, 36864, v{t+4}')
    p(f'v_and_b32 v{t+3}, 15, v{t+3}')
    p(f'v_lshl_add_u32 v{t+4}, v{t+3}, 4, v{t+4}')
    p(f'v_lshrrev_b32 v{t+3}, 5, v1')
    p(f'v_lshl_add_u32 v{t+4}, v{t+3}, 11, v{t+4}')
    p(f'v_add_u32 v{vOs[0]}, s11, v{t+4}')
    p(f'v_add_u32 v{vOs[1]}, {2*36864}, v{vOs[0]}')
    p(f'v_mov_b32 v{t+5}, {OOB}')
    p(f'v_cndmask_b32 v{vOs[0]}, v{vOs[0]}, v{t+5}, vcc')
    p('v_cmp_gt_u32 vcc, s12, v1')
    p(f'v_add_u32 v{t+3}, s9, v1')
    p(f'v_lshrrev_b32 v{t+4}, 4, v{t+3}')
    p(f'v_mul_u32_u24 v{t+4}, 36864, v{t+4}')
    p(f'v_and_b32 v{t+3}, 15, v{t+3}')
    p(f'v_lshl_add_u32 v{t+4}, v{t+3}, 4, v{t+4}')
    p('s_add_u32 s10, s10, s13')
    p('s_lshl_b32 s11, s15, 2')
    p('s_add_u32 s10, s10, s11')
    p(f's_add_u32 s10, s10, {64*256}')
    p(f'v_add_u32 v{vOs[2]}, s10, v{t+4}')
    p(f'v_cndmask_b32 v{vOs[2]}, v{vOs[2]}, v{t+5}, vcc')
    p(f'v_lshlrev_b32 v{t+2}, 2, v{g}')
    p(f'v_subrev_u32 v{t+3}, s15, v{t+2}')
    for i in range(4):
        p(f'v_add_u32 v{t+4+i}, {i}, v{t+3}')
    for i in range(4):
        p(f'v_cmp_gt_u32 s[{10+2*(i&1)}:{11+2*(i&1)}], 9, v{t+4+i}')
        if i & 1:
            p('s_nop 0')
            p(f'v_cndmask_b32 v{vQm+i-1}, 0, -1, s[10:11]')
            p(f'v_cndmask_b32 v{vQm+i}, 0, -1, s[12:13]')
    p(f'v_sub_u32 v{t+2}, v{c}, v{t+2}')
    p(f'v_cmp_ge_i32 s[72:73], -6, v{t+2}')
    p(f'v_cmp_lt_i32 s[62:63], -6, v{t+2}')
    p(f'v_mov_b32 v{t+5}, 0xf149f2ca')
    for rr in range(4):
        p(f'v_subrev_u32 v{t+3}, {rr}, v{t+2}')
        p(f'v_and_b32 v{t+4}, 8, v{t+3}')
        p(f'v_cmp_ge_u32 s[10:11], 7, v{t+3}')
        p(f'v_cmp_eq_u32 vcc, 0, v{t+4}')
        p('s_nop 0')
        p(f'v_cndmask_b32 v{vBias0+rr}, v{t+5}, 0, s[10:11]')
        p(f'v_cndmask_b32 v{vBias+rr}, v{t+5}, 0, vcc')
    p('s_cmp_ge_u32 s5, 9')
    p('s_cselect_b32 s9, 1, 0')
    p('s_lshl_b32 s66, s4, 1')
    p('s_add_u32 s66, s66, s9')
    p('s_mul_i32 s9, s9, 9')
    p('s_sub_u32 s67, s5, s9')
    p(f'v_lshrrev_b32 v{t}, 3, v1')
    p(f'v_mul_u32_u24 v{t}, 1152, v{t}')
    p(f'v_bfe_u32 v{t+1}, v1, 4, 1')
    p(f'v_lshlrev_b32 v{t+1}, 1, v{t+1}')
    p(f'v_and_b32 v{t+2}, 7, v1')
    p(f'v_xor_b32 v{t+1}, v{t+1}, v{t+2}')
    p('s_lshl_b32 s9, s14, 2')
    p(f'v_xor_b32 v{t+1}, s9, v{t+1}')
    p('s_lshl_b32 s9, s67, 7')
    p(f'v_add_u32 v{t}, s9, v{t}')
    p(f'v_lshl_add_u32 v{vWo}, v{t+1}, 4, v{t}')
    p(f'v_lshrrev_b32 v{t}, 4, v1')
    p(f'v_mul_u32_u24 v{t}, {16*1152}, v{t}')
    p(f'v_add_u32 v{t}, {16*1152}, v{t}')
    p(f'v_add_u32 v{vWoL}, v{vWo}, v{t}')
    for i in list(range(192, 210)) + [218, 219]: p(f'v_mov_b32 v{i}, 0')
    p('s_mov_b32 s90, 0x3eae1a93')
    p('s_mov_b32 s91, 0x3eae1a93')
    for i in range(3): p(f'v_cmp_eq_u32 s[{16+2*i}:{17+2*i}], {i+1}, v{vG}')
    p('s_lshl_b32 s22, s6, 3')
    p('s_add_u32 s22, s22, s7')
    p(f's_mul_i32 s22, s22, {FLS}')
    return glue_scc(p.lines)

def b1_variant(p, k, var):
    types = [['kq']*4, ['kq', 'v', 'v'], ['v']*3][var]
    nT = len(types)
    def reads(st, ks, xa):
        X, W = SET[st]
        r = [f'ds_read_b128 {vr(X+4*t,4)}, v{xa} offset:{2048*t}' for t in range(4)]
        for j in range(nT):
            for hf in range(2):
                r.append(f'ds_read_b64_tr_b16 {vr(W+4*j+2*hf,2)}, v{vWa} offset:{16*WPS*ks+432*hf+32*j}')
        return r
    def mfmas(st, zero=False):
        X, W = SET[st]
        out = []
        for j in range(nT):
            for t in range(4):
                a = vr(ACCB+16*j+4*t, 4)
                c_ = '0' if zero else a
                if types[j] == 'kq': out.append(f'v_mfma_f32_16x16x32_bf16 {a}, {vr(W+4*j,4)}, {vr(X+4*t,4)}, {c_}')
                else: out.append(f'v_mfma_f32_16x16x32_bf16 {a}, {vr(X+4*t,4)}, {vr(W+4*j,4)}, {c_}')
        return out
    L = f'{k}_{var}'
    X_ = os.environ.get('X', '')
    global dma_slot
    ds0 = dma_slot
    if 'd' in X_: dma_slot = lambda i: []
    if 'r' in X_: reads = lambda st, ks, xa: []
    if 'm' in X_: mfmas = lambda st: ['s_nop 0'] * 4
    for x in reads(0, 0, vXb0): p(x)
    mz = mfmas(0, True)
    p('s_waitcnt lgkmcnt(0)')
    sec = interleave(reads(1, 1, vXa1), sum((dma_slot(i) for i in range(6)), []))
    sec += [f's_mov_b32 s{sDst}, s{sStage}'] + dma_advance()
    upd0 = [f'v_add_u32 v{vXa0}, s{sNext}, v{vXb0}', f'v_add_u32 v{vXa1}, s{sNext}, v{vXb1}', f's_mov_b32 s{sStage}, s{sNext}', f's_add_u32 s{sChunk}, s{sChunk}, 1']
    for x in interleave(mz, sec + upd0, lead=1): p(x)
    p(f's_branch L_b1wait_{L}')
    if PFB and var < 2 and PF2POS == 'loop':
        p(f's_cmp_lt_u32 s{sW}, {PFB-1}')
        p(f's_cbranch_scc1 L_b1loop_{L}')
        for x in pf_loads(246, 247, 60, 61, 248): p(x)
    p.label(f'L_b1loop_{L}')
    if PRIO == 2: p(f's_setprio {1 if var == 0 else 0}')
    if PRIO == 3: p(f's_setprio {0 if var == 0 else 1}')
    p('s_waitcnt lgkmcnt(0)')
    sec = interleave(reads(1, 1, vXa1), dma_slot(3) + dma_slot(4) + dma_slot(5))
    mf = mfmas(0)
    nh = len(mf) - 4
    call = f's_cmp_ge_u32 s23, {NSIDE}\ns_cbranch_scc1 L_nos_{L}\ns_call_b64 s[24:25], L_side_{k}\nL_nos_{L}:'
    body = interleave(mf[:nh], sec, lead=1, frac=FR2)
    if NSIDE and var == 0: body.insert(len(body) - SPOS, call)
    for x in body: p(x)
    p(f's_cmp_ge_u32 s{sChunk}, 6')
    p(f's_cbranch_scc1 L_b1sp_{L}')
    upd = [f's_mov_b32 s{sDst}, s{sStage}'] + dma_advance()
    for x in interleave(mf[nh:nh+2], upd): p(x)
    p.label(f'L_b1mid_{L}')
    upd = [f'v_add_u32 v{vXa0}, s{sNext}, v{vXb0}', f'v_add_u32 v{vXa1}, s{sNext}, v{vXb1}', f's_mov_b32 s{sStage}, s{sNext}', f's_add_u32 s{sChunk}, s{sChunk}, 1']
    for x in interleave(mf[nh+2:], upd): p(x)
    p.label(f'L_b1wait_{L}')
    p('s_waitcnt vmcnt(6) lgkmcnt(0)')
    p('s_barrier')
    if PROF == 2:
        p('s_memtime s[96:97]')
        p(f's_add_u32 m0, s{sChunk}, 39')
        p('s_waitcnt lgkmcnt(0)')
        p('v_writelane_b32 v253, s96, m0')
    mf = mfmas(1)
    if PRIO == 2: p(f's_setprio {0 if var == 0 else 1}')
    if PRIO == 3: p(f's_setprio {1 if var == 0 else 0}')
    p(mf[0])
    p(f'v_add_u32 v{vWa}, s{sNext}, v{vWb}')
    sec = interleave(reads(0, 0, vXa0), dma_slot(0) + dma_slot(1) + dma_slot(2))
    sec.append(f's_add_u32 s{sNext}, s{sStage}, {STG}\ns_cmp_eq_u32 s{sNext}, {3*STG}\ns_cselect_b32 s{sNext}, 0, s{sNext}')
    body = interleave(mf[1:-1], sec, lead=1, frac=FR)
    if NSIDE and var != 0: body.insert(len(body) - SPOS2, call)
    for x in body: p(x)
    p(mf[-1])
    p(f's_branch L_b1loop_{L}')
    dma_slot = ds0
    p.label(f'L_b1sp8_{L}')
    for x in mfmas(0)[nh+2:]: p(x)
    p('s_waitcnt lgkmcnt(0)')
    p('s_barrier')
    stamp(p, 2)
    Z = SET[0][0]
    T = Z + 8
    mf = mfmas(1)
    def img(i):
        j, t = divmod(i, 4)
        a = ACCB + 16*j + 4*t
        d = T + 2*(i % 8)
        r = [f'v_cvt_pk_bf16_f32 v{d}, v{a}, v{a+1}', f'v_cvt_pk_bf16_f32 v{d+1}, v{a+2}, v{a+3}']
        if types[j] == 'kq':
            if t & 1: late.append([f'v_permlane16_swap_b32 v{d-2}, v{d}', f'v_permlane16_swap_b32 v{d-1}, v{d+1}',
                                   f'ds_write_b128 v{vKQ1 if j else vKQ}, {vr(d-2,4)} offset:{16*KQS*(t-1)+32*j}'])
        elif var == 2 and j == 2: r.append(f'ds_write_b64 v{vVTl}, {vr(d,2)} offset:{32*t}')
        else: r.append(f'ds_write_b64 v{vVT}, {vr(d,2)} offset:{16*VS*j+32*t}')
        if late and not (types[j] == 'kq' and t & 1): r += late.pop(0)
        return r
    late = []
    pre = []
    if var == 0:
        pre = [f'v_lshrrev_b32 v{Z}, 5, v1', f'v_mul_u32_u24 v{Z}, {VP}, v{Z}', f'v_and_b32 v{Z+1}, 31, v1', f'v_lshl_add_u32 v{Z}, v{Z+1}, 2, v{Z}',
               f'v_add_u32 v{Z}, {VTB+72*VS}, v{Z}', f'v_mov_b32 v{Z+1}, 0x3f803f80', f'ds_write_b32 v{Z}, v{Z+1}']
    if var == 2:
        pre = [f'v_mov_b32 v{Z+i}, 0' for i in range(4)] + [f'ds_write_b128 v{vKz}, {vr(Z,4)}']
    LAG = 3
    for i, x in enumerate(mf):
        p(x)
        if i < LAG:
            for y in pre[i::LAG] if False else pre[i*3:(i+1)*3 if i < LAG-1 else None]: p(y)
        else:
            for y in img(i - LAG): p(y)
    for i in range(len(mf) - LAG, len(mf)):
        for y in img(i): p(y)
    for z in late:
        for y in z: p(y)
    p(f's_branch L_attn_{k}')
    p.label(f'L_b1sp_{L}')
    for x in mfmas(0)[nh:nh+2]: p(x)
    p(f's_cmp_eq_u32 s{sChunk}, 7')
    p(f's_cbranch_scc1 L_b1sp7_{L}')
    p(f's_cmp_eq_u32 s{sChunk}, 8')
    p(f's_cbranch_scc1 L_b1sp8_{L}')
    for r in (SRDx, SRDw):
        p(f's_mov_b32 s{r}, s{P_WO}')
        p(f's_and_b32 s{r+1}, s{P_WO+1}, 0xffff')
        p(f's_mov_b32 s{r+2}, {SZ_WO}')
    for v in (2, 3, 4): p(f'v_mov_b32 v{v}, v{vWo}')
    nonce_load(p)
    p(f's_mov_b32 s{sDst}, {WOB}')
    p(f's_lshl_b32 s{sB[0]}, s{sW}, 10')
    p(f's_mul_i32 s{sO[0]}, s{sW}, {72*1152}')
    for i in range(1, 6):
        p(f's_add_u32 s{sB[i]}, s{sB[0]}, {8192*i}')
        p(f's_add_u32 s{sO[i]}, s{sO[0]}, {(18*(i>>1)+8*(i&1))*1152}')
    p(f's_branch L_b1mid_{L}')
    p.label(f'L_b1sp7_{L}')
    p(f'v_mov_b32 v4, v{vWoL}')
    for i in range(3):
        p(f's_add_u32 s{sB[i]}, s{sB[i]}, {8192*6}')
        p(f's_add_u32 s{sO[i]}, s{sO[i]}, {54*1152}' if i < 2 else f's_sub_u32 s{sO[i]}, s{sO[i]}, {18*1152}')
        p(f's_mov_b32 s{sB[3+i]}, {SCR-WOB}')
        p(f's_mov_b32 s{sO[3+i]}, {OOB}')
    p(f's_branch L_b1mid_{L}')

def attention(p, k, sc):
    KF, QF, V0, V1 = 64, 80, 208, 218
    S1, S0 = 116, 132
    p.label(f'L_attn_{k}')
    if PRIO >= 2: p('s_setprio 0')
    p('s_waitcnt lgkmcnt(0)')
    stamp(p, 3)
    p('s_barrier')
    stamp(p, 4)
    for t in range(4):
        p(f'ds_read_b128 {vr(QF+4*t,4)}, v{vKf} offset:{160+16*KQS*t}')
        p(f'ds_read_b128 {vr(KF+4*t,4)}, v{vKf} offset:{16*KQS*t}')
    for t in range(4):
        p(f'ds_read_b64 {vr(V0+2+2*t,2)}, v{vV0} offset:{32*t}')
        p(f'ds_read_b64 {vr(V1+2+2*t,2)}, v{vV1} offset:{32*t}')
    for t in range(4):
        p(f's_waitcnt lgkmcnt({15-2*t})')
        for i in range(4): p(f'v_and_b32 v{QF+4*t+i}, v{QF+4*t+i}, v{vQm+i}')
    for t in range(4):
        if t == 0: p('s_waitcnt lgkmcnt(8)')
        p(f'v_mfma_f32_16x16x32_bf16 {vr(S1+4*t,4)}, {vr(KF+4*t,4)}, {vr(QF+4*t,4)}, 0')
        if t: p(f'v_mfma_f32_16x16x32_bf16 {vr(S0+4*t,4)}, {vr(KF+4*t-4,4)}, {vr(QF+4*t,4)}, 0')
    stamp(p, 5)
    PF = 192
    M = lambda t: 148 + 2 * t
    M2 = lambda t: 149 + 2 * t
    BC = 'op_sel:[0,0] op_sel_hi:[1,0]'
    for rr in (0, 2): p(f'v_pk_fma_f32 {vr(S1+rr,2)}, {vr(S1+rr,2)}, s[90:91], {vr(vBias0+rr,2)}')
    p(f'v_max3_f32 v{M(0)}, v{S1}, v{S1+1}, v{S1+2}')
    p(f'v_max_f32 v{M(0)}, v{M(0)}, v{S1+3}')
    p('s_mov_b64 exec, s[62:63]')
    for t in range(1, 4):
        for rr in (0, 2): p(f'v_pk_fma_f32 {vr(S1+4*t+rr,2)}, {vr(S1+4*t+rr,2)}, s[90:91], {vr(vBias+rr,2)}')
    p('s_mov_b64 exec, s[72:73]')
    for t in range(1, 4):
        for rr in (0, 2): p(f'v_pk_fma_f32 {vr(S1+4*t+rr,2)}, {vr(S0+4*t+rr,2)}, s[90:91], {vr(vBias+rr,2)}')
    p('s_mov_b64 exec, -1')
    for t in range(1, 4): p(f'v_max3_f32 v{M(t)}, v{S1+4*t}, v{S1+4*t+1}, v{S1+4*t+2}')
    for t in range(1, 4): p(f'v_max_f32 v{M(t)}, v{M(t)}, v{S1+4*t+3}')
    p(f'v_permlane32_swap_b32 v{M(0)}, v{M(1)}')
    p(f'v_permlane32_swap_b32 v{M(2)}, v{M(3)}')
    p(f'v_max_f32 v{M(0)}, v{M(0)}, v{M(1)}')
    p(f'v_max_f32 v{M(2)}, v{M(2)}, v{M(3)}')
    p(f'v_permlane16_swap_b32 v{M(0)}, v{M(2)}')
    p(f'v_max_f32 v{M(0)}, v{M(0)}, v{M(2)}')
    p(f'v_mov_b32 v{M(2)}, v{M(0)}')
    p(f'v_permlane16_swap_b32 v{M(0)}, v{M(2)}')
    p(f'v_mov_b32 v{M(1)}, v{M(0)}')
    p(f'v_mov_b32 v{M(3)}, v{M(2)}')
    p(f'v_permlane32_swap_b32 v{M(0)}, v{M(1)}')
    p(f'v_permlane32_swap_b32 v{M(2)}, v{M(3)}')
    for t in range(4):
        for rr in (0, 2): p(f'v_pk_add_f32 {vr(S1+4*t+rr,2)}, {vr(S1+4*t+rr,2)}, {vr(M(t),2)} {BC} neg_lo:[0,1] neg_hi:[0,1]')
    p('s_waitcnt lgkmcnt(0)')
    stamp(p, 6)
    O0, O1 = 64, 80
    def pv(t):
        p(f'v_mfma_f32_16x16x32_bf16 {vr(O1+4*t,4)}, {vr(V1+2*t,4)}, {vr(PF+4*t,4)}, 0')
        p(f'v_mfma_f32_16x16x32_bf16 {vr(O0+4*t,4)}, {vr(V0+2*t,4)}, {vr(PF+4*t,4)}, 0')
    def pcv(ts):
        for msk, o in (('s[72:73]', 0), ('s[62:63]', 2)):
            p(f's_mov_b64 exec, {msk}')
            for t in ts:
                p(f'v_cvt_pk_bf16_f32 v{PF+4*t+o}, v{S1+4*t}, v{S1+4*t+1}')
                p(f'v_cvt_pk_bf16_f32 v{PF+4*t+o+1}, v{S1+4*t+2}, v{S1+4*t+3}')
        p('s_mov_b64 exec, -1')
    for i in range(8): p(f'v_exp_f32 v{S1+i}, v{S1+i}')
    pcv((0, 1))
    for i in range(8, 12): p(f'v_exp_f32 v{S1+i}, v{S1+i}')
    pv(0)
    for i in range(12, 16): p(f'v_exp_f32 v{S1+i}, v{S1+i}')
    pv(1)
    pcv((2, 3))
    PO, PE = 116, 124
    def fin(u):
        for rr in (0, 2): p(f'v_pk_mul_f32 {vr(O0+4*u+rr,2)}, {vr(O0+4*u+rr,2)}, {vr(M(u),2)} {BC}')
        p(f'v_pk_mul_f32 {vr(O1+4*u,2)}, {vr(O1+4*u,2)}, {vr(M(u),2)} {BC}')
        p(f'v_cvt_pk_bf16_f32 v{PO+2*u}, v{O0+4*u}, v{O0+4*u+1}')
        p(f'v_cvt_pk_bf16_f32 v{PO+2*u+1}, v{O0+4*u+2}, v{O0+4*u+3}')
        p(f'v_cvt_pk_bf16_f32 v{PE+u}, v{O1+4*u}, v{O1+4*u+1}')
    def sto(i):
        p(f'v_permlane16_swap_b32 v{PO+4*i}, v{PO+4*i+2}')
        p(f'v_permlane16_swap_b32 v{PO+4*i+1}, v{PO+4*i+3}')
        p(f'buffer_store_dwordx4 {vr(PO+4*i,4)}, v{vOs[i]}, s[52:55], 0 offen{sc}')
    p(f'v_rcp_f32 v{M(0)}, v{O1+2}')
    pv(2)
    pv(3)
    p(f'v_rcp_f32 v{M(1)}, v{O1+6}')
    fin(0)
    p(f'v_rcp_f32 v{M(2)}, v{O1+10}')
    fin(1)
    p(f'v_rcp_f32 v{M(3)}, v{O1+14}')
    p(f'v_cndmask_b32 v{PE}, v{PE}, v{PE+1}, s[16:17]')
    sto(0)
    fin(2)
    fin(3)
    p(f'v_cndmask_b32 v{PE}, v{PE}, v{PE+2}, s[18:19]')
    p(f'v_cndmask_b32 v{PE}, v{PE}, v{PE+3}, s[20:21]')
    sto(1)
    if not os.environ.get('NOLEFT'): p(f'buffer_store_dword v{PE}, v{vOs[2]}, s[52:55], 0 offen{sc}')

def b2_addr(p):
    t = 58
    p(f'v_lshrrev_b32 v{t}, 4, v1')
    p(f'v_bfe_u32 v{t+1}, v1, 2, 2')
    p(f'v_lshl_add_u32 v{t+2}, v{t}, 3, v{t+1}')
    p(f'v_lshlrev_b32 v{t+2}, 7, v{t+2}')
    p(f'v_and_b32 v{t+3}, 3, v1')
    p(f'v_lshl_add_u32 v{t+2}, v{t+3}, 3, v{t+2}')
    p(f'v_and_b32 v{t+3}, 1, v{t}')
    p(f'v_lshlrev_b32 v{t+3}, 1, v{t+3}')
    p(f'v_lshrrev_b32 v{t+1}, 1, v{t+1}')
    p(f'v_or_b32 v{t+3}, v{t+3}, v{t+1}')
    p(f'v_lshl_add_u32 v{t+2}, v{t+3}, 5, v{t+2}')
    p(f'v_add_u32 v42, {WOB}, v{t+2}')
    for m in range(1, 4): p(f'v_xor_b32 v{42+m}, {32*m}, v42')
    for m in range(4): p(f'v_add_u32 v{38+m+8+4}, 49152, v{42+m}')
    p('v_lshlrev_b32 v46, 4, v1')
    p('s_lshl_b32 s9, s66, 3')
    p(f's_add_u32 s9, s9, s{sW}')
    p('s_mul_i32 s64, s9, 18432')
    p('s_lshr_b32 s10, s9, 1')
    p('s_lshl_b32 s69, s10, 5')
    p('s_add_u32 s10, s69, s14')
    p(f'v_and_b32 v{t+1}, 15, v1')
    p(f'v_lshl_add_u32 v{t+1}, v{t+1}, 1, s10')
    p(f'v_mul_u32_u24 v{t+1}, 2304, v{t+1}')
    p(f'v_and_b32 v{t+2}, 1, v{t}')
    p(f'v_lshl_add_u32 v{t+1}, v{t+2}, 5, v{t+1}')
    p(f'v_lshrrev_b32 v{t+2}, 1, v{t}')
    p(f'v_lshl_add_u32 v{t+1}, v{t+2}, 4, v{t+1}')
    p('s_lshl_b32 s9, s67, 7')
    p('s_add_u32 s9, s9, 1152')
    p(f'v_add_u32 v49, s9, v{t+1}')
    p('s_add_u32 s10, s69, 17')
    p('s_mul_i32 s10, s10, 575')
    p('s_lshr_b32 s10, s10, 16')
    p('s_max_u32 s9, s69, 14')
    p('s_sub_u32 s9, s9, 14')
    p('s_mul_i32 s9, s9, 575')
    p('s_lshr_b32 s9, s9, 16')
    p('v_cmp_gt_u32 vcc, 8, v1')
    p('v_mov_b32 v47, s10')
    p('v_mov_b32 v48, s9')
    p('v_cndmask_b32 v47, v47, v48, vcc')
    p('v_and_b32 v48, 7, v1')
    p('v_lshl_add_u32 v47, v47, 3, v48')
    p(f'v_mul_u32_u24 v47, {FLS}, v47')

NSL = 6
def wreads(ks):
    r = []
    base = 136 + 16 * (ks % NSL)
    for m in range(4):
        for hf in range(2):
            a, o = (42 + m, 4096 * ks) if ks < 12 else (50 + m, 4096 * (ks - 12))
            r.append(f'ds_read_b64_tr_b16 {vr(base+4*m+2*hf,2)}, v{a} offset:{o+512*hf}')
    return r

def b2_main(p, k, sc):
    OF, AC = 64, 232
    def oload(ks):
        return [f's_add_u32 s65, s64, {4096*(ks//4)}'] * (ks % 4 == 0) + [f'buffer_load_dwordx4 {vr(OF+4*ks,4)}, v46, s[52:55], s65 offen offset:{1024*(ks%4)}{sc}']
    LEAD = B2LEAD
    for ks in range(LEAD):
        for x in oload(ks): p(x)
    srd(p, 56, P_OUT, SZ_OUT)
    for ks in range(18):
        issued = min(18, LEAD + ks)
        p(f's_waitcnt vmcnt({issued-ks-1}) lgkmcnt({min(15, 8*(min(17, ks+NSL-2)-ks))})')
        if ks == 0: stamp(p, 13)
        mf = []
        for m in range(4):
            a = vr(AC+4*m, 4)
            mf.append(f'v_mfma_f32_16x16x32_bf16 {a}, {vr(136+16*(ks%NSL)+4*m,4)}, {vr(OF+4*ks,4)}, {a if ks else 0}')
        sec = (oload(ks+LEAD) if ks + LEAD < 18 else []) + (wreads(ks+NSL-1) if ks + NSL - 1 < 18 else [])
        for x in interleave(mf, sec, lead=1): p(x)
    stamp(p, 14)
    D = 64
    for m in range(4):
        p(f'v_cvt_pk_bf16_f32 v{D+2*m}, v{AC+4*m}, v{AC+4*m+1}')
        p(f'v_cvt_pk_bf16_f32 v{D+2*m+1}, v{AC+4*m+2}, v{AC+4*m+3}')
    for mp in range(2):
        p(f'v_permlane16_swap_b32 v{D+4*mp}, v{D+4*mp+2}')
        p(f'v_permlane16_swap_b32 v{D+4*mp+1}, v{D+4*mp+3}')
    for mp in range(2):
        p(f'buffer_store_dwordx4 {vr(D+4*mp,4)}, v49, s[56:59], 0 offen offset:{64*mp}{OUTB}')

def signal_and_wait(p, k, who, sFlagOff, vPoll, sMask, perwave, pre=()):
    p('s_mov_b32 s11, 0')
    p.label(f'L_t{who}_{k}')
    p('v_cmp_eq_u32 vcc, 0, v242')
    p(f's_cbranch_vccz L_u{who}_{k}')
    nonce_load(p)
    p('s_waitcnt vmcnt(0)')
    p('s_add_u32 s11, s11, 1')
    p(f's_cmp_lt_u32 s11, {SPIN_MAX}')
    p(f's_cbranch_scc1 L_t{who}_{k}')
    p.label(f'L_u{who}_{k}')
    srd(p, 48, P_WS, 216*FLS, WS_FLAG)
    p(f'v_mov_b32 v241, s{sFlagOff}')
    p(f's_cmp_lg_u32 s{sW}, 0')
    p('s_waitcnt vmcnt(0)')
    stamp(p, 9)
    p('s_barrier')
    p(f's_cbranch_scc1 L_s{who}_{k}')
    p('s_mov_b64 exec, 1')
    p('buffer_store_dwordx2 v[242:243], v241, s[48:51], 0 offen sc1')
    p('s_mov_b64 exec, -1')
    p.label(f'L_s{who}_{k}')
    stamp(p, 10)
    for x in pre: p(x)
    p(f's_mov_b64 exec, {sMask}')
    if POLL2:
        p(f'buffer_load_dwordx2 v[244:245], v{vPoll}, s[48:51], 0 offen sc1')
        p(f's_sleep {POLL2}')
        p.label(f'L_p{who}_{k}')
        p(f'buffer_load_dwordx2 v[246:247], v{vPoll}, s[48:51], 0 offen sc1')
        p('s_waitcnt vmcnt(1)')
        p('v_cmp_ne_u64 vcc, v[244:245], v[242:243]')
        p(f's_cbranch_vccz L_d{who}_{k}')
        p(f'buffer_load_dwordx2 v[244:245], v{vPoll}, s[48:51], 0 offen sc1')
        p('s_waitcnt vmcnt(1)')
        p('v_cmp_ne_u64 vcc, v[246:247], v[242:243]')
        p(f's_cbranch_vccz L_d{who}_{k}')
    else:
        p.label(f'L_p{who}_{k}')
        p(f'buffer_load_dwordx2 v[244:245], v{vPoll}, s[48:51], 0 offen sc1')
        p('s_waitcnt vmcnt(0)')
        p('v_cmp_ne_u64 vcc, v[244:245], v[242:243]')
        p(f's_cbranch_vccz L_d{who}_{k}')
        if SLEEP: p(f's_sleep {SLEEP}')
    p('s_add_u32 s11, s11, 1')
    p(f's_cmp_lt_u32 s11, {SPIN_MAX}')
    p(f's_cbranch_scc1 L_p{who}_{k}')
    p.label(f'L_d{who}_{k}')
    p('s_mov_b64 exec, -1')
    stamp(p, 12)

def pf_addr(p, vi, vx, vw, t):
    p(f'v_mul_u32_u24 v{t}, 10382, v{vi}')
    p(f'v_lshrrev_b32 v{t}, 24, v{t}')
    p(f'v_mul_u32_u24 v{t+1}, 1616, v{t}')
    p(f'v_sub_u32 v{t+1}, v{vi}, v{t+1}')
    p(f'v_cmp_gt_u32 vcc, 1040, v{t+1}')
    p(f'v_mul_u32_u24 v{vx}, 1152, v{t+1}')
    p(f'v_lshl_add_u32 v{vx}, v{t}, 7, v{vx}')
    p(f'v_subrev_u32 v{t+1}, 1040, v{t+1}')
    p(f'v_and_b32 v{t+1}, 0x3ff, v{t+1}')
    p(f'v_mul_u32_u24 v{t+2}, 7282, v{t+1}')
    p(f'v_lshrrev_b32 v{t+2}, 16, v{t+2}')
    p(f'v_mul_u32_u24 v{t+3}, 9, v{t+2}')
    p(f'v_sub_u32 v{t+1}, v{t+1}, v{t+3}')
    p(f'v_lshl_add_u32 v{t+2}, v{t}, 6, v{t+2}')
    p(f'v_mul_u32_u24 v{t+2}, 3456, v{t+2}')
    p(f'v_mul_u32_u24 v{t+3}, 171, v{t+1}')
    p(f'v_lshrrev_b32 v{t+3}, 9, v{t+3}')
    p(f'v_mul_u32_u24 v{t+3}, 768, v{t+3}')
    p(f'v_lshl_add_u32 v{t+3}, v{t+1}, 7, v{t+3}')
    p(f'v_add_u32 v{vw}, v{t+2}, v{t+3}')
    p(f'v_mov_b32 v{t}, {OOB}')
    p(f'v_cndmask_b32 v{vx}, v{t}, v{vx}, vcc')
    p(f'v_cndmask_b32 v{vw}, v{vw}, v{t}, vcc')

def pf_first_addr(p, sub, vi, vx, vw, t):
    p(f's_sub_u32 s9, s5, {sub}')
    p('s_lshl_b32 s9, s9, 3')
    p(f's_add_u32 s9, s9, s{sW}')
    p(f's_mul_i32 s9, s9, {PFL}')
    p(f'v_cmp_gt_u32 vcc, {PFL}, v1')
    p(f'v_add_u32 v{vi}, s9, v1')
    p(f'v_mov_b32 v{t}, 15616')
    p(f'v_cndmask_b32 v{vi}, v{t}, v{vi}, vcc')
    pf_addr(p, vi, vx, vw, t)
    pf_bases(p, 60, 61)

def pf_bases(p, sx, sw):
    p(f's_lshr_b32 s{sw}, s4, 1')
    p(f's_mul_i32 s{sw}, s{sw}, 288')
    p(f's_and_b32 s{sw}, s{sw}, 0xffffff80')
    p(f's_and_b32 s{sx}, s4, 1')
    p(f's_mul_i32 s{sx}, s{sx}, {1026*1152}')

def pf_loads(vx, vw, sx, sw, d):
    return [f'buffer_load_dword v{d}, v{vx}, s[40:43], s{sx} offen{nt("p")}', f'buffer_load_dword v{d+1}, v{vw}, s[44:47], s{sw} offen{nt("p")}']

def role_b(p, k):
    if os.environ.get('NOB'):
        p('s_endpgm'); return
    b_decode(p)
    b1_dma_addr(p)
    if PFB:
        pf_first_addr(p, 0, 60, 246, 247, vTmp)
    p('s_waitcnt lgkmcnt(0)')
    prof_srd(p)
    stamp_begin(p)
    srd(p, SRDx, P_X, SZ_A)
    srd(p, SRDw, P_W, SZ_W)
    c0 = []; c1 = []
    for i in range(6): c0 += dma_slot(i)
    c0.append('\n'.join(dma_advance() + [f's_add_u32 s{sDst}, s{sDst}, {STG}']))
    if PFB:
        for x in pf_loads(246, 247, 60, 61, 248): p(x)
    for x in c0: p(x)
    stamp(p, 20)
    if os.environ.get('C0WAIT'):
        p('s_waitcnt vmcnt(0)')
        stamp(p, 22)
        p('s_barrier')
        stamp(p, 23)
    cs = b1_consts()
    cut = cs.index('; SPLIT')
    ess, side = cs[:cut], cs[cut+1:]
    if not NSIDE: ess, side = ess + side, []
    for x in interleave(ess, c0, frac=0.5 if not NSIDE else 1.0): p(x)
    p('s_mov_b32 s23, 0')
    srd(p, 52, P_WS, SZ_A, WS_O)
    if NSIDE:
        for v in vOs + [46, 47, 49, vWo, vWoL]: p(f'v_bfrev_b32 v{v}, 1')
    if PFB and PF2POS == 'pro':
        p(f's_cmp_lt_u32 s{sW}, {PFB-1}')
        p(f's_cbranch_scc1 L_pf2_{k}')
        for x in pf_loads(246, 247, 60, 61, 248): p(x)
        p.label(f'L_pf2_{k}')
    stamp(p, 21)
    if PRIO == 1:
        p(f's_cmp_lt_u32 s{sW}, 4')
        p(f's_cbranch_scc1 L_prio_{k}')
        p('s_setprio 1')
        p.label(f'L_prio_{k}')
    p(f's_mov_b32 s{sChunk}, 0')
    p(f's_mov_b32 s{sStage}, 0')
    p(f's_mov_b32 s{sNext}, {STG}')
    p('s_waitcnt vmcnt(6)')
    p('s_barrier')
    stamp(p, 1, f'b1a_{k}')
    p(f's_cmp_ge_u32 s{sW}, 6')
    p(f's_cbranch_scc1 L_var2_{k}')
    p(f's_cmp_ge_u32 s{sW}, 4')
    p(f's_cbranch_scc1 L_var1_{k}')
    b1_variant(p, k, 0)
    p.label(f'L_var1_{k}')
    b1_variant(p, k, 1)
    p.label(f'L_var2_{k}')
    b1_variant(p, k, 2)
    attention(p, k, ' sc1')
    stamp(p, 8)
    b2_addr(p)
    signal_and_wait(p, k, 'b', 22, 47, 0xffff, True, sum((wreads(i) for i in range(NSL-1)), []))
    b2_main(p, k, ' sc1')
    if NSIDE:
        global SIDE
        SIDE = side
    stamp_end(p, 30, (0, 2, [61, 1, 2, 8, 9, 12, 30, 63]))
    p('s_endpgm')

def role_a(p, k):
    if os.environ.get('NOA'):
        p('s_endpgm'); return
    a_decode(p)
    a1_addr(p)
    p('s_waitcnt lgkmcnt(0)')
    prof_srd(p)
    stamp_begin(p)
    if ADELAY: a2_addr(p)
    a1_loads(p, k)
    a1_compute(p, ' sc1')
    stamp(p, 2)
    a2_hstage(p)
    stamp(p, 3)
    signal_and_wait(p, k, 'a', 68, 233, 0xff, PWA)
    a2_main(p, k, ' sc1', True)
    stamp_end(p, 30, (144, 10, [61, 1, 12, 14, 30, 63]))
    p('s_endpgm')

def role_c(p, k):
    p('s_sub_u32 s6, s5, 27')
    p('s_lshl_b32 s6, s6, 3')
    p(f's_add_u32 s6, s6, s{sW}')
    p('s_lshl_b32 s7, s6, 6')
    p('v_add_u32 v2, s7, v1')
    p('s_getpc_b64 s[8:9]')
    p.label(f'L_pc_{k}')
    p(f's_sub_u32 s8, s8, L_pc_{k}-{NAME}_kernel')
    p('s_subb_u32 s9, s9, 0')
    p('v_lshlrev_b32 v3, 7, v2')
    p(f'v_cmp_gt_u32 vcc, L_end_{k}-{NAME}_kernel, v3')
    p('v_mov_b32 v5, s9')
    p('v_add_co_u32 v4, s[10:11], s8, v3')
    p('v_addc_co_u32 v5, s[10:11], 0, v5, s[10:11]')
    p('s_and_saveexec_b64 s[12:13], vcc')
    p(f's_cbranch_execz L_nc_{k}')
    p('global_load_dword v10, v[4:5], off')
    p.label(f'L_nc_{k}')
    p('s_mov_b64 exec, s[12:13]')
    p('s_waitcnt lgkmcnt(0)')
    prof_srd(p)
    stamp_begin(p)
    p('s_cmp_lg_u32 s2, 216')
    p(f's_cbranch_scc1 L_nl_{k}')
    p(f's_cmp_lg_u32 s{sW}, 0')
    p(f's_cbranch_scc1 L_nl_{k}')
    p('s_memrealtime s[60:61]')
    srd(p, 56, P_DBG, 256)
    p('s_waitcnt lgkmcnt(0)')
    p('s_or_b32 s60, s60, 1')
    p('v_mov_b32 v30, s60')
    p('v_mov_b32 v31, s61')
    p('v_mov_b32 v32, 0')
    p('s_mov_b64 exec, 1')
    p('buffer_store_dwordx2 v[30:31], v32, s[56:59], 0 offen sc1')
    p('s_mov_b64 exec, -1')
    if os.environ.get('DIAGT'):
        p.label('L_diag')
        p('s_memrealtime s[62:63]')
        p('s_waitcnt lgkmcnt(0)')
        p('s_sub_u32 s62, s62, s60')
        p(f's_cmp_lt_u32 s62, {os.environ["DIAGT"]}')
        p('s_cbranch_scc1 L_diag')
    p.label(f'L_nl_{k}')
    if os.environ.get('NOC'):
        p('s_endpgm'); return
    srd(p, 40, P_X, SZ_A)
    srd(p, 44, P_W, SZ_W)
    srd(p, 48, P_WO, SZ_WO)
    srd(p, 52, P_Q, SZ_A)
    d = 21
    pf_first_addr(p, 9, 6, 7, 8, 11)
    for x in pf_loads(7, 8, 60, 61, d): p(x)
    d += 2
    first = 23*8*PFL
    nb = -(-(14544-first)//2560)
    p(f's_and_b32 s9, s{sW}, 3')
    p('s_mul_i32 s9, s9, 5')
    p('s_add_u32 s9, s9, s5')
    p('s_sub_u32 s9, s9, 27')
    p('s_lshl_b32 s9, s9, 6')
    p(f's_lshr_b32 s10, s{sW}, 2')
    p(f's_mul_i32 s10, s10, {1280*nb}')
    p('s_add_u32 s9, s9, s10')
    for it in range(nb):
        p(f'v_add_u32 v6, s9, v1')
        p(f'v_add_u32 v6, {first+1280*it}, v6')
        pf_addr(p, 6, 7, 8, 11)
        for x in pf_loads(7, 8, 60, 61, d): p(x)
        d += 2
    stamp(p, 1)
    p('s_waitcnt vmcnt(0)')
    stamp(p, 2)
    p('s_mul_i32 s14, s4, 144')
    p('s_and_b32 s14, s14, 0xffffff80')
    for it in range(2):
        p(f'v_add_u32 v6, {2560*it}, v2')
        p('v_lshrrev_b32 v7, 1, v6')
        p('v_mul_u32_u24 v7, 1152, v7')
        p('v_and_b32 v8, 1, v6')
        p('v_lshl_add_u32 v7, v8, 7, v7')
        p(f'buffer_load_dword v{d}, v7, s[52:55], s14 offen{nt("q")}'); d += 1
    for it in range(3):
        p(f'v_add_u32 v6, {2560*it}, v2')
        p('v_lshlrev_b32 v6, 7, v6')
        p(f'buffer_load_dword v{d}, v6, s[48:51], 0 offen{nt("o")}'); d += 1
    stamp(p, 3)
    p('s_waitcnt vmcnt(0)')
    stamp_end(p, 30)

def kernel_mega(p):
    k = 'm'
    if PROF: p('s_memtime s[100:101]')
    p(f's_cmp_ge_u32 s2, {GRID}')
    p(f's_cbranch_scc1 L_end_{k}')
    p('s_load_dwordx16 s[16:31], s[0:1], 0')
    p('s_load_dwordx8 s[32:39], s[0:1], 64')
    p('v_lshrrev_b32 v2, 6, v0')
    p('v_and_b32 v1, 63, v0')
    p(f'v_readfirstlane_b32 s{sW}, v2')
    p('s_and_b32 s4, s2, 7')
    p('s_lshr_b32 s5, s2, 3')
    p('s_cmp_ge_u32 s5, 27')
    p(f's_cbranch_scc1 L_roleC_{k}')
    p('s_cmp_ge_u32 s5, 18')
    p(f's_cbranch_scc1 L_roleA_{k}')
    role_b(p, k)
    if NSIDE and not os.environ.get('NOB'):
        p.label(f'L_side_{k}')
        p('s_add_u32 s23, s23, 1')
        for i in range(1, NSIDE):
            p(f's_cmp_eq_u32 s23, {i+1}')
            p(f's_cbranch_scc1 L_side{i}_{k}')
        n = len(SIDE)
        for i in range(NSIDE):
            p.label(f'L_side{i}_{k}')
            for x in SIDE[i*n//NSIDE:(i+1)*n//NSIDE]: p(x)
            p('s_setpc_b64 s[24:25]')
    p('.p2align 10')
    p.label(f'L_roleA_{k}')
    role_a(p, k)
    p('.p2align 10')
    p.label(f'L_roleC_{k}')
    role_c(p, k)
    p.label(f'L_end_{k}')
    p('s_endpgm')

SPIN_MAX = 1 << 16
GRID = int(os.environ.get('GRID', '256'))

HEAD = open(os.path.join(os.path.dirname(os.path.abspath(__file__)), 'head.txt')).read()

def emit_kernel(name, fn):
    p = Prog()
    fn(p)
    lines, n = fix_hazards(p.lines, verbose=bool(os.environ.get('HZ')))
    sys.stderr.write(f'{name}: {len(lines)} lines, {n} nops inserted\n')
    body = '\n'.join(('' if l.endswith(':') else '    ') + l for l in lines)
    return f'''.text
.globl {name}
.p2align 10
.fill 64, 4, 0xbf810000
.p2align 8
.type {name},@function
{name}:
{body}
.section .rodata,"a"
.p2align 6
.amdhsa_kernel {name}
  .amdhsa_next_free_vgpr 256
  .amdhsa_next_free_sgpr 102
  .amdhsa_accum_offset 256
  .amdhsa_group_segment_fixed_size 0
  .amdhsa_kernarg_size 96
  .amdhsa_user_sgpr_count 2
  .amdhsa_user_sgpr_kernarg_segment_ptr 1
  .amdhsa_system_sgpr_workgroup_id_x 1
.end_amdhsa_kernel
'''

def main():
    out = HEAD
    out += f'; @launch grid=({GRID},1,1) block=(512,1,1) lds={LDS_BYTES}\n'
    out += '.amdgcn_target "amdgcn-amd-amdhsa--gfx950"\n'
    out += emit_kernel(NAME + '_kernel', kernel_mega)
    sys.stdout.write(out)

if __name__ == '__main__':
    main()
```

```python
import sys, os
sys.path.insert(0, os.path.dirname(os.path.abspath(__file__)))
from asmlib import Prog, fix_hazards

NAME = 'concat_heads__ssm_conv_h3__sliding_local_dilated__prompt'
MODE = os.environ.get('MODE', 'two')
PROF = int(os.environ.get('PROF', '0'))

FR = float(os.environ.get('FR', '0.7'))
FR2 = float(os.environ.get('FR2', '0.9'))
B2LEAD = int(os.environ.get('B2LEAD', '8'))
NT = os.environ.get('NT', 'a')
nt = lambda c: ' nt' if c in NT else ''
PFB = int(os.environ.get('PFB', '0'))
PWA = int(os.environ.get('PWA', '1'))
PRIO = int(os.environ.get('PRIO', '0'))
PF2POS = os.environ.get('PF2POS', 'none')
ADELAY = int(os.environ.get('ADELAY', '1'))
PFL = int(os.environ.get('PFL', '9'))
OUTA = os.environ.get('OUTA', '').replace('_', ' ')
OUTB = os.environ.get('OUTB', '').replace('_', ' ')
POLL2 = int(os.environ.get('POLL2', '0'))
NSIDE = int(os.environ.get('NSIDE', '0'))
SPOS = int(os.environ.get('SPOS', '0'))
SPOS2 = int(os.environ.get('SPOS2', '3'))
C1LATE = int(os.environ.get('C1LATE', '0'))
CFIRST = int(os.environ.get('CFIRST', '1'))
APF = int(os.environ.get('APF', '32'))
APF0 = int(os.environ.get('APF0', '1616'))
SZ_A = 2359296
SZ_W = 1990656
SZ_WO = 663552
SZ_OUT = 4718592
WS_XR = 0
WS_O = 0x240000
WS_FLAG = 0x480000
FLS = int(os.environ.get('FLS', '128'))
SLEEP = int(os.environ.get('SLEEP', '1'))
WS_PROF = 16 << 20
OOB = 0x80000000
NB, NA = 144, 72
NWG = NB + NA
LDS_BYTES = 163840

sW = 3
P_Q, P_K, P_V, P_SH, P_H, P_D, P_X, P_W, P_WO, P_OUT, P_DBG, P_WS = [16 + 2 * i for i in range(12)]

def srd(p, dst, ptr, size, off=0):
    if off:
        p(f's_add_u32 s{dst}, s{ptr}, {off}')
        p(f's_addc_u32 s{dst+1}, s{ptr+1}, 0')
        p(f's_and_b32 s{dst+1}, s{dst+1}, 0xffff')
    else:
        p(f's_mov_b32 s{dst}, s{ptr}')
        p(f's_and_b32 s{dst+1}, s{ptr+1}, 0xffff')
    p(f's_mov_b32 s{dst+2}, {size}')
    p(f's_mov_b32 s{dst+3}, 0x20000')

def vr(a, n):
    return f'v[{a}:{a+n-1}]' if n > 1 else f'v{a}'

def interleave(prim, sec, lead=0, frac=1.0):
    out = list(prim[:lead]); prim = prim[lead:]
    n, m = max(1, int(len(prim) * frac)), len(sec)
    j = 0
    for i, x in enumerate(prim):
        while j < m and j * n <= i * m:
            out.append(sec[j]); j += 1
        out.append(x)
    out += sec[j:]
    return out

def glue_scc(lines):
    out = []; i = 0
    while i < len(lines):
        if lines[i].startswith('s_cmp'):
            assert lines[i+1].startswith('s_cselect') or lines[i+1].startswith('s_cbranch'), lines[i:i+2]
            out.append(lines[i] + '\n' + lines[i+1]); i += 2
        else:
            assert not lines[i].startswith(('s_cselect', 's_addc', 's_subb')), lines[i]
            out.append(lines[i]); i += 1
    return out

def stamp(p, idx, uid=None):
    if not PROF: return
    p('s_memtime s[96:97]')
    p('s_waitcnt lgkmcnt(0)')
    p(f'v_writelane_b32 v253, s96, {idx}')

def stamp_begin(p):
    if not PROF: return
    p('v_mov_b32 v253, 0')
    p('s_memrealtime s[96:97]')
    p('s_waitcnt lgkmcnt(0)')
    p('v_writelane_b32 v253, s96, 62')
    p('v_writelane_b32 v253, s100, 61')
    stamp(p, 0)

def stamp_end(p, idx, dbg=None):
    if not PROF: return
    stamp(p, idx)
    p('s_memrealtime s[96:97]')
    p('s_waitcnt lgkmcnt(0)')
    p('v_writelane_b32 v253, s96, 63')
    if PROF == 3:
        if dbg:
            wg, base, lst = dbg
            uid = f'dbg{wg}'
            p(f's_cmp_lg_u32 s2, {wg}')
            p(f's_cbranch_scc1 L_{uid}')
            p(f's_cmp_lg_u32 s{sW}, 4')
            p(f's_cbranch_scc1 L_{uid}')
            p('v_readlane_b32 s98, v253, 0')
            p('v_readlane_b32 s99, v253, 62')
            p('v_mov_b32 v252, 0')
            for i, st in enumerate(lst):
                p(f'v_readlane_b32 s97, v253, {st}')
                p('s_nop 3')
                p(f's_sub_u32 s97, s97, {"s99" if st == 63 else "s98"}')
                p(f'v_writelane_b32 v252, s97, {i}')
            srd(p, 92, P_DBG, 256)
            p('v_lshlrev_b32 v254, 2, v1')
            p(f's_mov_b64 exec, {(1 << len(lst)) - 1}')
            p(f'buffer_store_dword v252, v254, s[92:95], 0 offen offset:{4*base}')
            p.label(f'L_{uid}')
        return
    p('s_lshl_b32 s98, s2, 3')
    p(f's_add_u32 s98, s98, s{sW}')
    p('s_lshl_b32 s98, s98, 8')
    p('v_lshl_add_u32 v254, v1, 2, s98')
    p('buffer_store_dword v253, v254, s[92:95], 0 offen')

def prologue(p, k):
    p(f's_cmp_ge_u32 s2, {NWG}')
    p(f's_cbranch_scc1 L_end_{k}')
    p('s_load_dwordx16 s[16:31], s[0:1], 0')
    p('s_load_dwordx8 s[32:39], s[0:1], 64')
    p('v_lshrrev_b32 v2, 6, v0')
    p('v_and_b32 v1, 63, v0')
    p(f'v_readfirstlane_b32 s{sW}, v2')
    p('s_and_b32 s4, s2, 7')
    p('s_lshr_b32 s5, s2, 3')
    p('s_cmp_ge_u32 s5, 18')
    p(f's_cbranch_scc1 L_roleA_{k}')

def prof_srd(p):
    if PROF:
        srd(p, 92, P_WS, 1 << 20, WS_PROF)

HS = 8384
H1 = 4164
XB = 8 * HS
XS_ = 4576
KB = XB
BS = 1088
VB = KB + 33 * BS
assert VB + 32 * BS <= LDS_BYTES

def a_decode(p):
    p('s_mul_i32 s6, s4, 9')
    p('s_add_u32 s6, s6, s5')
    p('s_sub_u32 s6, s6, 18')

def a1_addr(p):
    p('s_lshr_b32 s7, s6, 3')
    p('s_and_b32 s8, s6, 7')
    p('v_and_b32 v7, 7, v1')
    p('v_lshrrev_b32 v8, 3, v1')
    p('v_mul_u32_u24 v2, 1152, v8')
    p('v_lshl_add_u32 v2, v7, 4, v2')
    p('s_lshl_b32 s9, s7, 7')
    p('v_add_u32 v2, s9, v2')
    p(f's_mul_i32 s10, s8, {256*1152}')
    p(f's_mul_i32 s11, s{sW}, {8*1152}')
    p('s_add_u32 s11, s11, s10')
    p(f's_mul_i32 s12, s{sW}, {BS}')
    p(f's_add_u32 s12, s12, {KB+BS}')
    p(f's_sub_u32 s13, s10, {8*1152}')
    p('s_cmp_eq_u32 s8, 0')
    p(f's_cselect_b32 s13, {OOB}, s13')

def a1_loads(p, k):
    if ADELAY == 2:
        nonce_load(p)
        p('s_waitcnt vmcnt(0)')
    stamp(p, 20)
    srd(p, 40, P_K, SZ_A)
    srd(p, 44, P_V, SZ_A)
    for n in range(4):
        p(f's_add_u32 m0, s12, {8*BS*n}')
        p(f's_add_u32 s14, s11, {64*1152*n}')
        p(f'buffer_load_dwordx4 v2, s[40:43], s14 offen{nt("a")} lds')
        p(f's_add_u32 m0, s12, {8*BS*n+VB-KB-BS}')
        p('s_nop 0')
        p(f'buffer_load_dwordx4 v2, s[44:47], s14 offen{nt("a")} lds')
    p(f's_cmp_lg_u32 s{sW}, 7')
    p(f's_cbranch_scc1 L_nohalo_{k}')
    p(f's_mov_b32 m0, {KB}')
    p('s_nop 0')
    p('buffer_load_dwordx4 v2, s[40:43], s13 offen lds')
    p.label(f'L_nohalo_{k}')
    stamp(p, 21)
    p('s_lshl_b32 s8, s8, 8')
    p(f's_lshr_b32 s9, s{sW}, 1')
    p(f's_mul_i32 s10, s9, {8*BS}')
    p('s_lshl_b32 s9, s9, 6')
    p('s_add_u32 s8, s8, s9')
    p('s_lshl_b32 s7, s7, 6')
    p(f's_and_b32 s9, s{sW}, 1')
    p('s_lshl_b32 s11, s9, 6')
    p('s_add_u32 s10, s10, s11')
    p(f's_add_u32 s10, s10, {KB}')
    p('s_lshl_b32 s9, s9, 5')
    p('s_add_u32 s7, s7, s9')
    p(f'v_mul_u32_u24 v3, {BS}, v8')
    p('v_lshl_add_u32 v3, v7, 3, v3')
    p('v_add_u32 v3, s10, v3')
    p('v_lshlrev_b32 v9, 3, v8')
    p('v_add_u32 v9, s8, v9')
    p('v_lshlrev_b32 v7, 2, v7')
    p('v_add_u32 v7, s7, v7')
    p('v_lshlrev_b32 v5, 3, v7')
    srd(p, 48, P_SH, 4608)
    p('buffer_load_dwordx4 v[48:51], v5, s[48:51], 0 offen')
    p('buffer_load_dwordx4 v[52:55], v5, s[48:51], 0 offen offset:16')
    p('v_lshlrev_b32 v6, 12, v7')
    p('v_sub_u32 v8, 2040, v9')
    p('v_lshl_add_u32 v6, v8, 1, v6')

def nonce_load(p):
    srd(p, 48, P_DBG, 256)
    p('v_mov_b32 v241, 0')
    p('buffer_load_dwordx2 v[242:243], v241, s[48:51], 0 offen sc1')

def a1_compute(p, sc):
    K, Vv, Sx, P, KS, OUT = 10, 32, 48, 56, 96, 128
    srd(p, 52, P_WS, SZ_A, WS_XR)
    p('s_mov_b32 s10, 0x05040100')
    p('s_mov_b32 s11, 0x07060302')
    p('s_movk_i32 s12, 0x1000')
    p('s_movk_i32 s13, 0x2000')
    p('s_movk_i32 s14, 0x3000')
    if not ADELAY: a2_addr(p)
    stamp(p, 22)
    p('s_waitcnt vmcnt(0)')
    stamp(p, 23)
    p('s_barrier')
    stamp(p, 1)
    for i in range(11):
        p(f'ds_read_b64 {vr(K+2*i,2)}, v3 offset:{(5+i)*128 if i < 3 else BS+128*(i-3)}')
    for j in range(4):
        p(f'ds_read_b64 {vr(Vv+2*j,2)}, v3 offset:{VB-KB+128*j}')
    p('s_add_u32 m0, s63, 32')
    p('s_mov_b64 exec, 15')
    p('ds_write_b64 v227, v[228:229]')
    p(f'ds_write_b64 v227, v[228:229] offset:{H1-4}')
    p('s_mov_b64 exec, -1')
    for i in range(4):
        p(f'buffer_load_dwordx4 v223, s[56:59], s60 offen offset:{1024*i}{nt("a")} lds')
    nonce_load(p)
    for i in range(1, 11):
        if i in (1, 4, 7): p(f's_waitcnt lgkmcnt({max(0, 17-1-(i+2 if i < 7 else 10))})')
        for c in range(4):
            p(f'v_perm_b32 v{P+10*c+i-1}, v{K+2*(i-1)+(c>>1)}, v{K+2*i+(c>>1)}, s{10+(c&1)}')
    for j in range(4, 8):
        p(f'ds_read_b64 {vr(Vv+2*j,2)}, v3 offset:{VB-KB+128*j}')
    for j in range(8):
        for c in range(4):
            p(f'v_dot2_f32_bf16 v{KS+8*c+j}, v{P+10*c+j}, v{Sx+2*c+1}, 0')
    for j in range(8):
        for c in range(4):
            p(f'v_dot2_f32_bf16 v{KS+8*c+j}, v{P+10*c+j+2}, v{Sx+2*c}, v{KS+8*c+j}')
    p('s_waitcnt lgkmcnt(0)')
    for c in range(4):
        for j in range(8):
            if c & 1: p(f'v_and_b32 v{P+8*c+j}, 0xffff0000, v{Vv+2*j+(c>>1)}')
            else: p(f'v_lshlrev_b32 v{P+8*c+j}, 16, v{Vv+2*j+(c>>1)}')
        for j in range(0, 8, 2):
            p(f'v_pk_mul_f32 {vr(KS+8*c+j,2)}, {vr(KS+8*c+j,2)}, {vr(P+8*c+j,2)}')
        for q in range(4):
            p(f'v_cvt_pk_bf16_f32 v{OUT+4*c+q}, v{KS+8*c+7-2*q}, v{KS+8*c+6-2*q}')
        so = '0' if c == 0 else f's{11+c}'
        p(f'buffer_store_dwordx4 {vr(OUT+4*c,4)}, v6, s[52:55], {so} offen{sc}')

HD, HP, HT = 144, 160, 164
QR, XS = 180, 196
vHa, vXa, vEa, vZw, vZr, vQo, vOo, vLb, vXw = 212, 216, 217, 218, 219, 220, 221, 222, 226

def a2_addr(p):
    srd(p, 56, P_H, SZ_A)
    p('s_lshl_b32 s15, s6, 3')
    p(f's_add_u32 s15, s15, s{sW}')
    p('s_lshl_b32 s60, s15, 12')
    p('v_lshlrev_b32 v223, 4, v1')
    p('v_add_u32 v224, s60, v223')
    p('s_lshr_b32 s61, s15, 1')
    p('s_lshl_b32 s61, s61, 2')
    p(f's_load_dword s62, s[{P_D}:{P_D+1}], s61')
    p(f's_mul_i32 s63, s{sW}, {HS}')
    p(f's_mul_i32 s67, s{sW}, {XS_}')
    p(f's_add_u32 s67, s67, {XB}')
    p(f'v_add_u32 v{vLb}, s63, v223')
    p(f'v_add_u32 v{vXw}, s67, v223')
    p('v_lshlrev_b32 v227, 3, v1')
    p('v_add_u32 v225, s67, v227')
    p('v_add_u32 v227, s63, v227')
    p('v_and_b32 v228, 15, v1')
    p('v_lshrrev_b32 v229, 4, v1')
    p('v_and_b32 v230, 1, v1')
    p('v_cmp_eq_u32 vcc, 1, v230')
    p(f'v_mov_b32 v231, {H1}')
    p('v_lshlrev_b32 v230, 5, v228')
    p('v_cndmask_b32 v231, v231, 2, vcc')
    p('v_lshl_add_u32 v231, v228, 1, v231')
    p('v_lshl_add_u32 v231, v229, 4, v231')
    p(f'v_add_u32 v{vHa}, s63, v231')
    for i in range(1, 4):
        p(f'v_add_u32 v{vHa+i}, {1024*i}, v{vHa}')
    p('v_sub_u32 v231, 480, v230')
    p('v_lshl_add_u32 v231, v229, 4, v231')
    p(f'v_add_u32 v{vXa}, s67, v231')
    p('v_sub_u32 v231, 504, v230')
    p('v_lshlrev_b32 v232, 3, v229')
    p('v_sub_u32 v231, v231, v232')
    p(f'v_add_u32 v{vEa}, s67, v231')
    p('v_add_u32 v231, v230, v232')
    p(f'v_add_u32 v{vZw}, s63, v231')
    p('v_bfe_u32 v231, v1, 2, 2')
    p(f'v_mul_u32_u24 v231, {HS}, v231')
    p('v_lshl_add_u32 v231, v229, 5, v231')
    p('v_and_b32 v232, 3, v1')
    p('v_lshl_add_u32 v231, v232, 3, v231')
    p(f's_lshl_b32 s64, s{sW}, 9')
    p(f'v_add_u32 v{vZr}, s64, v231')
    p(f's_lshl_b32 s64, s{sW}, 8')
    p('v_add_u32 v231, s64, v1')
    p('s_lshl_b32 s65, s6, 4')
    p(f'v_mul_u32_u24 v{vQo}, 1152, v231')
    p(f'v_add_u32 v{vQo}, s65, v{vQo}')
    p(f'v_mul_u32_u24 v{vOo}, 2304, v231')
    p(f'v_add_u32 v{vOo}, s65, v{vOo}')
    p('s_add_u32 s68, s6, 144')
    p('s_and_b32 s9, s68, 0xf8')
    p(f's_mul_i32 s68, s68, {FLS}')
    p(f's_mul_i32 s9, s9, {FLS}')
    p(f'v_mul_u32_u24 v233, {FLS}, v1')
    p('v_add_u32 v233, s9, v233')
    p('s_mov_b32 s66, 0xff')
    p('v_mov_b32 v228, 0')
    p('v_mov_b32 v229, 0')

def a2_hstage(p):
    p('s_waitcnt vmcnt(4)')
    for i in range(4):
        p(f'ds_read_b128 {vr(HD+4*i,4)}, v{vLb} offset:{32+1024*i}')
        p(f'ds_read_b32 v{HP+i}, v{vLb} offset:{28+1024*i}')
    for i in range(4):
        p(f's_waitcnt lgkmcnt({6-2*i if i < 3 else 0})' if i == 0 else f's_waitcnt lgkmcnt({6-2*i+i})')
        p(f'v_alignbit_b32 v{HT+4*i}, v{HD+4*i}, v{HP+i}, 16')
        for d in range(1, 4):
            p(f'v_alignbit_b32 v{HT+4*i+d}, v{HD+4*i+d}, v{HD+4*i+d-1}, 16')
        p(f'ds_write_b128 v{vLb}, {vr(HT+4*i,4)} offset:{H1+28+1024*i}')

def a2_qloads(p):
    srd(p, 40, P_Q, SZ_A)
    for j in range(4):
        p(f's_mov_b32 s65, {64*1152*j}')
        p(f'buffer_load_dwordx4 {vr(QR+4*j,4)}, v{vQo}, s[40:43], s65 offen')
    return 4

def a2_main(p, k, sc, qlater):
    srd(p, 52, P_WS, SZ_A, WS_XR)
    for i in range(4):
        p(f'buffer_load_dwordx4 {vr(XS+4*i,4)}, v224, s[52:55], 0 offen offset:{1024*i}{sc}')
    p('s_mov_b32 exec_hi, 0x0fffffff')
    p('ds_write_b64 v225, v[228:229] offset:4096')
    p('s_mov_b32 exec_hi, -1')
    FA = [10, 74]; FB = [42, 106]; ACC = 138
    def a_reads(st, b):
        r = []
        for a in range(8):
            o = 128 * (a & 1) + 16 * b
            r.append(f'ds_read2_b32 {vr(FA[st]+4*a,2)}, v{vHa+(a>>1)} offset0:{o} offset1:{o+1}')
            r.append(f'ds_read2_b32 {vr(FA[st]+4*a+2,2)}, v{vHa+(a>>1)} offset0:{o+2} offset1:{o+3}')
        return r
    def b_reads(st, b):
        return [f'ds_read_b128 {vr(FB[st]+4*e,4)}, v{vXa} offset:{64*(56-8*e+b)}' for e in range(8)]
    def reads(st, b):
        A, B = a_reads(st, b), b_reads(st, b)
        out = []
        for i in range(8):
            out += [B[i], A[2*i], A[2*i+1]]
        return out
    def mfmas(st):
        out = []
        for s_ in range(8):
            for a in range(8):
                for e in range(8):
                    if a + e <= 7 and max(a, e) == s_:
                        n = a + e
                        out.append(f'v_mfma_f32_16x16x32_bf16 {vr(ACC+4*n,4)}, {vr(FA[st]+4*a,4)}, {vr(FB[st]+4*e,4)}, {vr(ACC+4*n,4)}')
        return out
    for i in range(32):
        p(f'v_mov_b32 v{ACC+i}, 0')
    p('s_waitcnt lgkmcnt(0)')
    for x in a_reads(0, 0): p(x)
    for i in range(4):
        p(f's_waitcnt vmcnt({3-i})')
        p(f'ds_write_b128 v{vXw}, {vr(XS+4*i,4)} offset:{1024*i}')
    p('s_waitcnt lgkmcnt(0)')
    stamp(p, 13)
    for x in b_reads(0, 0): p(x)
    p('s_mov_b32 s64, 0')
    p.label(f'L_a2loop_{k}')
    p('s_waitcnt lgkmcnt(0)')
    for x in interleave(mfmas(0), reads(1, 1), lead=1, frac=FR): p(x)
    p('s_waitcnt lgkmcnt(0)')
    for x in interleave(mfmas(1), reads(0, 2), lead=1, frac=FR): p(x)
    p('s_cmp_lg_u32 s64, 0')
    p(f's_cbranch_scc1 L_a2nq_{k}')
    a2_qloads(p)
    p.label(f'L_a2nq_{k}')
    for i in range(4):
        p(f'v_add_u32 v{vHa+i}, 128, v{vHa+i}')
    p(f'v_add_u32 v{vXa}, 128, v{vXa}')
    p('s_add_u32 s64, s64, 1')
    p('s_cmp_lt_u32 s64, 4')
    p(f's_cbranch_scc1 L_a2loop_{k}')
    KV = 10
    p('s_waitcnt lgkmcnt(0)')
    stamp(p, 14)
    for n in range(8):
        p(f'ds_read_b64 {vr(KV+2*n,2)}, v{vEa} offset:{512*(7-n)}')
    p('s_and_b32 s61, s15, 1')
    p('s_lshl_b32 s61, s61, 4')
    p('s_lshr_b32 s62, s62, s61')
    p('s_lshl_b32 s62, s62, 16')
    T = 42
    for n in range(8):
        p(f's_waitcnt lgkmcnt({7-n})' if n < 8 else '')
        d0, d1 = KV + 2*n, KV + 2*n + 1
        t = T + 4*n
        p(f'v_and_b32 v{t}, 0xffff0000, v{d1}')
        p(f'v_lshlrev_b32 v{t+1}, 16, v{d1}')
        p(f'v_and_b32 v{t+2}, 0xffff0000, v{d0}')
        p(f'v_lshlrev_b32 v{t+3}, 16, v{d0}')
        for rr in range(4):
            p(f'v_fmac_f32 v{ACC+4*n+rr}, s62, v{t+rr}')
        p(f'v_cvt_pk_bf16_f32 v{t}, v{ACC+4*n}, v{ACC+4*n+1}')
        p(f'v_cvt_pk_bf16_f32 v{t+1}, v{ACC+4*n+2}, v{ACC+4*n+3}')
    for n in range(8):
        p(f'ds_write_b64 v{vZw}, {vr(T+4*n,2)} offset:{512*n}')
    srd(p, 44, P_OUT, SZ_OUT)
    p('s_waitcnt lgkmcnt(0)')
    stamp(p, 15)
    p('s_barrier')
    stamp(p, 16)
    Z = 74
    for j in range(4):
        p(f'ds_read_b64_tr_b16 {vr(Z+4*j,2)}, v{vZr} offset:{128*j}')
        p(f'ds_read_b64_tr_b16 {vr(Z+4*j+2,2)}, v{vZr} offset:{4*HS+128*j}')
    p('s_waitcnt vmcnt(0)')
    stamp(p, 17)
    U = 106
    for j in range(4):
        p(f's_waitcnt lgkmcnt({6-2*j})')
        for d in range(4):
            z, q = Z + 4*j + d, QR + 4*j + d
            p(f'v_lshlrev_b32 v{U}, 16, v{z}')
            p(f'v_lshlrev_b32 v{U+1}, 16, v{q}')
            p(f'v_and_b32 v{U+2}, 0xffff0000, v{z}')
            p(f'v_and_b32 v{U+3}, 0xffff0000, v{q}')
            p(f'v_mul_f32 v{U}, v{U}, v{U+1}')
            p(f'v_mul_f32 v{U+2}, v{U+2}, v{U+3}')
            p(f'v_cvt_pk_bf16_f32 v{z}, v{U}, v{U+2}')
            U = 106 + (U - 106 + 4) % 16
        p(f's_mov_b32 s64, {64*2304*j}')
        p(f'buffer_store_dwordx4 {vr(Z+4*j,4)}, v{vOo}, s[44:47], s64 offen{OUTA}')

WPS = 1056
WOFF = 16384
STG = WOFF + 32 * WPS
WOB = 0
KQS = 352
KQB = 73728
VTB = KQB + 128 * KQS
VS = 136
VP = 73 * VS
SCR = 152096
assert VTB + 2 * VP <= SCR
RED = KQB
assert SCR + 1024 <= LDS_BYTES and 3 * STG <= SCR
ACCB = 64
SET = [(128, 144), (160, 176)]
vD = [2, 3, 4, 4, 4, 4]
vXb0, vXb1, vWb = 8, 9, 10
vXa0, vXa1, vWa = 11, 12, 13
vKQ, vVT, vWo = 14, 15, 16
vQm = 17
vBias, vBias0 = 24, 28
vTmp = 33
vKf, vV0, vV1, vOw = 5, 6, 7, 21
vOs = [21, 22, 23]
vWoL = 32
vG = 56
vVTl = 57
vKQ1, vKz = 54, 55
sB = [84, 85, 86, 87, 88, 89]
sO = [74, 75, 76, 77, 78, 79]
sDst, sStage, sNext, sChunk = 80, 81, 82, 83
SRDx, SRDw = 40, 44

def b_decode(p):
    p('s_and_b32 s6, s4, 1')
    p('s_mul_i32 s6, s6, 9')
    p('s_lshr_b32 s8, s5, 1')
    p('s_add_u32 s6, s6, s8')
    p('s_and_b32 s7, s4, 6')
    p('s_and_b32 s8, s5, 1')
    p('s_add_u32 s7, s7, s8')
    p('s_mul_i32 s8, s6, 114')

def b1_dma_addr(p):
    t = vTmp
    p(f's_and_b32 s9, s{sW}, 3')
    p('s_lshl_b32 s9, s9, 5')
    p(f's_lshr_b32 s10, s{sW}, 2')
    p('s_add_u32 s9, s9, s10')
    p('s_add_u32 s9, s9, s8')
    p(f'v_lshrrev_b32 v{t}, 3, v1')
    p(f'v_lshl_add_u32 v{t+1}, v{t}, 1, s9')
    p(f'v_mul_u32_u24 v{t+1}, 1152, v{t+1}')
    p(f'v_lshrrev_b32 v{t+2}, 4, v1')
    p(f'v_and_b32 v{t+3}, 7, v1')
    p(f'v_xor_b32 v{t+2}, v{t+2}, v{t+3}')
    p(f'v_lshl_add_u32 v2, v{t+2}, 4, v{t+1}')
    p(f'v_xor_b32 v3, 64, v2')
    p(f'v_add_u32 v3, {16*1152}, v3')
    p('v_cmp_le_u32 vcc, 27, v1')
    p(f'v_subrev_u32 v{t}, 27, v1')
    p(f'v_mov_b32 v{t+1}, {4*3456}')
    p(f'v_cndmask_b32 v{t}, v1, v{t}, vcc')
    p(f'v_cndmask_b32 v{t+1}, 0, v{t+1}, vcc')
    p(f'v_lshl_add_u32 v{t+1}, v{t}, 4, v{t+1}')
    p(f'v_cmp_gt_u32 vcc, 9, v{t}')
    p(f'v_cmp_le_u32 s[10:11], 18, v{t}')
    p(f'v_mov_b32 v{t+2}, -144')
    p(f'v_mov_b32 v{t+3}, 1152')
    p(f'v_cndmask_b32 v{t+2}, v{t+2}, v{t+3}, vcc')
    p(f'v_mov_b32 v{t+3}, 2016')
    p('v_cmp_le_u32 vcc, 54, v1')
    p(f'v_cndmask_b32 v{t+2}, v{t+2}, v{t+3}, s[10:11]')
    p('s_mul_i32 s10, s7, 144')
    p(f'v_mov_b32 v{t+3}, {OOB}')
    p(f'v_add3_u32 v4, v{t+1}, v{t+2}, s10')
    p(f'v_cndmask_b32 v4, v4, v{t+3}, vcc')
    p(f's_lshl_b32 s{sB[0]}, s{sW}, 11')
    p(f's_add_u32 s{sB[1]}, s{sB[0]}, 1024')
    p(f's_mul_i32 s{sB[2]}, s{sW}, {4*WPS}')
    p(f's_add_u32 s{sB[2]}, s{sB[2]}, {WOFF}')
    for n in range(1, 4): p(f's_add_u32 s{sB[2+n]}, s{sB[2]}, {WPS*n}')
    p(f's_mov_b32 s{sO[0]}, 0')
    p(f's_mov_b32 s{sO[1]}, 0')
    p(f's_mul_i32 s{sO[2]}, s{sW}, {8*3456}')
    for n in range(1, 4): p(f's_add_u32 s{sO[2+n]}, s{sO[2]}, {3456*n}')
    p(f's_mov_b32 s{sDst}, 0')

def dma_slot(i):
    srd_ = SRDx if i < 2 else SRDw
    return [f's_add_u32 m0, s{sB[i]}, s{sDst}', f'buffer_load_dwordx4 v{vD[i]}, s[{srd_}:{srd_+3}], s{sO[i]} offen lds']

def dma_advance(lo=0, hi=6):
    return [f's_add_u32 s{sO[i]}, s{sO[i]}, {128 if i < 2 else 221184}' for i in range(lo, hi)]

def b1_consts():
    p = Prog()
    t = vTmp
    c, g = t, t + 1
    p(f'v_and_b32 v{c}, 15, v1')
    p(f'v_lshrrev_b32 v{g}, 4, v1')
    p(f'v_mov_b32 v{vG}, v{g}')
    p(f's_and_b32 s14, s{sW}, 1')
    p(f's_lshr_b32 s15, s{sW}, 1')
    p(f'v_lshrrev_b32 v{t+2}, 1, v{c}')
    p(f'v_xor_b32 v{t+2}, v{t+2}, v{g}')
    p(f'v_lshlrev_b32 v{t+2}, 4, v{t+2}')
    p(f'v_lshl_add_u32 v{t+2}, v{c}, 7, v{t+2}')
    p('s_lshl_b32 s9, s14, 13')
    p(f'v_add_u32 v{vXb0}, s9, v{t+2}')
    p(f'v_xor_b32 v{vXb1}, 64, v{vXb0}')
    p(f'v_lshrrev_b32 v{t+2}, 2, v1')
    p(f'v_mul_u32_u24 v{t+2}, {WPS}, v{t+2}')
    p(f'v_and_b32 v{t+3}, 3, v1')
    p(f'v_lshl_add_u32 v{t+2}, v{t+3}, 3, v{t+2}')
    p('s_lshl_b32 s9, s15, 2')
    p('s_mul_i32 s10, s15, 3')
    p('s_add_u32 s10, s10, 2')
    p('s_cmp_lt_u32 s15, 2')
    p('s_cselect_b32 s70, s9, s10')
    p('s_lshl_b32 s9, s70, 5')
    p(f's_add_u32 s10, s9, {WOFF}')
    p(f'v_add_u32 v{vWb}, s10, v{t+2}')
    p(f'v_mov_b32 v{vXa1}, v{vXb1}')
    p(f'v_mov_b32 v{vWa}, v{vWb}')
    p('; SPLIT')
    p(f's_mul_i32 s10, s14, {64*KQS}')
    p(f's_add_u32 s10, s10, {KQB}')
    p('s_add_u32 s9, s9, s10')
    p(f'v_bfe_u32 v{t+4}, v1, 2, 1')
    p(f'v_and_b32 v{t+2}, 31, v1')
    p(f'v_mul_u32_u24 v{t+2}, {KQS}, v{t+2}')
    p(f'v_add_u32 v{t+2}, s9, v{t+2}')
    p('s_cmp_eq_u32 s15, 2')
    p('s_cselect_b32 s11, 1, 0')
    p('s_cmp_lg_u32 s15, 0')
    p('s_cselect_b32 s12, 1, 0')
    p('s_cmp_lg_u32 s15, 0')
    p('s_cselect_b32 s13, 2, 1')
    p('v_cmp_gt_u32 vcc, 32, v1')
    p(f'v_xor_b32 v{t+3}, s13, v{t+4}')
    p(f'v_xor_b32 v{t+5}, s11, v{t+4}')
    p(f'v_cndmask_b32 v{t+5}, v{t+3}, v{t+5}, vcc')
    p(f'v_lshl_add_u32 v{vKQ}, v{t+5}, 4, v{t+2}')
    p(f'v_xor_b32 v{t+5}, s12, v{t+4}')
    p(f'v_cndmask_b32 v{t+5}, v{t+3}, v{t+5}, vcc')
    p(f'v_lshl_add_u32 v{vKQ1}, v{t+5}, 4, v{t+2}')
    p('s_lshl_b32 s9, s15, 5')
    p('s_add_u32 s9, s9, s10')
    p(f'v_mul_u32_u24 v{t+2}, {KQS}, v{c}')
    p(f'v_xor_b32 v{t+3}, v{g}, v{t+4}')
    p(f'v_lshl_add_u32 v{t+3}, v{t+3}, 4, v{t+2}')
    p(f'v_add_u32 v{vKf}, s9, v{t+3}')
    p(f'v_and_b32 v{t+2}, 127, v0')
    p(f'v_mul_u32_u24 v{t+2}, {KQS}, v{t+2}')
    p(f'v_xor_b32 v{t+3}, 9, v{t+4}')
    p(f'v_lshl_add_u32 v{t+2}, v{t+3}, 4, v{t+2}')
    p(f'v_add_u32 v{vKz}, {KQB}, v{t+2}')
    p(f'v_mul_u32_u24 v{t+2}, {VS}, v{c}')
    p(f'v_lshl_add_u32 v{t+2}, v{g}, 3, v{t+2}')
    p(f's_mul_i32 s9, s14, {VP}')
    p(f's_add_u32 s9, s9, {VTB}')
    p(f's_mul_i32 s10, s70, {16*VS}')
    p('s_add_u32 s10, s10, s9')
    p(f's_sub_u32 s10, s10, {9*16*VS}')
    p(f'v_add_u32 v{vVT}, s10, v{t+2}')
    p(f'v_cmp_gt_u32 vcc, 8, v{c}')
    p(f'v_add_u32 v{vVTl}, {2*16*VS}, v{vVT}')
    p(f'v_lshlrev_b32 v{t+3}, 3, v1')
    p(f'v_add_u32 v{t+3}, {SCR}, v{t+3}')
    p(f'v_cndmask_b32 v{vVTl}, v{t+3}, v{vVTl}, vcc')
    p(f's_mul_i32 s10, s15, {18*VS}')
    p('s_add_u32 s10, s10, s9')
    p(f'v_add_u32 v{vV0}, s10, v{t+2}')
    p(f'v_and_b32 v{t+3}, 2, v1')
    p(f'v_cmp_eq_u32 vcc, 0, v{t+3}')
    p(f'v_and_b32 v{t+3}, 1, v1')
    p(f'v_mul_u32_u24 v{t+3}, {VS}, v{t+3}')
    p(f's_add_u32 s10, s10, {16*VS}')
    p(f'v_add_u32 v{t+3}, s10, v{t+3}')
    p(f's_add_u32 s9, s9, {72*VS}')
    p(f'v_mov_b32 v{t+4}, s9')
    p(f'v_cndmask_b32 v{t+3}, v{t+4}, v{t+3}, vcc')
    p(f'v_lshl_add_u32 v{vV1}, v{g}, 3, v{t+3}')
    p('s_mul_i32 s9, s6, 57')
    p('s_cmp_eq_u32 s6, 0')
    p('s_cselect_b32 s12, 0, 7')
    p('s_mul_i32 s10, s14, 18432')
    p('s_lshl_b32 s11, s15, 12')
    p('s_add_u32 s11, s11, s10')
    p('s_lshl_b32 s13, s7, 8')
    p('s_add_u32 s11, s11, s13')
    p(f'v_and_b32 v{t+3}, 31, v1')
    p(f'v_cmp_gt_u32 vcc, s12, v{t+3}')
    p(f'v_add_u32 v{t+3}, s9, v{t+3}')
    p(f'v_lshrrev_b32 v{t+4}, 4, v{t+3}')
    p(f'v_mul_u32_u24 v{t+4}, 36864, v{t+4}')
    p(f'v_and_b32 v{t+3}, 15, v{t+3}')
    p(f'v_lshl_add_u32 v{t+4}, v{t+3}, 4, v{t+4}')
    p(f'v_lshrrev_b32 v{t+3}, 5, v1')
    p(f'v_lshl_add_u32 v{t+4}, v{t+3}, 11, v{t+4}')
    p(f'v_add_u32 v{vOs[0]}, s11, v{t+4}')
    p(f'v_add_u32 v{vOs[1]}, {2*36864}, v{vOs[0]}')
    p(f'v_mov_b32 v{t+5}, {OOB}')
    p(f'v_cndmask_b32 v{vOs[0]}, v{vOs[0]}, v{t+5}, vcc')
    p('v_cmp_gt_u32 vcc, s12, v1')
    p(f'v_add_u32 v{t+3}, s9, v1')
    p(f'v_lshrrev_b32 v{t+4}, 4, v{t+3}')
    p(f'v_mul_u32_u24 v{t+4}, 36864, v{t+4}')
    p(f'v_and_b32 v{t+3}, 15, v{t+3}')
    p(f'v_lshl_add_u32 v{t+4}, v{t+3}, 4, v{t+4}')
    p('s_add_u32 s10, s10, s13')
    p('s_lshl_b32 s11, s15, 2')
    p('s_add_u32 s10, s10, s11')
    p(f's_add_u32 s10, s10, {64*256}')
    p(f'v_add_u32 v{vOs[2]}, s10, v{t+4}')
    p(f'v_cndmask_b32 v{vOs[2]}, v{vOs[2]}, v{t+5}, vcc')
    p(f'v_lshlrev_b32 v{t+2}, 2, v{g}')
    p(f'v_subrev_u32 v{t+3}, s15, v{t+2}')
    for i in range(4):
        p(f'v_add_u32 v{t+4+i}, {i}, v{t+3}')
    for i in range(4):
        p(f'v_cmp_gt_u32 s[{10+2*(i&1)}:{11+2*(i&1)}], 9, v{t+4+i}')
        if i & 1:
            p('s_nop 0')
            p(f'v_cndmask_b32 v{vQm+i-1}, 0, -1, s[10:11]')
            p(f'v_cndmask_b32 v{vQm+i}, 0, -1, s[12:13]')
    p(f'v_sub_u32 v{t+2}, v{c}, v{t+2}')
    p(f'v_cmp_ge_i32 s[72:73], -6, v{t+2}')
    p(f'v_cmp_lt_i32 s[62:63], -6, v{t+2}')
    p(f'v_mov_b32 v{t+5}, 0xf149f2ca')
    for rr in range(4):
        p(f'v_subrev_u32 v{t+3}, {rr}, v{t+2}')
        p(f'v_and_b32 v{t+4}, 8, v{t+3}')
        p(f'v_cmp_ge_u32 s[10:11], 7, v{t+3}')
        p(f'v_cmp_eq_u32 vcc, 0, v{t+4}')
        p('s_nop 0')
        p(f'v_cndmask_b32 v{vBias0+rr}, v{t+5}, 0, s[10:11]')
        p(f'v_cndmask_b32 v{vBias+rr}, v{t+5}, 0, vcc')
    p('s_cmp_ge_u32 s5, 9')
    p('s_cselect_b32 s9, 1, 0')
    p('s_lshl_b32 s66, s4, 1')
    p('s_add_u32 s66, s66, s9')
    p('s_mul_i32 s9, s9, 9')
    p('s_sub_u32 s67, s5, s9')
    p(f'v_lshrrev_b32 v{t}, 3, v1')
    p(f'v_mul_u32_u24 v{t}, 1152, v{t}')
    p(f'v_bfe_u32 v{t+1}, v1, 4, 1')
    p(f'v_lshlrev_b32 v{t+1}, 1, v{t+1}')
    p(f'v_and_b32 v{t+2}, 7, v1')
    p(f'v_xor_b32 v{t+1}, v{t+1}, v{t+2}')
    p('s_lshl_b32 s9, s14, 2')
    p(f'v_xor_b32 v{t+1}, s9, v{t+1}')
    p('s_lshl_b32 s9, s67, 7')
    p(f'v_add_u32 v{t}, s9, v{t}')
    p(f'v_lshl_add_u32 v{vWo}, v{t+1}, 4, v{t}')
    p(f'v_lshrrev_b32 v{t}, 4, v1')
    p(f'v_mul_u32_u24 v{t}, {16*1152}, v{t}')
    p(f'v_add_u32 v{t}, {16*1152}, v{t}')
    p(f'v_add_u32 v{vWoL}, v{vWo}, v{t}')
    for i in list(range(192, 210)) + [218, 219]: p(f'v_mov_b32 v{i}, 0')
    p('s_mov_b32 s90, 0x3eae1a93')
    p('s_mov_b32 s91, 0x3eae1a93')
    for i in range(3): p(f'v_cmp_eq_u32 s[{16+2*i}:{17+2*i}], {i+1}, v{vG}')
    p('s_lshl_b32 s22, s6, 3')
    p('s_add_u32 s22, s22, s7')
    p(f's_mul_i32 s22, s22, {FLS}')
    return glue_scc(p.lines)

def b1_variant(p, k, var):
    types = [['kq']*4, ['kq', 'v', 'v'], ['v']*3][var]
    nT = len(types)
    def reads(st, ks, xa):
        X, W = SET[st]
        r = [f'ds_read_b128 {vr(X+4*t,4)}, v{xa} offset:{2048*t}' for t in range(4)]
        for j in range(nT):
            for hf in range(2):
                r.append(f'ds_read_b64_tr_b16 {vr(W+4*j+2*hf,2)}, v{vWa} offset:{16*WPS*ks+432*hf+32*j}')
        return r
    def mfmas(st, zero=False):
        X, W = SET[st]
        out = []
        for j in range(nT):
            for t in range(4):
                a = vr(ACCB+16*j+4*t, 4)
                c_ = '0' if zero else a
                if types[j] == 'kq': out.append(f'v_mfma_f32_16x16x32_bf16 {a}, {vr(W+4*j,4)}, {vr(X+4*t,4)}, {c_}')
                else: out.append(f'v_mfma_f32_16x16x32_bf16 {a}, {vr(X+4*t,4)}, {vr(W+4*j,4)}, {c_}')
        return out
    L = f'{k}_{var}'
    X_ = os.environ.get('X', '')
    global dma_slot
    ds0 = dma_slot
    if 'd' in X_: dma_slot = lambda i: []
    if 'r' in X_: reads = lambda st, ks, xa: []
    if 'm' in X_: mfmas = lambda st: ['s_nop 0'] * 4
    for x in reads(0, 0, vXb0): p(x)
    mz = mfmas(0, True)
    d6 = sum((dma_slot(i) for i in range(6)), [])
    if C1LATE: d6 = d6 + ['\n'.join(dma_advance() + [f's_add_u32 s{sDst}, s{sDst}, {STG}'])] + d6
    sec = interleave(reads(1, 1, vXa1), d6) if C1LATE != 2 else reads(1, 1, vXa1) + d6
    sec += [f's_mov_b32 s{sDst}, s{sStage}'] + dma_advance()
    upd0 = [f'v_add_u32 v{vXa0}, s{sNext}, v{vXb0}', f'v_add_u32 v{vXa1}, s{sNext}, v{vXb1}', f's_mov_b32 s{sStage}, s{sNext}', f's_add_u32 s{sChunk}, s{sChunk}, 1']
    if C1LATE == 1:
        for x in d6[:4]: p(x)
        assert sec[0] == d6[0]
        sec = [x for i, x in enumerate(sec) if not (x in d6[:4] and i < 12)]
    p('s_waitcnt lgkmcnt(0)')
    for x in interleave(mz, sec + upd0, lead=1): p(x)
    p(f's_branch L_b1wait_{L}')
    if PFB and var < 2 and PF2POS == 'loop':
        p(f's_cmp_lt_u32 s{sW}, {PFB-1}')
        p(f's_cbranch_scc1 L_b1loop_{L}')
        for x in pf_loads(246, 247, 60, 61, 248): p(x)
    p.label(f'L_b1loop_{L}')
    if PRIO == 2: p(f's_setprio {1 if var == 0 else 0}')
    if PRIO == 3: p(f's_setprio {0 if var == 0 else 1}')
    p('s_waitcnt lgkmcnt(0)')
    sec = interleave(reads(1, 1, vXa1), dma_slot(3) + dma_slot(4) + dma_slot(5))
    mf = mfmas(0)
    nh = len(mf) - 4
    call = f's_cmp_ge_u32 s23, {NSIDE}\ns_cbranch_scc1 L_nos_{L}\ns_call_b64 s[24:25], L_side_{k}\nL_nos_{L}:'
    body = interleave(mf[:nh], sec, lead=1, frac=FR2)

    for x in body: p(x)
    p(f's_cmp_ge_u32 s{sChunk}, 6')
    p(f's_cbranch_scc1 L_b1sp_{L}')
    upd = [f's_mov_b32 s{sDst}, s{sStage}'] + dma_advance()
    for x in interleave(mf[nh:nh+2], upd): p(x)
    p.label(f'L_b1mid_{L}')
    upd = [f'v_add_u32 v{vXa0}, s{sNext}, v{vXb0}', f'v_add_u32 v{vXa1}, s{sNext}, v{vXb1}', f's_mov_b32 s{sStage}, s{sNext}', f's_add_u32 s{sChunk}, s{sChunk}, 1']
    for x in interleave(mf[nh+2:], upd): p(x)
    p.label(f'L_b1wait_{L}')
    if NSIDE and var == 0: p(call)
    p('s_waitcnt vmcnt(6) lgkmcnt(0)')
    p('s_barrier')
    if PROF == 2:
        p('s_memtime s[96:97]')
        p(f's_add_u32 m0, s{sChunk}, 39')
        p('s_waitcnt lgkmcnt(0)')
        p('v_writelane_b32 v253, s96, m0')
    mf = mfmas(1)
    if PRIO == 2: p(f's_setprio {0 if var == 0 else 1}')
    if PRIO == 3: p(f's_setprio {1 if var == 0 else 0}')
    p(mf[0])
    p(f'v_add_u32 v{vWa}, s{sNext}, v{vWb}')
    sec = interleave(reads(0, 0, vXa0), dma_slot(0) + dma_slot(1) + dma_slot(2))
    sec.append(f's_add_u32 s{sNext}, s{sStage}, {STG}\ns_cmp_eq_u32 s{sNext}, {3*STG}\ns_cselect_b32 s{sNext}, 0, s{sNext}')
    body = interleave(mf[1:-1], sec, lead=1, frac=FR)

    for x in body: p(x)
    p(mf[-1])
    p(f's_branch L_b1loop_{L}')
    dma_slot = ds0
    p.label(f'L_b1sp8_{L}')
    for x in mfmas(0)[nh+2:]: p(x)
    p('s_waitcnt lgkmcnt(0)')
    p('s_barrier')
    stamp(p, 2)
    Z = SET[0][0]
    T = Z + 8
    mf = mfmas(1)
    def img(i):
        j, t = divmod(i, 4)
        a = ACCB + 16*j + 4*t
        d = T + 2*(i % 8)
        r = [f'v_cvt_pk_bf16_f32 v{d}, v{a}, v{a+1}', f'v_cvt_pk_bf16_f32 v{d+1}, v{a+2}, v{a+3}']
        if types[j] == 'kq':
            if t & 1: late.append([f'v_permlane16_swap_b32 v{d-2}, v{d}', f'v_permlane16_swap_b32 v{d-1}, v{d+1}',
                                   f'ds_write_b128 v{vKQ1 if j else vKQ}, {vr(d-2,4)} offset:{16*KQS*(t-1)+32*j}'])
        elif var == 2 and j == 2: r.append(f'ds_write_b64 v{vVTl}, {vr(d,2)} offset:{32*t}')
        else: r.append(f'ds_write_b64 v{vVT}, {vr(d,2)} offset:{16*VS*j+32*t}')
        if late and not (types[j] == 'kq' and t & 1): r += late.pop(0)
        return r
    late = []
    pre = []
    if var == 0:
        pre = [f'v_lshrrev_b32 v{Z}, 5, v1', f'v_mul_u32_u24 v{Z}, {VP}, v{Z}', f'v_and_b32 v{Z+1}, 31, v1', f'v_lshl_add_u32 v{Z}, v{Z+1}, 2, v{Z}',
               f'v_add_u32 v{Z}, {VTB+72*VS}, v{Z}', f'v_mov_b32 v{Z+1}, 0x3f803f80', f'ds_write_b32 v{Z}, v{Z+1}']
    if var == 2:
        pre = [f'v_mov_b32 v{Z+i}, 0' for i in range(4)] + [f'ds_write_b128 v{vKz}, {vr(Z,4)}']
    LAG = 3
    for i, x in enumerate(mf):
        p(x)
        if i < LAG:
            for y in pre[i::LAG] if False else pre[i*3:(i+1)*3 if i < LAG-1 else None]: p(y)
        else:
            for y in img(i - LAG): p(y)
    for i in range(len(mf) - LAG, len(mf)):
        for y in img(i): p(y)
    for z in late:
        for y in z: p(y)
    p(f's_branch L_attn_{k}')
    p.label(f'L_b1sp_{L}')
    for x in mfmas(0)[nh:nh+2]: p(x)
    p(f's_cmp_eq_u32 s{sChunk}, 7')
    p(f's_cbranch_scc1 L_b1sp7_{L}')
    p(f's_cmp_eq_u32 s{sChunk}, 8')
    p(f's_cbranch_scc1 L_b1sp8_{L}')
    for r in (SRDx, SRDw):
        p(f's_mov_b32 s{r}, s{P_WO}')
        p(f's_and_b32 s{r+1}, s{P_WO+1}, 0xffff')
        p(f's_mov_b32 s{r+2}, {SZ_WO}')
    for v in (2, 3, 4): p(f'v_mov_b32 v{v}, v{vWo}')
    nonce_load(p)
    p(f's_mov_b32 s{sDst}, {WOB}')
    p(f's_lshl_b32 s{sB[0]}, s{sW}, 10')
    p(f's_mul_i32 s{sO[0]}, s{sW}, {72*1152}')
    for i in range(1, 6):
        p(f's_add_u32 s{sB[i]}, s{sB[0]}, {8192*i}')
        p(f's_add_u32 s{sO[i]}, s{sO[0]}, {(18*(i>>1)+8*(i&1))*1152}')
    p(f's_branch L_b1mid_{L}')
    p.label(f'L_b1sp7_{L}')
    p(f'v_mov_b32 v4, v{vWoL}')
    for i in range(3):
        p(f's_add_u32 s{sB[i]}, s{sB[i]}, {8192*6}')
        p(f's_add_u32 s{sO[i]}, s{sO[i]}, {54*1152}' if i < 2 else f's_sub_u32 s{sO[i]}, s{sO[i]}, {18*1152}')
        p(f's_mov_b32 s{sB[3+i]}, {SCR-WOB}')
        p(f's_mov_b32 s{sO[3+i]}, {OOB}')
    p(f's_branch L_b1mid_{L}')

def attention(p, k, sc):
    KF, QF, V0, V1 = 64, 80, 208, 218
    S1, S0 = 116, 132
    p.label(f'L_attn_{k}')
    if PRIO >= 2: p('s_setprio 0')
    p('s_waitcnt lgkmcnt(0)')
    stamp(p, 3)
    p('s_barrier')
    stamp(p, 4)
    for t in range(4):
        p(f'ds_read_b128 {vr(QF+4*t,4)}, v{vKf} offset:{160+16*KQS*t}')
        p(f'ds_read_b128 {vr(KF+4*t,4)}, v{vKf} offset:{16*KQS*t}')
    for t in range(4):
        p(f'ds_read_b64 {vr(V0+2+2*t,2)}, v{vV0} offset:{32*t}')
        p(f'ds_read_b64 {vr(V1+2+2*t,2)}, v{vV1} offset:{32*t}')
    for t in range(4):
        p(f's_waitcnt lgkmcnt({15-2*t})')
        for i in range(4): p(f'v_and_b32 v{QF+4*t+i}, v{QF+4*t+i}, v{vQm+i}')
    for t in range(4):
        if t == 0: p('s_waitcnt lgkmcnt(8)')
        p(f'v_mfma_f32_16x16x32_bf16 {vr(S1+4*t,4)}, {vr(KF+4*t,4)}, {vr(QF+4*t,4)}, 0')
        if t: p(f'v_mfma_f32_16x16x32_bf16 {vr(S0+4*t,4)}, {vr(KF+4*t-4,4)}, {vr(QF+4*t,4)}, 0')
    stamp(p, 5)
    PF = 192
    M = lambda t: 148 + 2 * t
    M2 = lambda t: 149 + 2 * t
    BC = 'op_sel:[0,0] op_sel_hi:[1,0]'
    for rr in (0, 2): p(f'v_pk_fma_f32 {vr(S1+rr,2)}, {vr(S1+rr,2)}, s[90:91], {vr(vBias0+rr,2)}')
    p(f'v_max3_f32 v{M(0)}, v{S1}, v{S1+1}, v{S1+2}')
    p(f'v_max_f32 v{M(0)}, v{M(0)}, v{S1+3}')
    p('s_mov_b64 exec, s[62:63]')
    for t in range(1, 4):
        for rr in (0, 2): p(f'v_pk_fma_f32 {vr(S1+4*t+rr,2)}, {vr(S1+4*t+rr,2)}, s[90:91], {vr(vBias+rr,2)}')
    p('s_mov_b64 exec, s[72:73]')
    for t in range(1, 4):
        for rr in (0, 2): p(f'v_pk_fma_f32 {vr(S1+4*t+rr,2)}, {vr(S0+4*t+rr,2)}, s[90:91], {vr(vBias+rr,2)}')
    p('s_mov_b64 exec, -1')
    for t in range(1, 4): p(f'v_max3_f32 v{M(t)}, v{S1+4*t}, v{S1+4*t+1}, v{S1+4*t+2}')
    for t in range(1, 4): p(f'v_max_f32 v{M(t)}, v{M(t)}, v{S1+4*t+3}')
    p(f'v_permlane32_swap_b32 v{M(0)}, v{M(1)}')
    p(f'v_permlane32_swap_b32 v{M(2)}, v{M(3)}')
    p(f'v_max_f32 v{M(0)}, v{M(0)}, v{M(1)}')
    p(f'v_max_f32 v{M(2)}, v{M(2)}, v{M(3)}')
    p(f'v_permlane16_swap_b32 v{M(0)}, v{M(2)}')
    p(f'v_max_f32 v{M(0)}, v{M(0)}, v{M(2)}')
    p(f'v_mov_b32 v{M(2)}, v{M(0)}')
    p(f'v_permlane16_swap_b32 v{M(0)}, v{M(2)}')
    p(f'v_mov_b32 v{M(1)}, v{M(0)}')
    p(f'v_mov_b32 v{M(3)}, v{M(2)}')
    p(f'v_permlane32_swap_b32 v{M(0)}, v{M(1)}')
    p(f'v_permlane32_swap_b32 v{M(2)}, v{M(3)}')
    for t in range(4):
        for rr in (0, 2): p(f'v_pk_add_f32 {vr(S1+4*t+rr,2)}, {vr(S1+4*t+rr,2)}, {vr(M(t),2)} {BC} neg_lo:[0,1] neg_hi:[0,1]')
    p('s_waitcnt lgkmcnt(0)')
    stamp(p, 6)
    O0, O1 = 64, 80
    def pv(t):
        p(f'v_mfma_f32_16x16x32_bf16 {vr(O1+4*t,4)}, {vr(V1+2*t,4)}, {vr(PF+4*t,4)}, 0')
        p(f'v_mfma_f32_16x16x32_bf16 {vr(O0+4*t,4)}, {vr(V0+2*t,4)}, {vr(PF+4*t,4)}, 0')
    def pcv(ts):
        for msk, o in (('s[72:73]', 0), ('s[62:63]', 2)):
            p(f's_mov_b64 exec, {msk}')
            for t in ts:
                p(f'v_cvt_pk_bf16_f32 v{PF+4*t+o}, v{S1+4*t}, v{S1+4*t+1}')
                p(f'v_cvt_pk_bf16_f32 v{PF+4*t+o+1}, v{S1+4*t+2}, v{S1+4*t+3}')
        p('s_mov_b64 exec, -1')
    for i in range(8): p(f'v_exp_f32 v{S1+i}, v{S1+i}')
    pcv((0, 1))
    for i in range(8, 12): p(f'v_exp_f32 v{S1+i}, v{S1+i}')
    pv(0)
    for i in range(12, 16): p(f'v_exp_f32 v{S1+i}, v{S1+i}')
    pv(1)
    pcv((2, 3))
    PO, PE = 116, 124
    def fin(u):
        for rr in (0, 2): p(f'v_pk_mul_f32 {vr(O0+4*u+rr,2)}, {vr(O0+4*u+rr,2)}, {vr(M(u),2)} {BC}')
        p(f'v_pk_mul_f32 {vr(O1+4*u,2)}, {vr(O1+4*u,2)}, {vr(M(u),2)} {BC}')
        p(f'v_cvt_pk_bf16_f32 v{PO+2*u}, v{O0+4*u}, v{O0+4*u+1}')
        p(f'v_cvt_pk_bf16_f32 v{PO+2*u+1}, v{O0+4*u+2}, v{O0+4*u+3}')
        p(f'v_cvt_pk_bf16_f32 v{PE+u}, v{O1+4*u}, v{O1+4*u+1}')
    def sto(i):
        p(f'v_permlane16_swap_b32 v{PO+4*i}, v{PO+4*i+2}')
        p(f'v_permlane16_swap_b32 v{PO+4*i+1}, v{PO+4*i+3}')
        p(f'buffer_store_dwordx4 {vr(PO+4*i,4)}, v{vOs[i]}, s[52:55], 0 offen{sc}')
    p(f'v_rcp_f32 v{M(0)}, v{O1+2}')
    pv(2)
    pv(3)
    p(f'v_rcp_f32 v{M(1)}, v{O1+6}')
    fin(0)
    p(f'v_rcp_f32 v{M(2)}, v{O1+10}')
    fin(1)
    p(f'v_rcp_f32 v{M(3)}, v{O1+14}')
    p(f'v_cndmask_b32 v{PE}, v{PE}, v{PE+1}, s[16:17]')
    sto(0)
    fin(2)
    fin(3)
    p(f'v_cndmask_b32 v{PE}, v{PE}, v{PE+2}, s[18:19]')
    p(f'v_cndmask_b32 v{PE}, v{PE}, v{PE+3}, s[20:21]')
    sto(1)
    if not os.environ.get('NOLEFT'): p(f'buffer_store_dword v{PE}, v{vOs[2]}, s[52:55], 0 offen{sc}')

def b2_addr(p):
    t = 58
    p(f'v_lshrrev_b32 v{t}, 4, v1')
    p(f'v_bfe_u32 v{t+1}, v1, 2, 2')
    p(f'v_lshl_add_u32 v{t+2}, v{t}, 3, v{t+1}')
    p(f'v_lshlrev_b32 v{t+2}, 7, v{t+2}')
    p(f'v_and_b32 v{t+3}, 3, v1')
    p(f'v_lshl_add_u32 v{t+2}, v{t+3}, 3, v{t+2}')
    p(f'v_and_b32 v{t+3}, 1, v{t}')
    p(f'v_lshlrev_b32 v{t+3}, 1, v{t+3}')
    p(f'v_lshrrev_b32 v{t+1}, 1, v{t+1}')
    p(f'v_or_b32 v{t+3}, v{t+3}, v{t+1}')
    p(f'v_lshl_add_u32 v{t+2}, v{t+3}, 5, v{t+2}')
    p(f'v_add_u32 v42, {WOB}, v{t+2}')
    for m in range(1, 4): p(f'v_xor_b32 v{42+m}, {32*m}, v42')
    for m in range(4): p(f'v_add_u32 v{38+m+8+4}, 49152, v{42+m}')
    p('v_lshlrev_b32 v46, 4, v1')
    p('s_lshl_b32 s9, s66, 3')
    p(f's_add_u32 s9, s9, s{sW}')
    p('s_mul_i32 s64, s9, 18432')
    p('s_lshr_b32 s10, s9, 1')
    p('s_lshl_b32 s69, s10, 5')
    p('s_add_u32 s10, s69, s14')
    p(f'v_and_b32 v{t+1}, 15, v1')
    p(f'v_lshl_add_u32 v{t+1}, v{t+1}, 1, s10')
    p(f'v_mul_u32_u24 v{t+1}, 2304, v{t+1}')
    p(f'v_and_b32 v{t+2}, 1, v{t}')
    p(f'v_lshl_add_u32 v{t+1}, v{t+2}, 5, v{t+1}')
    p(f'v_lshrrev_b32 v{t+2}, 1, v{t}')
    p(f'v_lshl_add_u32 v{t+1}, v{t+2}, 4, v{t+1}')
    p('s_lshl_b32 s9, s67, 7')
    p('s_add_u32 s9, s9, 1152')
    p(f'v_add_u32 v49, s9, v{t+1}')
    p('s_add_u32 s10, s69, 17')
    p('s_mul_i32 s10, s10, 575')
    p('s_lshr_b32 s10, s10, 16')
    p('s_max_u32 s9, s69, 14')
    p('s_sub_u32 s9, s9, 14')
    p('s_mul_i32 s9, s9, 575')
    p('s_lshr_b32 s9, s9, 16')
    p('v_cmp_gt_u32 vcc, 8, v1')
    p('v_mov_b32 v47, s10')
    p('v_mov_b32 v48, s9')
    p('v_cndmask_b32 v47, v47, v48, vcc')
    p('v_and_b32 v48, 7, v1')
    p('v_lshl_add_u32 v47, v47, 3, v48')
    p(f'v_mul_u32_u24 v47, {FLS}, v47')

NSL = 6
def wreads(ks):
    r = []
    base = 136 + 16 * (ks % NSL)
    for m in range(4):
        for hf in range(2):
            a, o = (42 + m, 4096 * ks) if ks < 12 else (50 + m, 4096 * (ks - 12))
            r.append(f'ds_read_b64_tr_b16 {vr(base+4*m+2*hf,2)}, v{a} offset:{o+512*hf}')
    return r

def b2_main(p, k, sc):
    OF, AC = 64, 232
    def oload(ks):
        return [f's_add_u32 s65, s64, {4096*(ks//4)}'] * (ks % 4 == 0) + [f'buffer_load_dwordx4 {vr(OF+4*ks,4)}, v46, s[52:55], s65 offen offset:{1024*(ks%4)}{sc}']
    LEAD = B2LEAD
    for ks in range(LEAD):
        for x in oload(ks): p(x)
    srd(p, 56, P_OUT, SZ_OUT)
    for ks in range(18):
        issued = min(18, LEAD + ks)
        p(f's_waitcnt vmcnt({issued-ks-1}) lgkmcnt({min(15, 8*(min(17, ks+NSL-2)-ks))})')
        if ks == 0: stamp(p, 13)
        mf = []
        for m in range(4):
            a = vr(AC+4*m, 4)
            mf.append(f'v_mfma_f32_16x16x32_bf16 {a}, {vr(136+16*(ks%NSL)+4*m,4)}, {vr(OF+4*ks,4)}, {a if ks else 0}')
        sec = (oload(ks+LEAD) if ks + LEAD < 18 else []) + (wreads(ks+NSL-1) if ks + NSL - 1 < 18 else [])
        for x in interleave(mf, sec, lead=1): p(x)
    stamp(p, 14)
    D = 64
    for m in range(4):
        p(f'v_cvt_pk_bf16_f32 v{D+2*m}, v{AC+4*m}, v{AC+4*m+1}')
        p(f'v_cvt_pk_bf16_f32 v{D+2*m+1}, v{AC+4*m+2}, v{AC+4*m+3}')
    for mp in range(2):
        p(f'v_permlane16_swap_b32 v{D+4*mp}, v{D+4*mp+2}')
        p(f'v_permlane16_swap_b32 v{D+4*mp+1}, v{D+4*mp+3}')
    for mp in range(2):
        p(f'buffer_store_dwordx4 {vr(D+4*mp,4)}, v49, s[56:59], 0 offen offset:{64*mp}{OUTB}')

def signal_and_wait(p, k, who, sFlagOff, vPoll, sMask, perwave, pre=()):
    p('s_mov_b32 s11, 0')
    p.label(f'L_t{who}_{k}')
    p('v_cmp_eq_u32 vcc, 0, v242')
    p(f's_cbranch_vccz L_u{who}_{k}')
    nonce_load(p)
    p('s_waitcnt vmcnt(0)')
    p('s_add_u32 s11, s11, 1')
    p(f's_cmp_lt_u32 s11, {SPIN_MAX}')
    p(f's_cbranch_scc1 L_t{who}_{k}')
    p.label(f'L_u{who}_{k}')
    srd(p, 48, P_WS, 216*FLS, WS_FLAG)
    p(f'v_mov_b32 v241, s{sFlagOff}')
    p(f's_cmp_lg_u32 s{sW}, 0')
    p('s_waitcnt vmcnt(0)')
    stamp(p, 9)
    p('s_barrier')
    p(f's_cbranch_scc1 L_s{who}_{k}')
    p('s_mov_b64 exec, 1')
    p('buffer_store_dwordx2 v[242:243], v241, s[48:51], 0 offen sc1')
    p('s_mov_b64 exec, -1')
    p.label(f'L_s{who}_{k}')
    stamp(p, 10)
    for x in pre: p(x)
    p(f's_mov_b64 exec, {sMask}')
    if POLL2:
        p(f'buffer_load_dwordx2 v[244:245], v{vPoll}, s[48:51], 0 offen sc1')
        p(f's_sleep {POLL2}')
        p.label(f'L_p{who}_{k}')
        p(f'buffer_load_dwordx2 v[246:247], v{vPoll}, s[48:51], 0 offen sc1')
        p('s_waitcnt vmcnt(1)')
        p('v_cmp_ne_u64 vcc, v[244:245], v[242:243]')
        p(f's_cbranch_vccz L_d{who}_{k}')
        p(f'buffer_load_dwordx2 v[244:245], v{vPoll}, s[48:51], 0 offen sc1')
        p('s_waitcnt vmcnt(1)')
        p('v_cmp_ne_u64 vcc, v[246:247], v[242:243]')
        p(f's_cbranch_vccz L_d{who}_{k}')
    else:
        p.label(f'L_p{who}_{k}')
        p(f'buffer_load_dwordx2 v[244:245], v{vPoll}, s[48:51], 0 offen sc1')
        p('s_waitcnt vmcnt(0)')
        p('v_cmp_ne_u64 vcc, v[244:245], v[242:243]')
        p(f's_cbranch_vccz L_d{who}_{k}')
        if SLEEP: p(f's_sleep {SLEEP}')
    p('s_add_u32 s11, s11, 1')
    p(f's_cmp_lt_u32 s11, {SPIN_MAX}')
    p(f's_cbranch_scc1 L_p{who}_{k}')
    p.label(f'L_d{who}_{k}')
    p('s_mov_b64 exec, -1')
    stamp(p, 12)

def pf_addr(p, vi, vx, vw, t):
    p(f'v_mul_u32_u24 v{t}, 10382, v{vi}')
    p(f'v_lshrrev_b32 v{t}, 24, v{t}')
    p(f'v_mul_u32_u24 v{t+1}, 1616, v{t}')
    p(f'v_sub_u32 v{t+1}, v{vi}, v{t+1}')
    p(f'v_cmp_gt_u32 vcc, 1040, v{t+1}')
    p(f'v_mul_u32_u24 v{vx}, 1152, v{t+1}')
    p(f'v_lshl_add_u32 v{vx}, v{t}, 7, v{vx}')
    p(f'v_subrev_u32 v{t+1}, 1040, v{t+1}')
    p(f'v_and_b32 v{t+1}, 0x3ff, v{t+1}')
    p(f'v_mul_u32_u24 v{t+2}, 7282, v{t+1}')
    p(f'v_lshrrev_b32 v{t+2}, 16, v{t+2}')
    p(f'v_mul_u32_u24 v{t+3}, 9, v{t+2}')
    p(f'v_sub_u32 v{t+1}, v{t+1}, v{t+3}')
    p(f'v_lshl_add_u32 v{t+2}, v{t}, 6, v{t+2}')
    p(f'v_mul_u32_u24 v{t+2}, 3456, v{t+2}')
    p(f'v_mul_u32_u24 v{t+3}, 171, v{t+1}')
    p(f'v_lshrrev_b32 v{t+3}, 9, v{t+3}')
    p(f'v_mul_u32_u24 v{t+3}, 768, v{t+3}')
    p(f'v_lshl_add_u32 v{t+3}, v{t+1}, 7, v{t+3}')
    p(f'v_add_u32 v{vw}, v{t+2}, v{t+3}')
    p(f'v_mov_b32 v{t}, {OOB}')
    p(f'v_cndmask_b32 v{vx}, v{t}, v{vx}, vcc')
    p(f'v_cndmask_b32 v{vw}, v{vw}, v{t}, vcc')

def pf_first_addr(p, sub, vi, vx, vw, t):
    p(f's_sub_u32 s9, s5, {sub}')
    p('s_lshl_b32 s9, s9, 3')
    p(f's_add_u32 s9, s9, s{sW}')
    p(f's_mul_i32 s9, s9, {PFL}')
    p(f'v_cmp_gt_u32 vcc, {PFL}, v1')
    p(f'v_add_u32 v{vi}, s9, v1')
    p(f'v_mov_b32 v{t}, 15616')
    p(f'v_cndmask_b32 v{vi}, v{t}, v{vi}, vcc')
    pf_addr(p, vi, vx, vw, t)
    pf_bases(p, 60, 61)

def pf_bases(p, sx, sw):
    p(f's_lshr_b32 s{sw}, s4, 1')
    p(f's_mul_i32 s{sw}, s{sw}, 288')
    p(f's_and_b32 s{sw}, s{sw}, 0xffffff80')
    p(f's_and_b32 s{sx}, s4, 1')
    p(f's_mul_i32 s{sx}, s{sx}, {1026*1152}')

def pf_loads(vx, vw, sx, sw, d):
    return [f'buffer_load_dword v{d}, v{vx}, s[40:43], s{sx} offen{nt("p")}', f'buffer_load_dword v{d+1}, v{vw}, s[44:47], s{sw} offen{nt("p")}']

def role_b(p, k):
    if os.environ.get('NOB'):
        p('s_endpgm'); return
    b_decode(p)
    b1_dma_addr(p)
    if PFB:
        pf_first_addr(p, 0, 60, 246, 247, vTmp)
    p('s_waitcnt lgkmcnt(0)')
    prof_srd(p)
    stamp_begin(p)
    srd(p, SRDx, P_X, SZ_A)
    srd(p, SRDw, P_W, SZ_W)
    c0 = []; c1 = []
    for i in range(6): c0 += dma_slot(i)
    c0.append('\n'.join(dma_advance() + [f's_add_u32 s{sDst}, s{sDst}, {STG}']))
    if PFB:
        for x in pf_loads(246, 247, 60, 61, 248): p(x)
    for x in c0: p(x)
    stamp(p, 20)
    if os.environ.get('C0WAIT'):
        p('s_waitcnt vmcnt(0)')
        stamp(p, 22)
        p('s_barrier')
        stamp(p, 23)
    cs = b1_consts()
    cut = cs.index('; SPLIT')
    ess, side = cs[:cut], cs[cut+1:]
    if not NSIDE:
        for x in interleave(ess + side, c0 if not C1LATE else [], frac=0.5): p(x)
    else:
        for x in interleave(ess, c0): p(x)
        for v in vOs + [vWo, vWoL]: p(f'v_bfrev_b32 v{v}, 1')
        p(f's_cmp_lt_u32 s{sW}, 4')
        p(f's_cbranch_scc1 L_skipc_{k}')
        for x in side: p(x)
        p.label(f'L_skipc_{k}')
    p('s_mov_b32 s23, 0')
    srd(p, 52, P_WS, SZ_A, WS_O)

    if PFB and PF2POS == 'pro':
        p(f's_cmp_lt_u32 s{sW}, {PFB-1}')
        p(f's_cbranch_scc1 L_pf2_{k}')
        for x in pf_loads(246, 247, 60, 61, 248): p(x)
        p.label(f'L_pf2_{k}')
    stamp(p, 21)
    if PRIO == 1:
        p(f's_cmp_lt_u32 s{sW}, 4')
        p(f's_cbranch_scc1 L_prio_{k}')
        p('s_setprio 1')
        p.label(f'L_prio_{k}')
    p(f's_mov_b32 s{sChunk}, 0')
    p(f's_mov_b32 s{sStage}, 0')
    p(f's_mov_b32 s{sNext}, {STG}')
    p(f's_waitcnt vmcnt({0 if C1LATE else 6})')
    p('s_barrier')
    stamp(p, 1, f'b1a_{k}')
    p(f's_cmp_ge_u32 s{sW}, 6')
    p(f's_cbranch_scc1 L_var2_{k}')
    p(f's_cmp_ge_u32 s{sW}, 4')
    p(f's_cbranch_scc1 L_var1_{k}')
    b1_variant(p, k, 0)
    p.label(f'L_var1_{k}')
    b1_variant(p, k, 1)
    p.label(f'L_var2_{k}')
    b1_variant(p, k, 2)
    attention(p, k, ' sc1')
    stamp(p, 8)
    b2_addr(p)
    signal_and_wait(p, k, 'b', 22, 47, 0xffff, True, sum((wreads(i) for i in range(NSL-1)), []))
    b2_main(p, k, ' sc1')
    if NSIDE:
        global SIDE
        SIDE = side
    stamp_end(p, 30, (40 if CFIRST else 0, 2, [61, 1, 2, 8, 9, 12, 30, 63]))
    p('s_endpgm')

def role_a(p, k):
    if os.environ.get('NOA'):
        p('s_endpgm'); return
    a_decode(p)
    a1_addr(p)
    if APF:
        p('s_sub_u32 s9, s5, 18')
        p(f's_mul_i32 s14, s{sW}, 9')
        p('s_add_u32 s9, s9, s14')
        p(f's_mul_i32 s9, s9, {APF}')
        p(f's_add_u32 s9, s9, {APF0}')
        p(f'v_cmp_gt_u32 vcc, {APF}, v1')
        p('v_add_u32 v10, s9, v1')
        p('v_mov_b32 v11, 15616')
        p('v_cndmask_b32 v10, v11, v10, vcc')
        pf_addr(p, 10, 11, 12, 13)
        pf_bases(p, 76, 77)
    p('s_waitcnt lgkmcnt(0)')
    prof_srd(p)
    stamp_begin(p)
    if APF:
        srd(p, 40, P_X, SZ_A)
        srd(p, 44, P_W, SZ_W)
        for x in pf_loads(11, 12, 76, 77, 17): p(x)
    if ADELAY: a2_addr(p)
    a1_loads(p, k)
    a1_compute(p, ' sc1')
    stamp(p, 2)
    a2_hstage(p)
    stamp(p, 3)
    signal_and_wait(p, k, 'a', 68, 233, 0xff, PWA)
    a2_main(p, k, ' sc1', True)
    stamp_end(p, 30, (184 if CFIRST else 144, 10, [61, 1, 12, 14, 30, 63]))
    p('s_endpgm')

def role_c(p, k):
    p('s_sub_u32 s6, s5, 27')
    p('s_lshl_b32 s6, s6, 3')
    p(f's_add_u32 s6, s6, s{sW}')
    p('s_lshl_b32 s7, s6, 6')
    p('v_add_u32 v2, s7, v1')
    p('s_getpc_b64 s[8:9]')
    p.label(f'L_pc_{k}')
    p(f's_sub_u32 s8, s8, L_pc_{k}-{NAME}_kernel')
    p('s_subb_u32 s9, s9, 0')
    p('v_lshlrev_b32 v3, 7, v2')
    p(f'v_cmp_gt_u32 vcc, L_end_{k}-{NAME}_kernel, v3')
    p('v_mov_b32 v5, s9')
    p('v_add_co_u32 v4, s[10:11], s8, v3')
    p('v_addc_co_u32 v5, s[10:11], 0, v5, s[10:11]')
    p('s_and_saveexec_b64 s[12:13], vcc')
    p(f's_cbranch_execz L_nc_{k}')
    p('global_load_dword v10, v[4:5], off')
    p.label(f'L_nc_{k}')
    p('s_mov_b64 exec, s[12:13]')
    first = APF0 + 72*APF
    nb = -(-(14544-first)//2560)
    p(f's_and_b32 s9, s{sW}, 3')
    p('s_mul_i32 s9, s9, 5')
    p('s_add_u32 s9, s9, s5')
    p('s_sub_u32 s9, s9, 27')
    p('s_lshl_b32 s9, s9, 6')
    p(f's_lshr_b32 s14, s{sW}, 2')
    p(f's_mul_i32 s14, s14, {1280*nb}')
    p('s_add_u32 s62, s9, s14')
    for it in range(nb):
        p(f'v_add_u32 v6, s62, v1')
        p(f'v_add_u32 v6, {first+1280*it}, v6')
        pf_addr(p, 6, 40+2*it, 41+2*it, 11)
        if it == 1: p('; KWAIT')
    pf_bases(p, 76, 77)
    p('s_waitcnt lgkmcnt(0)')
    prof_srd(p)
    stamp_begin(p)
    p(f's_cmp_lg_u32 s2, {0 if CFIRST else 216}')
    p(f's_cbranch_scc1 L_nl_{k}')
    p(f's_cmp_lg_u32 s{sW}, 0')
    p(f's_cbranch_scc1 L_nl_{k}')
    p('s_memrealtime s[60:61]')
    srd(p, 56, P_DBG, 256)
    p('s_waitcnt lgkmcnt(0)')
    p('s_or_b32 s60, s60, 1')
    p('v_mov_b32 v30, s60')
    p('v_mov_b32 v31, s61')
    p('v_mov_b32 v32, 0')
    p('s_mov_b64 exec, 1')
    p('buffer_store_dwordx2 v[30:31], v32, s[56:59], 0 offen sc1')
    p('s_mov_b64 exec, -1')
    if os.environ.get('DIAGT'):
        p.label('L_diag')
        p('s_memrealtime s[62:63]')
        p('s_waitcnt lgkmcnt(0)')
        p('s_sub_u32 s62, s62, s60')
        p(f's_cmp_lt_u32 s62, {os.environ["DIAGT"]}')
        p('s_cbranch_scc1 L_diag')
    p.label(f'L_nl_{k}')
    if os.environ.get('NOC'):
        p('s_endpgm'); return
    srd(p, 40, P_X, SZ_A)
    srd(p, 44, P_W, SZ_W)
    srd(p, 48, P_WO, SZ_WO)
    srd(p, 52, P_Q, SZ_A)
    d = 21
    for it in range(nb):
        for x in pf_loads(40+2*it, 41+2*it, 76, 77, d): p(x)
        d += 2
    stamp(p, 1)
    p('s_waitcnt vmcnt(0)')
    stamp(p, 2)
    p('s_mul_i32 s14, s4, 144')
    p('s_and_b32 s14, s14, 0xffffff80')
    for it in range(2):
        p(f'v_add_u32 v6, {2560*it}, v2')
        p('v_lshrrev_b32 v7, 1, v6')
        p('v_mul_u32_u24 v7, 1152, v7')
        p('v_and_b32 v8, 1, v6')
        p('v_lshl_add_u32 v7, v8, 7, v7')
        p(f'buffer_load_dword v{d}, v7, s[52:55], s14 offen{nt("q")}'); d += 1
    for it in range(3):
        p(f'v_add_u32 v6, {2560*it}, v2')
        p('v_lshlrev_b32 v6, 7, v6')
        p(f'buffer_load_dword v{d}, v6, s[48:51], 0 offen{nt("o")}'); d += 1
    stamp(p, 3)
    p('s_waitcnt vmcnt(0)')
    stamp_end(p, 30)

def kernel_mega(p):
    k = 'm'
    if PROF: p('s_memtime s[100:101]')
    p(f's_cmp_ge_u32 s2, {GRID}')
    p(f's_cbranch_scc1 L_end_{k}')
    p('s_load_dwordx16 s[16:31], s[0:1], 0')
    p('s_load_dwordx8 s[32:39], s[0:1], 64')
    p('v_lshrrev_b32 v2, 6, v0')
    p('v_and_b32 v1, 63, v0')
    p(f'v_readfirstlane_b32 s{sW}, v2')
    p('s_and_b32 s4, s2, 7')
    p('s_lshr_b32 s5, s2, 3')
    if CFIRST:
        p('s_add_u32 s5, s5, 27')
        p('s_and_b32 s5, s5, 31')
    p('s_cmp_ge_u32 s5, 27')
    p(f's_cbranch_scc1 L_roleC_{k}')
    p('s_cmp_ge_u32 s5, 18')
    p(f's_cbranch_scc1 L_roleA_{k}')
    role_b(p, k)
    if NSIDE and not os.environ.get('NOB'):
        p.label(f'L_side_{k}')
        p('s_add_u32 s23, s23, 1')
        for i in range(1, NSIDE):
            p(f's_cmp_eq_u32 s23, {i+1}')
            p(f's_cbranch_scc1 L_side{i}_{k}')
        n = len(SIDE)
        for i in range(NSIDE):
            p.label(f'L_side{i}_{k}')
            for x in SIDE[i*n//NSIDE:(i+1)*n//NSIDE]: p(x)
            p('s_setpc_b64 s[24:25]')
    p('.p2align 10')
    p.label(f'L_roleA_{k}')
    role_a(p, k)
    p('.p2align 10')
    p.label(f'L_roleC_{k}')
    role_c(p, k)
    p.label(f'L_end_{k}')
    p('s_endpgm')

SPIN_MAX = 1 << 16
GRID = int(os.environ.get('GRID', '256'))

HEAD = open(os.path.join(os.path.dirname(os.path.abspath(__file__)), 'head.txt')).read()

def emit_kernel(name, fn):
    p = Prog()
    fn(p)
    lines, n = fix_hazards(p.lines, verbose=bool(os.environ.get('HZ')))
    sys.stderr.write(f'{name}: {len(lines)} lines, {n} nops inserted\n')
    body = '\n'.join(('' if l.endswith(':') else '    ') + l for l in lines)
    return f'''.text
.globl {name}
.p2align 10
.fill 64, 4, 0xbf810000
.p2align 8
.type {name},@function
{name}:
{body}
.section .rodata,"a"
.p2align 6
.amdhsa_kernel {name}
  .amdhsa_next_free_vgpr 256
  .amdhsa_next_free_sgpr 102
  .amdhsa_accum_offset 256
  .amdhsa_group_segment_fixed_size 0
  .amdhsa_kernarg_size 96
  .amdhsa_user_sgpr_count 2
  .amdhsa_user_sgpr_kernarg_segment_ptr 1
  .amdhsa_system_sgpr_workgroup_id_x 1
.end_amdhsa_kernel
'''

def main():
    out = HEAD
    out += f'; @launch grid=({GRID},1,1) block=(512,1,1) lds={LDS_BYTES}\n'
    out += '.amdgcn_target "amdgcn-amd-amdhsa--gfx950"\n'
    out += emit_kernel(NAME + '_kernel', kernel_mega)
    sys.stdout.write(out)

if __name__ == '__main__':
    main()
```
